```python
import torch

def _softmax(x, axis=-1):
    return torch.softmax(x, dim=axis)
def _gelu(x):
    return torch.nn.functional.gelu(x, approximate="tanh")
def _silu(x):
    return torch.nn.functional.silu(x)
def _sigmoid(x):
    return torch.sigmoid(x)
def _layernorm(x, axis=-1, eps=1e-5):
    m = x.mean(dim=axis, keepdim=True)
    v = x.var(dim=axis, keepdim=True, unbiased=False)
    return (x - m) / torch.sqrt(v + eps)
def _scatter_add(tgt, idx, src, axis=0):
    return tgt.clone().index_add_(axis, idx, src)
def _segment_sum(src, seg, n):
    out = torch.zeros((n,) + src.shape[1:], dtype=src.dtype)
    return out.index_add_(0, seg, src)
def _pad(x, pw):
    flat = tuple(v for pair in reversed(pw) for v in pair)
    return torch.nn.functional.pad(x, flat)

kernel_name = 'gather_scatter__kernel_systems_refs_featgraph__graph'

def setup_inputs():

    _w = (lambda a: (lambda t: t.to(torch.bfloat16) if t.is_floating_point() else t)(torch.as_tensor(a)))
    N, deg, D = 12500, 64, 64
    E = N * deg
    scale = D ** -0.5
    src = (lambda lo, hi, *s: torch.randint(lo, hi, s))(0, N, E).to(torch.int64)
    dst = (lambda lo, hi, *s: torch.randint(lo, hi, s))(0, N, E).to(torch.int64)
    return {
        "x": _w((lambda *s: torch.randn(*s, dtype=torch.bfloat16) * 0.8)(N, D)),
        "src": _w(src),
        "dst": _w(dst),
        "w_q": _w((lambda *s: torch.randn(*s, dtype=torch.bfloat16) * 0.8)(D, D) * scale),
        "w_v": _w((lambda *s: torch.randn(*s, dtype=torch.bfloat16) * 0.05)(D, D) * scale),
    }

def reference(x, src, dst, w_q, w_v):
    N, D = x.shape
    xs = x[src]
    xd = x[dst]
    q = xd @ w_q
    logits = torch.einsum('ed,ed->e', xs, q) * (float(D) ** -0.5)
    alpha = _sigmoid(logits)
    msg = alpha[:, None] * (xs @ w_v)
    return _segment_sum(msg, dst, N)
```

```python
import sys, struct
STAMP = '--stamp' in sys.argv
OUT = [a for a in sys.argv[1:] if not a.startswith('--')][0]
HDR = open('gather_scatter__kernel_systems_refs_featgraph__graph.s.ref').read().split('\n')
hdr = [l for l in HDR if l.startswith(';') and '@launch' not in l and 'Override' not in l and 'grid=ceil' not in l]

N=12500; E=800000; NP=250; CH=3200; CHB=CH*4
XB=N*128
TAB_OFF=0x400000
o=[]
def e(s): o.append('    '+s)
def lab(s): o.append(s+':')
def f2u(f): return struct.unpack('<I',struct.pack('<f',f))[0]

def srd(d, lo, hi, nrec):
    e(f's_mov_b32 s{d}, s{lo}'); e(f's_mov_b32 s{d+1}, s{hi}'); e(f's_mov_b32 s{d+2}, {nrec}'); e(f's_mov_b32 s{d+3}, 0x20000')

def stamp(i):
    if STAMP: e(f's_memrealtime s[{80+2*i}:{81+2*i}]')
def stamp_store(first, last, wsreg, tag):
    if not STAMP: return
    e('s_waitcnt lgkmcnt(0)')
    e('v_cmp_eq_u32 vcc, 0, v0')
    e('s_and_saveexec_b64 s[78:79], vcc')
    e(f's_cbranch_execz {tag}_nostamp')
    e(f's_add_u32 s76, s{wsreg}, 0x8000000'); e(f's_addc_u32 s77, s{wsreg+1}, 0')
    e('s_lshl_b32 s75, s2, 7')
    e('v_mov_b32 v1, s75')
    for i in range(first,last+1):
        e(f'v_mov_b32 v2, s{80+2*i}'); e(f'v_mov_b32 v3, s{81+2*i}')
        e(f'global_store_dwordx2 v1, v[2:3], s[76:77] offset:{8*i}')
        e('s_nop 1')
    lab(f'{tag}_nostamp')
    e('s_mov_b64 exec, -1')

K1_LDS=2048+CHB
def k1():
    o.append('.p2align 8'); o.append('.type bin_kernel,@function'); lab('bin_kernel')
    e('s_cmp_ge_u32 s2, 256'); e('s_cbranch_scc1 K1_end')
    stamp(0)
    e('s_load_dwordx4 s[4:7], s[0:1], 0')
    e('s_load_dwordx2 s[8:9], s[0:1], 16')
    e('s_load_dwordx2 s[10:11], s[0:1], 56')
    e('v_lshrrev_b32 v2, 6, v0')
    e('v_lshlrev_b32 v1, 4, v0')
    e('v_readfirstlane_b32 s12, v2')
    e('v_lshlrev_b32 v2, 2, v0')
    e('v_mov_b32 v3, 0')
    e(f's_mul_i32 s13, s2, {CHB}')
    e('s_lshr_b32 s14, s2, 3')
    e('s_mul_i32 s14, s14, 50000')
    e('s_cmp_lt_u32 s12, 4'); e('s_cbranch_scc0 K1_skipz')
    e('ds_write_b32 v2, v3')
    lab('K1_skipz')
    e('s_movk_i32 s40, 0x4000'); e('s_mov_b32 s41, 0x8000'); e('s_mov_b32 s42, 0xc000')
    e('s_mov_b32 s43, 0x050c0100')
    e('s_waitcnt lgkmcnt(0)')
    e('s_add_u32 s16, s8, s13'); e('s_addc_u32 s17, s9, 0'); e(f's_mov_b32 s18, {CHB}'); e('s_mov_b32 s19, 0x20000')
    e('s_add_u32 s20, s6, s13'); e('s_addc_u32 s21, s7, 0'); e(f's_mov_b32 s22, {CHB}'); e('s_mov_b32 s23, 0x20000')
    e('s_add_u32 s24, s4, s14'); e('s_addc_u32 s25, s5, 0'); e('s_mov_b32 s26, 50000'); e('s_mov_b32 s27, 0x20000')
    e(f's_cmp_ge_u32 s2, {NP}'); e('s_cbranch_scc1 K1_pfonly')
    e('s_cmp_ge_u32 s12, 13'); e('s_cbranch_scc1 K1_noload')
    e('buffer_load_dwordx4 v[4:7], v1, s[16:19], 0 offen')
    e('buffer_load_dwordx4 v[8:11], v1, s[20:23], 0 offen')
    lab('K1_noload')
    e('buffer_load_dwordx4 v[12:15], v1, s[24:27], 0 offen')
    e('buffer_load_dwordx4 v[12:15], v1, s[24:27], s40 offen')
    e('buffer_load_dwordx4 v[12:15], v1, s[24:27], s41 offen')
    e('buffer_load_dwordx4 v[12:15], v1, s[24:27], s42 offen')
    e('s_add_u32 s28, s10, s13'); e('s_addc_u32 s29, s11, 0'); e(f's_mov_b32 s30, {CHB}'); e('s_mov_b32 s31, 0x20000')
    e('s_lshl_b32 s15, s2, 10'); e(f's_add_u32 s15, s15, {TAB_OFF}')
    e('s_add_u32 s32, s10, s15'); e('s_addc_u32 s33, s11, 0'); e('s_mov_b32 s34, 1024'); e('s_mov_b32 s35, 0x20000')
    e('v_mov_b32 v3, 4')
    e('v_and_b32 v40, 63, v0'); e('v_lshlrev_b32 v40, 4, v40')
    e('s_barrier')
    e('s_cmp_ge_u32 s12, 13'); e('s_cbranch_scc1 K1_idle')
    e('v_cmp_gt_u32 vcc, 800, v0')
    e('s_mov_b64 s[36:37], vcc')
    e('s_mov_b64 exec, vcc')
    e('s_waitcnt vmcnt(5)')
    stamp(1)
    for i in range(4):
        e(f'v_lshlrev_b32_sdwa v{16+i}, 2, v{4+i} dst_sel:DWORD dst_unused:UNUSED_PAD src0_sel:DWORD src1_sel:BYTE_0')
    for i in range(4):
        e(f'ds_add_rtn_u32 v{20+i}, v{16+i}, v3')
    e('s_waitcnt vmcnt(4)')
    for i in range(4):
        e(f'v_perm_b32 v{8+i}, v{4+i}, v{8+i}, s43')
    e('s_mov_b64 exec, -1')
    e('s_waitcnt lgkmcnt(0)')
    e('s_barrier')
    e('ds_read_b128 v[24:27], v40')
    e('s_waitcnt lgkmcnt(0)')
    e('v_add_u32 v28, v24, v25'); e('v_add_u32 v29, v28, v26'); e('v_add_u32 v30, v29, v27')
    e('v_mov_b32 v31, v30')
    for sh in (1,2,4,8):
        e('s_nop 1'); e(f'v_add_u32_dpp v31, v31, v31 row_shr:{sh} row_mask:0xf bank_mask:0xf bound_ctrl:0')
    e('s_nop 1'); e('v_add_u32_dpp v31, v31, v31 row_bcast:15 row_mask:0xa bank_mask:0xf')
    e('s_nop 1'); e('v_add_u32_dpp v31, v31, v31 row_bcast:31 row_mask:0xc bank_mask:0xf')
    e('v_sub_u32 v32, v31, v30')
    e('v_add_u32 v33, v32, v24'); e('v_add_u32 v34, v32, v28'); e('v_add_u32 v35, v32, v29')
    e('ds_write_b128 v40, v[32:35] offset:1024')
    e('s_mov_b64 exec, s[36:37]')
    for i in range(4):
        e(f'ds_read_b32 v{36+i}, v{16+i} offset:1024')
    e('s_mov_b64 exec, -1')
    e('s_cmp_lg_u32 s12, 0'); e('s_cbranch_scc1 K1_notab')
    for i in range(4):
        e(f'v_lshl_or_b32 v{44+i}, v{24+i}, 16, v{32+i}')
    e('buffer_store_dwordx4 v[44:47], v40, s[32:35], 0 offen')
    lab('K1_notab')
    e('s_mov_b64 exec, s[36:37]')
    e('s_waitcnt lgkmcnt(0)')
    for i in range(4):
        e(f'v_add_u32 v{36+i}, v{36+i}, v{20+i}')
    for i in range(4):
        e(f'ds_write_b32 v{36+i}, v{8+i} offset:2048')
    e('s_waitcnt lgkmcnt(0)')
    e('s_barrier')
    e('ds_read_b128 v[24:27], v1 offset:2048')
    e('s_waitcnt lgkmcnt(0)')
    e('buffer_store_dwordx4 v[24:27], v1, s[28:31], 0 offen')
    e('s_mov_b64 exec, -1')
    stamp(2)
    if STAMP:
        e('s_waitcnt vmcnt(0)'); stamp(3)
        stamp_store(0,3,10,'K1')
    e('s_endpgm')
    lab('K1_idle')
    e('s_barrier'); e('s_barrier')
    e('s_endpgm')
    lab('K1_pfonly')
    e('buffer_load_dwordx4 v[12:15], v1, s[24:27], 0 offen')
    e('buffer_load_dwordx4 v[12:15], v1, s[24:27], s40 offen')
    e('buffer_load_dwordx4 v[12:15], v1, s[24:27], s41 offen')
    e('buffer_load_dwordx4 v[12:15], v1, s[24:27], s42 offen')
    if STAMP:
        stamp(1); stamp(2); stamp(3); stamp_store(0,3,10,'K1p')
    lab('K1_end')
    e('s_endpgm')

CNT=0; LIST=256; QS=144; QT=LIST+12544; WQ=QT+64*QS; WV=WQ+8192; STG=WV+8192; K2_LDS=STG+100352
assert STG%128==0
assert QT%16==0 and WQ%16==0
V={}
_n=[1]
def va(name,cnt=1,al=1):
    while _n[0]%al: _n[0]+=1
    V[name]=_n[0]; _n[0]+=cnt
    return V[name]
va('lane'); va('cA'); va('cB'); va('ia'); va('a10'); va('a11'); va('a2',4); va('m',4); va('cs'); va('idx',4); va('da',2); va('qa')
va('O',16,4); va('D',4,4); va('Bq',32,4); va('A1',24,4); va('XT01',16,4); va('XT2',8,2); va('Z'); va('T'); va('Pk')
NV2=_n[0]
def r(name,i=0,n=1):
    b=V[name]+i
    return f'v{b}' if n==1 else f'v[{b}:{b+n-1}]'
A1=V['A1']
XT3=A1
P01=A1+8
P2=A1+12
P3=A1+14
TB=V['XT01']
EO=V['XT01']+4
EC=V['XT01']+8
I4=V['XT01']+12
PB=V['XT01']+13
I4b=V['XT01']+14
TWO=V['XT01']+15
EN=A1
RK=A1+8
TA=A1+16
XQ=V['Bq']
WF=V['Bq']+8
QD=V['Bq']+16
TMP=V['XT2']

def wfrag_reads(dst, base):
    for ks in range(2):
        for jh in range(2):
            e(f'ds_read_b64_tr_b16 v[{dst+4*ks+2*jh}:{dst+4*ks+2*jh+1}], v{TMP} offset:{base+ks*4096+jh*512}')
def wfrag_addr():
    e(f'v_lshrrev_b32 v{TMP}, 4, {r("lane")}'); e(f'v_lshlrev_b32 v{TMP}, 10, v{TMP}')
    e(f'v_bfe_u32 v{TMP+1}, {r("lane")}, 2, 2'); e(f'v_lshl_add_u32 v{TMP}, v{TMP+1}, 7, v{TMP}')
    e(f'v_and_b32 v{TMP+1}, 3, {r("lane")}'); e(f'v_lshl_add_u32 v{TMP}, v{TMP+1}, 3, v{TMP}')
    e('s_and_b32 s3, s36, 3'); e('s_lshl_b32 s3, s3, 5')
    e(f'v_add_u32 v{TMP}, s3, v{TMP}')

def dma_issue(nc):
    for k in range(nc):
        for h in range(2):
            e(f'v_mad_u32_u16 {r("da",h)}, {r("idx",k)}, s40, {r("cA" if h==0 else "cB")} op_sel:[{h},0,0,0]')
            e(f's_add_u32 m0, s37, {k*2048+h*1024}')
            e('s_nop 0')
            e(f'buffer_load_dwordx4 {r("da",h)}, s[16:19], 0 offen lds')

def main_loop(nc):
    t=f'M{nc}'
    for i in range(8*nc): e(f'v_mov_b32 {r("Bq",i)}, 0')
    for k in range(nc):
        e(f's_lshl_b64 exec, s[6:7], {k}')
        e(f'ds_read_b128 {r("Bq",8*k,4)}, {r("qa")}')
        e(f'ds_read_b128 {r("Bq",8*k+4,4)}, {r("qa")} offset:16')
    e('s_mov_b64 exec, -1')
    e('s_lshl_b32 s3, s42, 5')
    e('s_add_u32 s3, s3, s41')
    e(f'v_lshrrev_b32 {r("ia")}, 3, {r("lane")}')
    e(f'v_lshl_add_u32 {r("ia")}, {r("ia")}, 2, s3')
    for k in range(nc): e(f'ds_read_b32 {r("idx",k)}, {r("ia")} offset:{k*4096}')
    e('s_waitcnt lgkmcnt(0)')
    dma_issue(nc)
    lab(f'{t}_loop')
    e(f'v_subrev_u32 {r("ia")}, 32, {r("ia")}')
    e('s_sub_u32 s42, s42, 1')
    for k in range(nc): e(f'ds_read_b32 {r("idx",k)}, {r("ia")} offset:{k*4096}')
    e('s_waitcnt vmcnt(0)')
    for k in range(3):
        e(f'ds_read_b128 {r("A1",8*k,4)}, {r("a10")} offset:{k*2048}')
        e(f'ds_read_b128 {r("A1",8*k+4,4)}, {r("a11")} offset:{k*2048}')
    tr=[]
    for k in range(3):
        for f in range(4):
            d = V['XT01']+4*f+2*k if k<2 else V['XT2']+2*f
            tr.append(f'ds_read_b64_tr_b16 v[{d}:{d+1}], {r("a2",f)} offset:{k*2048}')
    for x in tr[:6]: e(x)
    e('s_waitcnt lgkmcnt(10)')
    e(f'v_mfma_f32_16x16x32_bf16 {r("D",0,4)}, {r("A1",0,4)}, {r("Bq",0,4)}, 0')
    e(f'v_mfma_f32_16x16x32_bf16 {r("D",0,4)}, {r("A1",4,4)}, {r("Bq",4,4)}, {r("D",0,4)}')
    for x in tr[6:]: e(x)
    if nc==4:
        e(f'ds_read_b128 {r("A1",0,4)}, {r("a10")} offset:{3*2048}')
        e(f'ds_read_b128 {r("A1",4,4)}, {r("a11")} offset:{3*2048}')
        e('s_waitcnt lgkmcnt(14)')
    else:
        e('s_waitcnt lgkmcnt(12)')
    for k in (1,2):
        e(f'v_mfma_f32_16x16x32_bf16 {r("D",0,4)}, {r("A1",8*k,4)}, {r("Bq",8*k,4)}, {r("D",0,4)}')
        e(f'v_mfma_f32_16x16x32_bf16 {r("D",0,4)}, {r("A1",8*k+4,4)}, {r("Bq",8*k+4,4)}, {r("D",0,4)}')
    if nc==4:
        e('s_waitcnt lgkmcnt(0)')
        e(f'v_mfma_f32_16x16x32_bf16 {r("D",0,4)}, {r("A1",0,4)}, {r("Bq",24,4)}, {r("D",0,4)}')
        e(f'v_mfma_f32_16x16x32_bf16 {r("D",0,4)}, {r("A1",4,4)}, {r("Bq",28,4)}, {r("D",0,4)}')
        for f in range(4):
            e(f'ds_read_b64_tr_b16 v[{XT3+2*f}:{XT3+2*f+1}], {r("a2",f)} offset:{3*2048}')
    e('s_waitcnt lgkmcnt(0)')
    e('s_cmp_eq_u32 s42, 0')
    e(f's_cbranch_scc1 {t}_nodma')
    dma_issue(nc)
    lab(f'{t}_nodma')
    e('s_nop 7')
    e(f'v_mul_f32 {r("Z")}, {r("D",0)}, {r("cs")}')
    for i in (1,2,3):
        e(f'v_mul_f32_dpp {r("Z")}, {r("D",i)}, {r("cs")} row_shr:{4*i} row_mask:0xf bank_mask:{1<<i:#x}')
    e(f'v_exp_f32 {r("Z")}, {r("Z")}')
    e('s_nop 0')
    e(f'v_add_f32 {r("Z")}, 1.0, {r("Z")}')
    e(f'v_rcp_f32 {r("Z")}, {r("Z")}')
    e('s_nop 1')
    e(f'v_mov_b32_dpp {r("T")}, {r("Z")} row_shl:4 row_mask:0xf bank_mask:0xf bound_ctrl:0')
    e(f'v_cvt_pk_bf16_f32 {r("Pk")}, {r("Z")}, {r("T")}')
    dsts=[P01,P01+2,P2,P3]
    for k in range(nc):
        e(f'v_and_b32 v{dsts[k]}, {r("Pk")}, {r("m",k)}')
    for k in range(nc):
        e(f'v_and_b32_dpp v{dsts[k]+1}, {r("Pk")}, {r("m",k)} row_shl:8 row_mask:0xf bank_mask:0xf bound_ctrl:0')
    e('s_nop 1')
    for f in range(4):
        e(f'v_mfma_f32_16x16x32_bf16 {r("O",4*f,4)}, {r("XT01",4*f,4)}, v[{P01}:{P01+3}], {r("O",4*f,4)}')
    for f in range(4):
        e(f'v_mfma_f32_16x16x16_bf16 {r("O",4*f,4)}, {r("XT2",2*f,2)}, v[{P2}:{P2+1}], {r("O",4*f,4)}')
    if nc==4:
        for f in range(4):
            e(f'v_mfma_f32_16x16x16_bf16 {r("O",4*f,4)}, v[{XT3+2*f}:{XT3+2*f+1}], v[{P3}:{P3+1}], {r("O",4*f,4)}')
    e('s_cmp_lg_u32 s42, 0')
    e(f's_cbranch_scc1 {t}_loop')
    e('s_branch K2_loop_done')

def lds_init():
    e(f'v_mov_b32 v{EN}, -1'); e(f'v_mov_b32 v{EN+1}, -1'); e(f'v_mov_b32 v{EN+2}, -1'); e(f'v_mov_b32 v{EN+3}, -1')
    e(f'v_lshlrev_b32 v{EN+4}, 4, v0')
    e(f'v_add_u32 v{EN+4}, {LIST}, v{EN+4}')
    e('v_cmp_gt_u32 vcc, 784, v0')
    e('s_mov_b64 exec, vcc')
    e(f'ds_write_b128 v{EN+4}, v[{EN}:{EN+3}]')
    e('s_mov_b64 exec, -1')
    e(f'v_lshlrev_b32 v{EN+5}, 2, {r("lane")}')
    e(f'v_add_u32 v{EN+5}, {CNT}, v{EN+5}')
    e(f'v_mov_b32 v{EN+6}, 0')
    e('v_cmp_le_u32 vcc, 960, v0')
    e('s_mov_b64 exec, vcc')
    e(f'ds_write_b32 v{EN+5}, v{EN+6}')
    e('s_mov_b64 exec, -1')

def k2():
    K='gather_scatter__kernel_systems_refs_featgraph__graph_kernel'
    o.append('.p2align 8'); o.append(f'.type {K},@function'); lab(K)
    e('s_cmp_ge_u32 s2, 256'); e('s_cbranch_scc1 K2_end')
    stamp(4)
    e('s_load_dwordx2 s[4:5], s[0:1], 0')
    e('s_load_dwordx4 s[8:11], s[0:1], 24')
    e('s_load_dwordx2 s[12:13], s[0:1], 40')
    e('s_load_dwordx2 s[14:15], s[0:1], 56')
    L=r('lane')
    e(f'v_lshrrev_b32 v{TMP}, 6, v0')
    e(f'v_and_b32 {L}, 63, v0')
    e(f'v_readfirstlane_b32 s36, v{TMP}')
    e(f'v_lshrrev_b32 v{PB}, 4, v0')
    e(f'v_lshrrev_b32 v{TMP+1}, 4, {L}')
    e(f'v_lshl_add_u32 v{PB}, v{TMP}, 4, v{TMP+1}')
    e('s_lshl_b32 s3, s2, 2')
    e(f'v_lshl_add_u32 v{TMP+2}, v{PB}, 10, s3')
    e('s_movk_i32 s44, 0x1000'); e('s_movk_i32 s45, 0x2000'); e('s_movk_i32 s46, 0x3000')
    e(f's_movk_i32 s47, {CHB}')
    e(f'v_mul_u32_u24 v{PB}, s47, v{PB}')
    e(f'v_and_b32 v{I4}, 15, {L}');
    e('s_lshr_b32 s3, s36, 2'); e('s_lshl_b32 s3, s3, 12'); e('s_add_u32 s3, s3, s2'); e('s_lshl_b32 s38, s3, 7')
    e(f'v_lshlrev_b32 v{TMP+3}, 15, v{I4}')
    e(f'v_lshl_add_u32 v{TMP+3}, v{TMP+1}, 4, v{TMP+3}')
    e(f'v_add_u32 v{TMP+3}, s38, v{TMP+3}')
    e(f'v_lshlrev_b32 v{I4}, 2, v{I4}')
    e(f'v_lshlrev_b32 v{TMP+4}, 4, {L}')
    e('s_and_b32 s39, s36, 7'); e('s_lshl_b32 s39, s39, 10')
    e('s_waitcnt lgkmcnt(0)')
    e(f's_add_u32 s24, s14, {TAB_OFF}'); e('s_addc_u32 s25, s15, 0'); e(f's_mov_b32 s26, {NP*1024}'); e('s_mov_b32 s27, 0x20000')
    for u,so in enumerate(['0','s44','s45','s46']):
        e(f'buffer_load_dword v{TB+u}, v{TMP+2}, s[24:27], {so} offen')
    e('s_cmp_lt_u32 s36, 8')
    e('s_cselect_b32 s28, s8, s10'); e('s_cselect_b32 s29, s9, s11'); e('s_mov_b32 s30, 8192'); e('s_mov_b32 s31, 0x20000')
    e('s_cselect_b32 s3, 0, 8192')
    e(f's_add_u32 s3, s3, {WQ}')
    e('s_add_u32 m0, s3, s39')
    srd(16,4,5,XB)
    e(f'buffer_load_dwordx4 v{TMP+4}, s[28:31], s39 offen lds')
    e(f'buffer_load_dwordx4 v[{XQ}:{XQ+3}], v{TMP+3}, s[16:19], 0 offen')
    e(f'buffer_load_dwordx4 v[{XQ+4}:{XQ+7}], v{TMP+3}, s[16:19], 0 offen offset:64')
    srd(20,14,15,NP*CHB)
    srd(32,12,13,XB)
    e(f's_mov_b32 s44, {4*CHB}'); e(f's_mov_b32 s45, {8*CHB}'); e(f's_mov_b32 s46, {12*CHB}')
    lds_init()
    e('s_add_u32 s3, s36, 15'); e('s_and_b32 s3, s3, 15'); e('s_mul_i32 s37, s3, 6144'); e(f's_add_u32 s37, s37, {STG}')
    e('s_movk_i32 s40, 128')
    e('s_lshl_b32 s41, s36, 8'); e(f's_add_u32 s41, s41, {LIST-32}')
    e('s_mov_b32 s6, 0x00010001'); e('s_mov_b32 s7, 0x00010001')
    t0,t1,t2=TMP,TMP+1,TMP+2
    e(f'v_lshrrev_b32 v{t0}, 3, {L}'); e(f'v_and_b32 v{t0}, 6, v{t0}'); e(f'v_and_b32 v{t2}, 7, {L}')
    e(f'v_xor_b32 v{t0}, v{t0}, v{t2}'); e(f'v_lshlrev_b32 {r("cA")}, 4, v{t0}'); e(f'v_xor_b32 {r("cB")}, 16, {r("cA")}')
    e(f'v_and_b32 v{t0}, 6, {L}'); e(f'v_bfe_u32 v{t2}, {L}, 3, 1'); e(f'v_or_b32 v{t0}, v{t0}, v{t2}')
    e(f'v_lshlrev_b32 v{t2}, 1, v{t1}'); e(f'v_xor_b32 v{t0}, v{t0}, v{t2}'); e(f'v_lshlrev_b32 v{t0}, 4, v{t0}')
    e(f'v_and_b32 v{t2}, 15, {L}'); e(f'v_lshl_add_u32 v{t0}, v{t2}, 7, v{t0}')
    e(f'v_add_u32 {r("a10")}, s37, v{t0}'); e(f'v_xor_b32 {r("a11")}, 16, {r("a10")}')
    for k in range(4):
        e(f'v_cmp_eq_u32 s[64:65], {k}, v{t2}'); e('s_nop 1'); e(f'v_cndmask_b32 {r("m",k)}, 0, -1, s[64:65]')
    e(f'v_lshlrev_b32 v{t0}, 4, v{t2}'); e(f'v_add_u32 v{t0}, s36, v{t0}'); e(f's_movk_i32 s3, {QS}'); e(f'v_mul_u32_u24 v{t0}, s3, v{t0}')
    e(f'v_lshl_add_u32 v{t0}, v{t1}, 5, v{t0}'); e(f'v_add_u32 {r("qa")}, {QT}, v{t0}')
    e(f'v_lshrrev_b32 v{t0}, 2, {L}')
    e(f'v_and_b32 v{t2}, 6, v{t0}'); e(f'v_lshrrev_b32 {r("Z")}, 3, v{t0}'); e(f'v_or_b32 v{t2}, v{t2}, {r("Z")}')
    e(f'v_bfe_u32 {r("Z")}, {L}, 1, 1'); e(f'v_xor_b32 v{t2}, v{t2}, {r("Z")}'); e(f'v_lshlrev_b32 v{t2}, 4, v{t2}')
    e(f'v_lshl_add_u32 v{t2}, v{t0}, 7, v{t2}')
    e(f'v_and_b32 {r("Z")}, 1, {L}'); e(f'v_lshl_add_u32 v{t2}, {r("Z")}, 3, v{t2}')
    e(f'v_add_u32 {r("a2",0)}, s37, v{t2}')
    for f in (1,2,3): e(f'v_xor_b32 {r("a2",f)}, {32*f}, {r("a2",0)}')
    e(f'v_mov_b32 {r("cs")}, {f2u(-0.125*1.4426950408889634):#x}')
    for i in range(16): e(f'v_mov_b32 {r("O",i)}, 0')
    e(f'v_mov_b32 v{TWO}, 2')
    wfrag_addr()
    e('s_mov_b32 s66, 1')
    e('s_mov_b32 s67, 0')
    e('s_waitcnt vmcnt(3)')
    stamp(5)
    for u in range(4):
        e(f'v_lshrrev_b32 v{EC+u}, 16, v{TB+u}')
        e(f'v_add_u32_sdwa v{EO+u}, v{PB}, v{TB+u} dst_sel:DWORD dst_unused:UNUSED_PAD src0_sel:DWORD src1_sel:WORD_0')
    lab('K2_ent_issue')
    e(f'v_add_u32 v{I4b}, 64, v{I4}')
    for u in range(4):
        e(f'v_add_u32 v{TB+u}, v{EO+u}, v{I4}')
        e(f'v_cmp_lt_u32 s[{48+4*u}:{49+4*u}], v{I4}, v{EC+u}')
        e(f'v_cmp_lt_u32 s[{50+4*u}:{51+4*u}], v{I4b}, v{EC+u}')
    so=['0','s44','s45','s46']
    for u in range(4):
        e(f's_mov_b64 exec, s[{48+4*u}:{49+4*u}]')
        e(f'buffer_load_dword v{EN+2*u}, v{TB+u}, s[20:23], {so[u]} offen')
    for u in range(4):
        e(f's_mov_b64 exec, s[{50+4*u}:{51+4*u}]')
        e(f'buffer_load_dword v{EN+2*u+1}, v{TB+u}, s[20:23], {so[u]} offen offset:64')
    e('s_mov_b64 exec, -1')
    e('s_cmp_eq_u32 s66, 0'); e('s_cbranch_scc1 K2_ent_proc')
    e('s_mov_b32 s66, 0')
    e('s_waitcnt vmcnt(8) lgkmcnt(0)')
    e('s_barrier')
    wfrag_reads(WF, WQ)
    e(f'v_and_b32 v{TMP+1}, 15, {L}'); e('s_lshr_b32 s3, s36, 2'); e('s_lshl_b32 s3, s3, 4'); e(f'v_add_u32 v{TMP+1}, s3, v{TMP+1}')
    e(f's_movk_i32 s3, {QS}'); e(f'v_mul_u32_u24 v{TMP+1}, s3, v{TMP+1}')
    e(f'v_lshrrev_b32 v{TMP+2}, 4, {L}'); e(f'v_lshl_add_u32 v{TMP+1}, v{TMP+2}, 3, v{TMP+1}')
    e('s_and_b32 s3, s36, 3'); e('s_lshl_b32 s3, s3, 5'); e(f's_add_u32 s3, s3, {QT}'); e(f'v_add_u32 v{TMP+1}, s3, v{TMP+1}')
    e('s_waitcnt lgkmcnt(0)')
    e(f'v_mfma_f32_16x16x32_bf16 v[{QD}:{QD+3}], v[{WF}:{WF+3}], v[{XQ}:{XQ+3}], 0')
    e(f'v_mfma_f32_16x16x32_bf16 v[{QD}:{QD+3}], v[{WF+4}:{WF+7}], v[{XQ+4}:{XQ+7}], v[{QD}:{QD+3}]')
    e('s_nop 7')
    e(f'v_cvt_pk_bf16_f32 v{QD+4}, v{QD}, v{QD+1}'); e(f'v_cvt_pk_bf16_f32 v{QD+5}, v{QD+2}, v{QD+3}')
    e(f'ds_write_b64 v{TMP+1}, v[{QD+4}:{QD+5}]')
    lab('K2_ent_proc')
    order=[(u,0) for u in range(4)]+[(u,1) for u in range(4)]
    for n_,(u,j) in enumerate(order):
        x=2*u+j
        e(f's_mov_b64 exec, s[{48+4*u+2*j}:{49+4*u+2*j}]')
        e(f's_waitcnt vmcnt({7-n_})')
        e(f'v_lshrrev_b32 v{TA+x}, 22, v{EN+x}')
        e(f'ds_add_rtn_u32 v{RK+x}, v{TA+x}, v{TWO} offset:{CNT}')
    e('s_movk_i32 s3, 254')
    for n_,(u,j) in enumerate(order):
        x=2*u+j
        e(f's_mov_b64 exec, s[{48+4*u+2*j}:{49+4*u+2*j}]')
        e(f's_waitcnt lgkmcnt(7)')
        e(f'v_min_u32 v{RK+x}, s3, v{RK+x}')
        e(f'v_add_u32_sdwa v{RK+x}, v{RK+x}, v{EN+x} dst_sel:DWORD dst_unused:UNUSED_PAD src0_sel:DWORD src1_sel:WORD_1')
        e(f'ds_write_b16 v{RK+x}, v{EN+x} offset:{LIST}')
    e('s_mov_b64 exec, -1')
    e(f'v_add_u32 v{I4}, 128, v{I4}')
    e(f'v_max_u32 v{I4b}, v{EC}, v{EC+1}'); e(f'v_max3_u32 v{I4b}, v{I4b}, v{EC+2}, v{EC+3}')
    e(f'v_cmp_lt_u32 vcc, v{I4}, v{I4b}')
    e('s_cbranch_vccnz K2_ent_issue')
    e('s_waitcnt lgkmcnt(0)')
    e('s_barrier')
    stamp(6)
    lab('K2_counts')
    e(f'v_lshlrev_b32 {r("Z")}, 2, {L}')
    e(f'v_add_u32 {r("Z")}, {CNT}, {r("Z")}')
    e(f'ds_read_b32 {r("T")}, {r("Z")}')
    e('s_movk_i32 s3, 254')
    e('s_add_u32 s69, s36, 16'); e('s_add_u32 s70, s36, 32'); e('s_add_u32 s71, s36, 48')
    e('s_waitcnt lgkmcnt(0)')
    e(f'v_cmp_lt_u32 vcc, s3, {r("T")}')
    e(f'v_add_u32 {r("T")}, 31, {r("T")}'); e(f'v_lshrrev_b32 {r("T")}, 5, {r("T")}')
    e('s_cbranch_vccnz K2_slow')
    e(f'v_readlane_b32 s42, {r("T")}, s36'); e(f'v_readlane_b32 s69, {r("T")}, s69'); e(f'v_readlane_b32 s70, {r("T")}, s70'); e(f'v_readlane_b32 s71, {r("T")}, s71')
    e('s_max_u32 s42, s42, s69'); e('s_max_u32 s42, s42, s70'); e('s_max_u32 s42, s42, s71')
    e('s_cmp_eq_u32 s42, 0'); e('s_cbranch_scc1 K2_loop_done')
    e('s_cmp_lg_u32 s71, 0'); e('s_cbranch_scc1 K2_m4')
    main_loop(3)
    lab('K2_m4')
    main_loop(4)
    lab('K2_loop_done')
    e('s_cmp_lg_u32 s67, 0'); e('s_cbranch_scc1 K2_slow_next')
    lab('K2_epi')
    stamp(7)
    wfrag_addr()
    wfrag_reads(WF, WV)
    e(f'v_lshrrev_b32 v{TMP+1}, 4, {L}'); e(f'v_mul_u32_u24 v{TMP+1}, 24, v{TMP+1}'); e(f'v_sub_u32 v{TMP+1}, {r("qa")}, v{TMP+1}')
    e('s_nop 4')
    for f in range(4):
        e(f'v_cvt_pk_bf16_f32 v{A1+2*f}, {r("O",4*f)}, {r("O",4*f+1)}'); e(f'v_cvt_pk_bf16_f32 v{A1+2*f+1}, {r("O",4*f+2)}, {r("O",4*f+3)}')
    e('s_mov_b32 s64, 0x000f000f'); e('s_mov_b32 s65, 0x000f000f')
    e('s_mov_b64 exec, s[64:65]')
    for f in range(4):
        e(f'ds_write_b64 v{TMP+1}, v[{A1+2*f}:{A1+2*f+1}] offset:{32*f}')
    e('s_mov_b64 exec, -1')
    e(f'v_and_b32 v{TMP+2}, 15, {L}'); e('s_lshr_b32 s3, s36, 2'); e('s_lshl_b32 s3, s3, 4'); e(f'v_add_u32 v{TMP+2}, s3, v{TMP+2}')
    e(f'v_lshlrev_b32 v{TMP+4}, 15, v{TMP+2}')
    e(f's_movk_i32 s3, {QS}'); e(f'v_mul_u32_u24 v{TMP+2}, s3, v{TMP+2}')
    e(f'v_lshrrev_b32 v{TMP+3}, 4, {L}'); e(f'v_lshl_add_u32 v{TMP+2}, v{TMP+3}, 4, v{TMP+2}'); e(f'v_add_u32 v{TMP+2}, {QT}, v{TMP+2}')
    e(f'v_lshl_add_u32 v{TMP+4}, v{TMP+3}, 3, v{TMP+4}')
    e('s_and_b32 s3, s36, 3'); e('s_lshl_b32 s3, s3, 5'); e('s_lshl_b32 s38, s2, 7'); e('s_add_u32 s3, s3, s38')
    e(f'v_add_u32 v{TMP+4}, s3, v{TMP+4}')
    e('s_waitcnt lgkmcnt(0)')
    e('s_barrier')
    e(f'ds_read_b128 v[{XQ}:{XQ+3}], v{TMP+2}'); e(f'ds_read_b128 v[{XQ+4}:{XQ+7}], v{TMP+2} offset:64')
    e('s_waitcnt lgkmcnt(1)')
    e(f'v_mfma_f32_16x16x32_bf16 v[{QD}:{QD+3}], v[{WF}:{WF+3}], v[{XQ}:{XQ+3}], 0')
    e('s_waitcnt lgkmcnt(0)')
    e(f'v_mfma_f32_16x16x32_bf16 v[{QD}:{QD+3}], v[{WF+4}:{WF+7}], v[{XQ+4}:{XQ+7}], v[{QD}:{QD+3}]')
    e('s_nop 7')
    e(f'v_cvt_pk_bf16_f32 v{QD+4}, v{QD}, v{QD+1}'); e(f'v_cvt_pk_bf16_f32 v{QD+5}, v{QD+2}, v{QD+3}')
    e(f'buffer_store_dwordx2 v[{QD+4}:{QD+5}], v{TMP+4}, s[32:35], 0 offen')
    if STAMP:
        stamp(8); e('s_waitcnt vmcnt(0)'); stamp(9); stamp_store(4,9,14,'K2')
    lab('K2_end')
    e('s_endpgm')
    lab('K2_slow')
    e('s_mov_b32 s67, 1'); e('s_mov_b32 s72, 0'); e('s_mov_b32 s73, 0')
    lab('K2_slow_next')
    e('s_lshl_b32 s3, s72, 10'); e('s_lshl_b32 s38, s2, 2'); e('s_add_u32 s3, s3, s38')
    e(f'v_mov_b32 {r("Z")}, s3')
    e(f'buffer_load_dword {r("T")}, {r("Z")}, s[24:27], 0 offen')
    e('s_waitcnt vmcnt(0)')
    e(f'v_readfirstlane_b32 s74, {r("T")}')
    e('s_lshr_b32 s75, s74, 16'); e('s_and_b32 s74, s74, 0xffff')
    e('s_cmp_lt_u32 s73, s75'); e('s_cbranch_scc1 K2_slow_go')
    e('s_add_u32 s72, s72, 1'); e('s_mov_b32 s73, 0')
    e(f's_cmp_lt_u32 s72, {NP}'); e('s_cbranch_scc1 K2_slow_next')
    e('s_branch K2_epi')
    lab('K2_slow_go')
    e('s_barrier')
    lds_init()
    e('s_waitcnt lgkmcnt(0)')
    e('s_barrier')
    e(f'v_lshlrev_b32 {r("Z")}, 2, v0'); e(f'v_add_u32 {r("T")}, s73, {r("Z")}')
    e(f's_mul_i32 s3, s72, {CHB}'); e('s_add_u32 s3, s3, s74')
    e(f'v_add_u32 {r("Pk")}, s3, {r("T")}')
    e(f'v_cmp_gt_u32 vcc, s75, {r("T")}'); e('s_mov_b64 s[64:65], vcc')
    e('v_cmp_gt_u32 vcc, 112, v0'); e('s_and_b64 exec, vcc, s[64:65]')
    e('s_cbranch_execz K2_slow_skip')
    e(f'buffer_load_dword v{EN}, {r("Pk")}, s[20:23], 0 offen')
    e(f'v_mov_b32 v{EN+1}, 2')
    e('s_waitcnt vmcnt(0)')
    e(f'v_lshrrev_b32 v{EN+2}, 22, v{EN}'); e(f'v_add_u32 v{EN+2}, {CNT}, v{EN+2}')
    e(f'ds_add_rtn_u32 v{EN+3}, v{EN+2}, v{EN+1}')
    e('s_waitcnt lgkmcnt(0)')
    e(f'v_add_u32_sdwa v{EN+3}, v{EN+3}, v{EN} dst_sel:DWORD dst_unused:UNUSED_PAD src0_sel:DWORD src1_sel:WORD_1')
    e(f'v_add_u32 v{EN+3}, {LIST}, v{EN+3}')
    e(f'ds_write_b16 v{EN+3}, v{EN}')
    lab('K2_slow_skip')
    e('s_mov_b64 exec, -1')
    e('s_add_u32 s73, s73, 448')
    e('s_waitcnt lgkmcnt(0)')
    e('s_barrier')
    e('s_branch K2_counts')

def kd(name, nv, ns):
    nva=(nv+3)//4*4
    return ['.p2align 6', f'.amdhsa_kernel {name}', f'  .amdhsa_next_free_vgpr {nv}', f'  .amdhsa_next_free_sgpr {ns}', f'  .amdhsa_accum_offset {nva}',
      '  .amdhsa_group_segment_fixed_size 0','  .amdhsa_kernarg_size 64','  .amdhsa_user_sgpr_count 2','  .amdhsa_user_sgpr_kernarg_segment_ptr 1','  .amdhsa_system_sgpr_workgroup_id_x 1','.end_amdhsa_kernel']

K='gather_scatter__kernel_systems_refs_featgraph__graph_kernel'
top = hdr + [f'; @launch kernel=bin_kernel grid=(256,1,1) block=(1024,1,1) lds={K1_LDS}', f'; @launch kernel={K} grid=(256,1,1) block=(1024,1,1) lds={K2_LDS}',
  '.amdgcn_target "amdgcn-amd-amdhsa--gfx950"','.text','.globl bin_kernel',f'.globl {K}']
k1(); k2()
tail=['.section .rodata,"a"']+kd('bin_kernel',48,102 if STAMP else 64)+kd(K,NV2,102 if STAMP else 80)
open(OUT,'w').write('\n'.join(top+o+tail)+'\n')
print('K2 vgprs',NV2,'lds',K2_LDS, file=sys.stderr)
```

```python
import sys, struct
args=sys.argv[1:]
STAMP = '--stamp' in args
def opt(name, dflt):
    for a in args:
        if a.startswith('--'+name+'='): return int(a.split('=')[1])
    return dflt
TIMEOUT=opt('timeout',4096)
CAPT=opt('cap',32)
PF=opt('pf',1)
SLEEP=opt('sleep',2)
OUT = [a for a in args if not a.startswith('--')][0]
HDR = open('gather_scatter__kernel_systems_refs_featgraph__graph.s.ref').read().split('\n')
hdr = [l for l in HDR if l.startswith(';') and '@launch' not in l and 'Override' not in l and 'grid=ceil' not in l]
K='gather_scatter__kernel_systems_refs_featgraph__graph_kernel'

N=12500; E=800000; EB=E*4; CHB=12512; NQ=782
XB=N*128
BSTR=32896
EPO=0x1000000
o=[]
def e(s): o.append('    '+s)
def lab(s): o.append(s+':')
def f2u(f): return struct.unpack('<I',struct.pack('<f',f))[0]
def srd(d, lo, hi, nrec):
    e(f's_mov_b32 s{d}, s{lo}'); e(f's_mov_b32 s{d+1}, s{hi}'); e(f's_mov_b32 s{d+2}, {nrec}'); e(f's_mov_b32 s{d+3}, 0x20000')
NST=10
def stamp(i):
    if STAMP: e(f's_memrealtime s[{80+2*i}:{81+2*i}]')
def stamp_store(wsreg):
    if not STAMP: return
    e('s_waitcnt lgkmcnt(0)')
    e('v_cmp_eq_u32 vcc, 0, v0')
    e('s_and_saveexec_b64 s[78:79], vcc')
    e(f's_cbranch_execz L_nostamp')
    e(f's_add_u32 s76, s{wsreg}, 0x8000000'); e(f's_addc_u32 s77, s{wsreg+1}, 0')
    e('s_lshl_b32 s75, s2, 7')
    e('v_mov_b32 v1, s75')
    for i in range(NST):
        e(f'v_mov_b32 v2, s{80+2*i}'); e(f'v_mov_b32 v3, s{81+2*i}')
        e(f'global_store_dwordx2 v1, v[2:3], s[76:77] offset:{8*i}')
        e('s_nop 1')
    lab('L_nostamp')
    e('s_mov_b64 exec, -1')

CNT=0; LIST=256; QS=144; QT=LIST+12544; WV=QT+64*QS; PC=WV+8192; STG=PC+1024; LDS=STG+100352
IMG=STG; WQ=STG+32768; XR=STG+40960
assert STG%128==0 and QT%16==0 and WV%16==0
V={}
_n=[1]
def va(name,cnt=1,al=1):
    while _n[0]%al: _n[0]+=1
    V[name]=_n[0]; _n[0]+=cnt
    return V[name]
va('lane'); va('cA'); va('cB'); va('ia'); va('a10'); va('a11'); va('a2',4); va('m',4); va('cs'); va('idx',4); va('da',2); va('qa')
va('O',16,4); va('D',4,4); va('Bq',32,4); va('A1',24,4); va('XT01',16,4); va('XT2',8,2); va('Z'); va('T'); va('Pk')
NV=_n[0]
def r(name,i=0,n=1):
    b=V[name]+i
    return f'v{b}' if n==1 else f'v[{b}:{b+n-1}]'
A1=V['A1']; XT3=A1; P01=A1+8; P2=A1+12; P3=A1+14
X0=V['XT01']
DQ=X0; SQ=X0+4; AD=X0+8; RK=X0+12
PA=A1; PBs=A1+4; CA_=A1+8; SO=A1+10
GA=A1; GB=A1+4
XQ=V['Bq']; WF=V['Bq']+8; QD=V['Bq']+16
EPR=V['Bq']+24
T16=V['Bq']+28; J4=V['Bq']+29; CNA=V['Bq']+30; CNB=V['Bq']+31
TMP=V['XT2']
GA=A1+8+4; GB=A1+16
L=r('lane')
M_=0xC0FFC000; M0_=0xC003C000

def wfrag_addr(base):
    e(f'v_lshrrev_b32 v{TMP}, 4, {L}'); e(f'v_lshlrev_b32 v{TMP}, 10, v{TMP}')
    e(f'v_bfe_u32 v{TMP+1}, {L}, 2, 2'); e(f'v_lshl_add_u32 v{TMP}, v{TMP+1}, 7, v{TMP}')
    e(f'v_and_b32 v{TMP+1}, 3, {L}'); e(f'v_lshl_add_u32 v{TMP}, v{TMP+1}, 3, v{TMP}')
    e('s_and_b32 s3, s36, 3'); e('s_lshl_b32 s3, s3, 5'); e(f's_add_u32 s3, s3, {base}')
    e(f'v_add_u32 v{TMP}, s3, v{TMP}')
def wfrag_reads(dst):
    for ks in range(2):
        for jh in range(2):
            e(f'ds_read_b64_tr_b16 v[{dst+4*ks+2*jh}:{dst+4*ks+2*jh+1}], v{TMP} offset:{ks*4096+jh*512}')

_u=[0]
def dma_issue(nc):
    _u[0]+=1; u=_u[0]
    for k in range(nc):
        e(f's_cmp_lt_u32 s43, s{45+k}'); e(f's_cbranch_scc0 D{u}_{k}')
        e(f'v_mad_u32_u16 {r("da",0)}, {r("idx",k)}, s40, {r("cA")} op_sel:[0,0,0,0]')
        e(f's_add_u32 m0, s37, {k*2048}')
        e(f's_cmp_lt_u32 s44, s{45+k}')
        e(f'buffer_load_dwordx4 {r("da",0)}, s[16:19], 0 offen lds')
        e(f's_cbranch_scc0 D{u}_{k}')
        e(f'v_mad_u32_u16 {r("da",1)}, {r("idx",k)}, s40, {r("cB")} op_sel:[1,0,0,0]')
        e(f's_add_u32 m0, s37, {k*2048+1024}')
        e('s_nop 0')
        e(f'buffer_load_dwordx4 {r("da",1)}, s[16:19], 0 offen lds')
        lab(f'D{u}_{k}')
def idx_reads(nc):
    for k in range(nc):
        e(f'ds_read_u16_d16 {r("idx",k)}, {r("ia")} offset:{k*4096}')
        e(f'ds_read_u16_d16_hi {r("idx",k)}, {r("ia")} offset:{k*4096+16}')

def main_loop(nc):
    t=f'M{nc}'
    e('s_lshl_b32 s3, s42, 5')
    e('s_add_u32 s3, s3, s41')
    e(f'v_lshrrev_b32 {r("ia")}, 3, {L}')
    e(f'v_lshl_add_u32 {r("ia")}, {r("ia")}, 1, s3')
    idx_reads(nc)
    for i in range(8*nc): e(f'v_mov_b32 {r("Bq",i)}, 0')
    e('s_lshl_b32 s43, s42, 1'); e('s_sub_u32 s44, s43, 1'); e('s_sub_u32 s43, s43, 2')
    e('s_waitcnt lgkmcnt(0)')
    dma_issue(nc)
    for k in range(nc):
        e(f's_lshl_b64 exec, s[6:7], {k}')
        e(f'ds_read_b128 {r("Bq",8*k,4)}, {r("qa")}')
        e(f'ds_read_b128 {r("Bq",8*k+4,4)}, {r("qa")} offset:16')
    e('s_mov_b64 exec, -1')
    lab(f'{t}_loop')
    e(f'v_subrev_u32 {r("ia")}, 32, {r("ia")}')
    e('s_sub_u32 s42, s42, 1'); e('s_sub_u32 s43, s43, 2'); e('s_sub_u32 s44, s44, 2')
    idx_reads(nc)
    e('s_waitcnt vmcnt(0)')
    for k in range(3):
        e(f'ds_read_b128 {r("A1",8*k,4)}, {r("a10")} offset:{k*2048}')
        e(f'ds_read_b128 {r("A1",8*k+4,4)}, {r("a11")} offset:{k*2048}')
    tr=[]
    for k in range(3):
        for f in range(4):
            d = V['XT01']+4*f+2*k if k<2 else V['XT2']+2*f
            tr.append(f'ds_read_b64_tr_b16 v[{d}:{d+1}], {r("a2",f)} offset:{k*2048}')
    for x in tr[:6]: e(x)
    e('s_waitcnt lgkmcnt(10)')
    e(f'v_mfma_f32_16x16x32_bf16 {r("D",0,4)}, {r("A1",0,4)}, {r("Bq",0,4)}, 0')
    e(f'v_mfma_f32_16x16x32_bf16 {r("D",0,4)}, {r("A1",4,4)}, {r("Bq",4,4)}, {r("D",0,4)}')
    for x in tr[6:]: e(x)
    if nc==4:
        e(f'ds_read_b128 {r("A1",0,4)}, {r("a10")} offset:{3*2048}')
        e(f'ds_read_b128 {r("A1",4,4)}, {r("a11")} offset:{3*2048}')
        e('s_waitcnt lgkmcnt(14)')
    else:
        e('s_waitcnt lgkmcnt(12)')
    for k in (1,2):
        e(f'v_mfma_f32_16x16x32_bf16 {r("D",0,4)}, {r("A1",8*k,4)}, {r("Bq",8*k,4)}, {r("D",0,4)}')
        e(f'v_mfma_f32_16x16x32_bf16 {r("D",0,4)}, {r("A1",8*k+4,4)}, {r("Bq",8*k+4,4)}, {r("D",0,4)}')
    if nc==4:
        e('s_waitcnt lgkmcnt(0)')
        e(f'v_mfma_f32_16x16x32_bf16 {r("D",0,4)}, {r("A1",0,4)}, {r("Bq",24,4)}, {r("D",0,4)}')
        e(f'v_mfma_f32_16x16x32_bf16 {r("D",0,4)}, {r("A1",4,4)}, {r("Bq",28,4)}, {r("D",0,4)}')
        for f in range(4):
            e(f'ds_read_b64_tr_b16 v[{XT3+2*f}:{XT3+2*f+1}], {r("a2",f)} offset:{3*2048}')
    e('s_waitcnt lgkmcnt(0)')
    e('s_cmp_eq_u32 s42, 0')
    e(f's_cbranch_scc1 {t}_nodma')
    dma_issue(nc)
    lab(f'{t}_nodma')
    e('s_nop 7')
    e(f'v_mul_f32 {r("Z")}, {r("D",0)}, {r("cs")}')
    for i in (1,2,3):
        e(f'v_mul_f32_dpp {r("Z")}, {r("D",i)}, {r("cs")} row_shr:{4*i} row_mask:0xf bank_mask:{1<<i:#x}')
    e(f'v_exp_f32 {r("Z")}, {r("Z")}')
    e('s_nop 0')
    e(f'v_add_f32 {r("Z")}, 1.0, {r("Z")}')
    e(f'v_rcp_f32 {r("Z")}, {r("Z")}')
    e('s_nop 1')
    e(f'v_mov_b32_dpp {r("T")}, {r("Z")} row_shl:4 row_mask:0xf bank_mask:0xf bound_ctrl:0')
    e(f'v_cvt_pk_bf16_f32 {r("Pk")}, {r("Z")}, {r("T")}')
    dsts=[P01,P01+2,P2,P3]
    for k in range(nc):
        e(f'v_and_b32 v{dsts[k]}, {r("Pk")}, {r("m",k)}')
    for k in range(nc):
        e(f'v_and_b32_dpp v{dsts[k]+1}, {r("Pk")}, {r("m",k)} row_shl:8 row_mask:0xf bank_mask:0xf bound_ctrl:0')
    e('s_nop 1')
    for f in range(4):
        e(f'v_mfma_f32_16x16x32_bf16 {r("O",4*f,4)}, {r("XT01",4*f,4)}, v[{P01}:{P01+3}], {r("O",4*f,4)}')
    for f in range(4):
        e(f'v_mfma_f32_16x16x16_bf16 {r("O",4*f,4)}, {r("XT2",2*f,2)}, v[{P2}:{P2+1}], {r("O",4*f,4)}')
    if nc==4:
        for f in range(4):
            e(f'v_mfma_f32_16x16x16_bf16 {r("O",4*f,4)}, v[{XT3+2*f}:{XT3+2*f+1}], v[{P3}:{P3+1}], {r("O",4*f,4)}')
    e('s_cmp_lg_u32 s42, 0')
    e(f's_cbranch_scc1 {t}_loop')
    e('s_branch L_loop_done')

def list_init(t):
    for i in range(4): e(f'v_mov_b32 v{t+i}, -1')
    e(f'v_lshlrev_b32 v{t+4}, 4, v0')
    e('v_cmp_gt_u32 vcc, 784, v0')
    e('s_mov_b64 exec, vcc')
    e(f'ds_write_b128 v{t+4}, v[{t}:{t+3}] offset:{LIST}')
    e('s_mov_b64 exec, -1')
    e(f'v_lshlrev_b32 v{t+5}, 2, {L}')
    e(f'v_mov_b32 v{t+6}, 0')
    e('v_cmp_le_u32 vcc, 960, v0')
    e('s_mov_b64 exec, vcc')
    e(f'ds_write_b32 v{t+5}, v{t+6} offset:{CNT}')
    e('s_mov_b64 exec, -1')
def stg_zero(t):
    for i in range(4): e(f'v_mov_b32 v{t+i}, 0')
    e(f'v_lshl_add_u32 v{t+4}, {L}, 4, s37')
    for i in range(6): e(f'ds_write_b128 v{t+4}, v[{t}:{t+3}] offset:{1024*i}')
    _u[0]+=1; u=_u[0]
    e('s_cmp_lg_u32 s36, 0'); e(f's_cbranch_scc1 Z{u}')
    for i in (6,7): e(f'ds_write_b128 v{t+4}, v[{t}:{t+3}] offset:{1024*i}')
    lab(f'Z{u}')

def insert_entries(regs, masks, tr_, two):
    n=len(regs)
    for i,x in enumerate(regs):
        e(f's_mov_b64 exec, {masks[i]}')
        e(f'v_lshrrev_b32 v{tr_+i}, 22, v{x}')
        e(f'ds_add_rtn_u32 v{tr_+i}, v{tr_+i}, v{two} offset:{CNT}')
    e('s_movk_i32 s3, 254')
    for i,x in enumerate(regs):
        e(f's_mov_b64 exec, {masks[i]}')
        e(f's_waitcnt lgkmcnt({n-1})')
        e(f'v_min_u32 v{tr_+i}, s3, v{tr_+i}')
        e(f'v_add_u32_sdwa v{tr_+i}, v{tr_+i}, v{x} dst_sel:DWORD dst_unused:UNUSED_PAD src0_sel:DWORD src1_sel:WORD_1')
        e(f'ds_write_b16 v{tr_+i}, v{x} offset:{LIST}')
    e('s_mov_b64 exec, -1')

def scan_quads(off, vmask):
    e(f's_mov_b64 exec, {vmask}')
    e(f'buffer_load_dwordx4 v[{DQ}:{DQ+3}], v{off}, s[20:23], 0 offen')
    e(f'buffer_load_dwordx4 v[{SQ}:{SQ+3}], v{off}, s[24:27], 0 offen')
    e(f'v_mov_b32 v{RK}, 2')
    e('s_mov_b32 s3, 0x050c0100')
    e('s_waitcnt vmcnt(0)')
    ms=['s[42:43]','s[44:45]','s[46:47]','s[48:49]']
    for i in range(4):
        e(f'v_and_b32 v{AD+i}, 0xff, v{DQ+i}')
        e(f'v_cmp_eq_u32 {ms[i]}, s2, v{AD+i}')
        e(f'v_perm_b32 v{SQ+i}, v{DQ+i}, v{SQ+i}, s3')
    insert_entries([SQ+i for i in range(4)], ms, AD, RK)

def kernel():
    o.append('.p2align 8'); o.append(f'.type {K},@function'); lab(K)
    e('s_cmp_ge_u32 s2, 256'); e('s_cbranch_scc1 L_end')
    stamp(0)
    e('s_load_dwordx4 s[4:7], s[0:1], 0')
    e('s_load_dwordx2 s[38:39], s[0:1], 16')
    e('s_load_dwordx2 s[14:15], s[0:1], 56')
    e('s_load_dwordx4 s[8:11], s[0:1], 24')
    e('s_load_dwordx2 s[12:13], s[0:1], 40')
    e(f'v_lshrrev_b32 v{TMP}, 6, v0')
    e(f'v_lshlrev_b32 v{T16}, 4, v0')
    e(f'v_readfirstlane_b32 s36, v{TMP}')
    e(f'v_and_b32 {L}, 63, v0')
    e(f's_mul_i32 s42, s2, {CHB}')
    e(f'v_add_u32 v{TMP+1}, s42, v{T16}')
    e(f'v_mov_b32 v{TMP+2}, 0')
    e(f's_mov_b32 s22, {EB}'); e('s_mov_b32 s23, 0x20000'); e(f's_mov_b32 s26, {EB}'); e('s_mov_b32 s27, 0x20000')
    e(f's_mov_b32 s70, 16'); e('s_mov_b32 s71, 0x20000')
    e(f'v_cmp_gt_u32 vcc, {NQ}, v0'); e('s_mov_b64 s[62:63], vcc')
    e(f'v_cmp_gt_u32 vcc, {EB}, v{TMP+1}'); e('s_and_b64 s[62:63], s[62:63], vcc')
    e('s_waitcnt lgkmcnt(0)')
    stamp(1)
    e('s_mov_b32 s20, s38'); e('s_mov_b32 s21, s39'); e('s_mov_b32 s24, s6'); e('s_mov_b32 s25, s7')
    e('s_mov_b64 exec, s[62:63]')
    e(f'buffer_load_dwordx4 v[{DQ}:{DQ+3}], v{TMP+1}, s[20:23], 0 offen')
    e(f'buffer_load_dwordx4 v[{SQ}:{SQ+3}], v{TMP+1}, s[24:27], 0 offen')
    e('s_mov_b64 exec, -1')
    e(f's_add_u32 s68, s14, {EPO}'); e('s_addc_u32 s69, s15, 0')
    e(f'buffer_load_dwordx4 v[{EPR}:{EPR+3}], v{TMP+2}, s[68:71], 0 offen sc1')
    e(f'v_lshlrev_b32 v{TMP+4}, 4, {L}')
    e('s_and_b32 s39, s36, 7'); e('s_lshl_b32 s39, s39, 10')
    e('s_cmp_lt_u32 s36, 8')
    e('s_cselect_b32 s28, s8, s10'); e('s_cselect_b32 s29, s9, s11'); e('s_mov_b32 s30, 8192'); e('s_mov_b32 s31, 0x20000')
    e(f's_cselect_b32 s3, {WQ-WV}, 0')
    e(f's_add_u32 s3, s3, {WV}')
    e('s_add_u32 m0, s3, s39')
    srd(16,4,5,XB)
    e(f'buffer_load_dwordx4 v{TMP+4}, s[28:31], s39 offen lds')
    e(f'v_lshrrev_b32 v{TMP}, 3, v0')
    e(f'v_lshlrev_b32 v{TMP}, 15, v{TMP}')
    e(f'v_lshrrev_b32 v{TMP+3}, 3, {L}'); e(f'v_xor_b32 v{TMP+3}, v{TMP+3}, {L}'); e(f'v_and_b32 v{TMP+3}, 7, v{TMP+3}')
    e(f'v_lshl_add_u32 v{TMP}, v{TMP+3}, 4, v{TMP}')
    e('s_lshl_b32 s38, s2, 7')
    e('s_lshl_b32 s3, s36, 10'); e(f's_add_u32 m0, s3, {XR}')
    e('s_nop 0')
    e(f'buffer_load_dwordx4 v{TMP}, s[16:19], s38 offen lds')
    NPF=4 if PF else 0
    if PF:
        e('s_lshr_b32 s3, s2, 3'); e('s_mul_i32 s3, s3, 50000')
        e('s_add_u32 s96, s4, s3'); e('s_addc_u32 s97, s5, 0'); e('s_mov_b32 s98, 50000'); e('s_mov_b32 s99, 0x20000')
        e('s_movk_i32 s43, 0x4000'); e('s_mov_b32 s44, 0x8000'); e('s_mov_b32 s45, 0xc000')
        for so in ('0','s43','s44','s45'):
            e(f'buffer_load_dwordx4 {r("O",0,4)}, v{T16}, s[96:99], {so} offen')
    for i in range(4): e(f'v_mov_b32 v{A1+i}, 0x3f000000')
    e(f'ds_write_b128 v{T16}, v[{A1}:{A1+3}] offset:{IMG}')
    e(f'ds_write_b128 v{T16}, v[{A1}:{A1+3}] offset:{IMG+16384}')
    e(f'v_lshlrev_b32 v{A1+4}, 2, v0'); e(f'v_mov_b32 v{A1+5}, 0')
    e('s_cmp_lt_u32 s36, 4'); e('s_cbranch_scc0 L_nopc')
    e(f'ds_write_b32 v{A1+4}, v{A1+5} offset:{PC}')
    lab('L_nopc')
    list_init(A1+8)
    e(f'v_mov_b32 v{A1+6}, 4')
    e('s_mov_b32 s49, 0x050c0100')
    e('s_movk_i32 s48, 124')
    e('s_waitcnt lgkmcnt(0)')
    e('s_barrier')
    srd(32,12,13,XB)
    e('s_add_u32 s3, s36, 15'); e('s_and_b32 s3, s3, 15'); e('s_mul_i32 s37, s3, 6144'); e(f's_add_u32 s37, s37, {STG}')
    e('s_movk_i32 s40, 128')
    e('s_lshl_b32 s41, s36, 8'); e(f's_add_u32 s41, s41, {LIST-32}')
    e('s_mov_b32 s6, 0x00010001'); e('s_mov_b32 s7, 0x00010001')
    t0,t1,t2=TMP,TMP+1,TMP+2
    e(f'v_lshrrev_b32 v{t1}, 4, {L}')
    e(f'v_lshrrev_b32 v{t0}, 3, {L}'); e(f'v_and_b32 v{t0}, 6, v{t0}'); e(f'v_and_b32 v{t2}, 7, {L}')
    e(f'v_lshlrev_b32 v{J4}, 2, v{t2}')
    e(f'v_xor_b32 v{t0}, v{t0}, v{t2}'); e(f'v_lshlrev_b32 {r("cA")}, 4, v{t0}'); e(f'v_xor_b32 {r("cB")}, 16, {r("cA")}')
    e(f'v_and_b32 v{t0}, 6, {L}'); e(f'v_bfe_u32 v{t2}, {L}, 3, 1'); e(f'v_or_b32 v{t0}, v{t0}, v{t2}')
    e(f'v_lshlrev_b32 v{t2}, 1, v{t1}'); e(f'v_xor_b32 v{t0}, v{t0}, v{t2}'); e(f'v_lshlrev_b32 v{t0}, 4, v{t0}')
    e(f'v_and_b32 v{t2}, 15, {L}'); e(f'v_lshl_add_u32 v{t0}, v{t2}, 7, v{t0}')
    e(f'v_add_u32 {r("a10")}, s37, v{t0}'); e(f'v_xor_b32 {r("a11")}, 16, {r("a10")}')
    for k in range(4):
        e(f'v_cmp_eq_u32 s[64:65], {k}, v{t2}'); e('s_nop 1'); e(f'v_cndmask_b32 {r("m",k)}, 0, -1, s[64:65]')
    e(f'v_lshlrev_b32 v{t0}, 4, v{t2}'); e(f'v_add_u32 v{t0}, s36, v{t0}'); e(f's_movk_i32 s3, {QS}'); e(f'v_mul_u32_u24 v{t0}, s3, v{t0}')
    e(f'v_lshl_add_u32 v{t0}, v{t1}, 5, v{t0}'); e(f'v_add_u32 {r("qa")}, {QT}, v{t0}')
    e(f'v_lshrrev_b32 v{t0}, 2, {L}')
    e(f'v_and_b32 v{t2}, 6, v{t0}'); e(f'v_lshrrev_b32 {r("Z")}, 3, v{t0}'); e(f'v_or_b32 v{t2}, v{t2}, {r("Z")}')
    e(f'v_bfe_u32 {r("Z")}, {L}, 1, 1'); e(f'v_xor_b32 v{t2}, v{t2}, {r("Z")}'); e(f'v_lshlrev_b32 v{t2}, 4, v{t2}')
    e(f'v_lshl_add_u32 v{t2}, v{t0}, 7, v{t2}')
    e(f'v_and_b32 {r("Z")}, 1, {L}'); e(f'v_lshl_add_u32 v{t2}, {r("Z")}, 3, v{t2}')
    e(f'v_add_u32 {r("a2",0)}, s37, v{t2}')
    for f in (1,2,3): e(f'v_xor_b32 {r("a2",f)}, {32*f}, {r("a2",0)}')
    e(f'v_mov_b32 {r("cs")}, {f2u(-0.125*1.4426950408889634):#x}')
    e(f'v_lshrrev_b32 v{SO+1}, 3, v0'); e(f's_mov_b32 s3, {BSTR}'); e(f'v_mul_u32_u24 v{SO}, s3, v{SO+1}')
    e(f'v_lshl_add_u32 v{SO}, v{J4}, 2, v{SO}')
    e(f'v_lshlrev_b32 v{SO+1}, 2, v{SO+1}')
    e('s_mov_b64 exec, s[62:63]')
    e(f's_waitcnt vmcnt({4+NPF})')
    stamp(2)
    for i in range(4):
        e(f'v_lshlrev_b32_sdwa v{AD+i}, 2, v{DQ+i} dst_sel:DWORD dst_unused:UNUSED_PAD src0_sel:DWORD src1_sel:BYTE_0')
    for i in range(4):
        e(f'ds_add_rtn_u32 v{RK+i}, v{AD+i}, v{A1+6} offset:{PC}')
    e(f's_waitcnt vmcnt({3+NPF})')
    for i in range(4):
        e(f'v_perm_b32 v{SQ+i}, v{DQ+i}, v{SQ+i}, s49')
    for i in range(4):
        e(f's_waitcnt lgkmcnt({3})')
        e(f'v_min_u32 v{RK+i}, s48, v{RK+i}')
        e(f'v_lshl_add_u32 v{RK+i}, v{AD+i}, 5, v{RK+i}')
        e(f'ds_write_b32 v{RK+i}, v{SQ+i} offset:{IMG}')
    e('s_mov_b64 exec, -1')
    e(f's_waitcnt vmcnt({2+NPF})')
    for i in range(4): e(f'v_readfirstlane_b32 s{50+i}, v{EPR+i}')
    e('s_bfe_u32 s42, s51, 0xa000e'); e('s_bfe_u32 s43, s52, 0xa000e'); e('s_bfe_u32 s44, s53, 0xa000e')
    e('s_lshl_b32 s43, s43, 10'); e('s_lshl_b32 s44, s44, 20'); e('s_or_b32 s42, s42, s43'); e('s_or_b32 s42, s42, s44')
    e('s_add_u32 s42, s42, 1')
    e(f's_and_b32 s50, s50, {M0_:#x}')
    for i,sh in ((1,0),(2,10),(3,20)):
        e(f's_and_b32 s{50+i}, s{50+i}, 0xc0000000')
        e(f's_bfe_u32 s43, s42, {0xa0000|sh:#x}'); e('s_lshl_b32 s43, s43, 14'); e(f's_or_b32 s{50+i}, s{50+i}, s43')
    e('s_lshl_b32 s3, s2, 7'); e('s_add_u32 s28, s14, s3'); e('s_addc_u32 s29, s15, 0'); e(f's_mov_b32 s30, {256*BSTR}'); e('s_mov_b32 s31, 0x20000')
    e(f's_mul_i32 s3, s2, {BSTR}'); e('s_add_u32 s68, s14, s3'); e('s_addc_u32 s69, s15, 0'); e('s_mov_b32 s70, 32768'); e('s_mov_b32 s71, 0x20000')
    e(f's_mov_b32 s38, {128*BSTR}'); e('s_movk_i32 s39, 0x4000'); e('s_movk_i32 s48, 252')
    e(f's_waitcnt vmcnt({NPF}) lgkmcnt(0)')
    e('s_barrier')
    stamp(3)
    e(f'ds_read_b32 v{CA_}, v{SO+1} offset:{PC}')
    e(f'ds_read_b32 v{CA_+1}, v{SO+1} offset:{PC+512}')
    e(f'ds_read_b128 v[{PA}:{PA+3}], v{T16} offset:{IMG}')
    e(f'ds_read_b128 v[{PBs}:{PBs+3}], v{T16} offset:{IMG+16384}')
    e(f'v_lshlrev_b32 v{TMP}, 2, v{J4}')
    e(f'v_cmp_eq_u32 s[64:65], 0, v{J4}')
    for s_,(P,C,so) in enumerate(((PA,CA_,'0'),(PBs,CA_+1,'s38'))):
        e(f's_waitcnt lgkmcnt({3-s_})')
        e(f'v_cmp_lt_u32 vcc, v{TMP}, v{C}')
        e(f'v_min_u32 v{C}, s48, v{C}')
        e(f's_or_b64 s[{54+2*s_}:{55+2*s_}], vcc, s[64:65]')
        e(f'v_lshlrev_b32 v{C}, 16, v{C}')
        e(f'v_or_b32 v{C}, s50, v{C}')
    for s_,(P,C,so) in enumerate(((PA,CA_,'0'),(PBs,CA_+1,'s38'))):
        e(f's_waitcnt lgkmcnt({1-s_})')
        e(f'v_xor_b32 v{P}, v{C}, v{P}')
        for i in (1,2,3): e(f'v_xor_b32 v{P+i}, s{50+i}, v{P+i}')
        e(f's_mov_b64 exec, s[{54+2*s_}:{55+2*s_}]')
        e(f'buffer_store_dwordx4 v[{P}:{P+3}], v{SO}, s[28:31], {so} offen sc1')
        e('s_mov_b64 exec, -1')
    stamp(4)
    wfrag_addr(WQ)
    wfrag_reads(WF)
    e(f'v_and_b32 v{TMP+1}, 15, {L}'); e('s_lshr_b32 s3, s36, 2'); e('s_lshl_b32 s3, s3, 4'); e(f'v_add_u32 v{TMP+1}, s3, v{TMP+1}')
    e(f'v_lshrrev_b32 v{TMP+2}, 4, {L}')
    e(f'v_and_b32 v{TMP+3}, 7, {L}'); e(f'v_xor_b32 v{TMP+3}, v{TMP+3}, v{TMP+2}'); e(f'v_lshlrev_b32 v{TMP+3}, 4, v{TMP+3}')
    e(f'v_lshl_add_u32 v{TMP+3}, v{TMP+1}, 7, v{TMP+3}'); e(f'v_add_u32 v{TMP+3}, {XR}, v{TMP+3}'); e(f'v_xor_b32 v{TMP+4}, 64, v{TMP+3}')
    e(f'ds_read_b128 v[{XQ}:{XQ+3}], v{TMP+3}'); e(f'ds_read_b128 v[{XQ+4}:{XQ+7}], v{TMP+4}')
    e(f's_movk_i32 s3, {QS}'); e(f'v_mul_u32_u24 v{TMP+1}, s3, v{TMP+1}')
    e(f'v_lshl_add_u32 v{TMP+1}, v{TMP+2}, 3, v{TMP+1}')
    e('s_and_b32 s3, s36, 3'); e('s_lshl_b32 s3, s3, 5'); e(f's_add_u32 s3, s3, {QT}'); e(f'v_add_u32 v{TMP+1}, s3, v{TMP+1}')
    e(f'buffer_load_dwordx4 v[{GA}:{GA+3}], v{T16}, s[68:71], 0 offen sc1')
    e(f'buffer_load_dwordx4 v[{GB}:{GB+3}], v{T16}, s[68:71], s39 offen sc1')
    e('s_waitcnt lgkmcnt(0)')
    e(f'v_mfma_f32_16x16x32_bf16 v[{QD}:{QD+3}], v[{WF}:{WF+3}], v[{XQ}:{XQ+3}], 0')
    e(f'v_mfma_f32_16x16x32_bf16 v[{QD}:{QD+3}], v[{WF+4}:{WF+7}], v[{XQ+4}:{XQ+7}], v[{QD}:{QD+3}]')
    e('s_mov_b64 s[54:55], -1'); e('s_mov_b64 s[56:57], -1'); e('s_mov_b64 s[58:59], 0'); e('s_mov_b64 s[60:61], 0')
    e(f'v_mov_b32 v{CNA}, 0xff'); e(f'v_mov_b32 v{CNB}, 0xff')
    e(f's_movk_i32 s66, {TIMEOUT}'); e('s_mov_b32 s67, 0')
    e(f's_mov_b32 s46, {M_:#x}'); e(f's_mov_b32 s47, {M0_:#x}')
    e('s_nop 1')
    e(f'v_cvt_pk_bf16_f32 v{QD+4}, v{QD}, v{QD+1}'); e(f'v_cvt_pk_bf16_f32 v{QD+5}, v{QD+2}, v{QD+3}')
    e(f'ds_write_b64 v{TMP+1}, v[{QD+4}:{QD+5}]')
    e('s_waitcnt lgkmcnt(0)')
    e('s_barrier')
    stg_zero(X0)
    lab('L_poll')
    CB=[X0+8,X0+9]; TT=X0+10
    for s_,(G,CN) in enumerate(((GA,CNA),(GB,CNB))):
        p=f's[{54+2*s_}:{55+2*s_}]'; g=f's[{58+2*s_}:{59+2*s_}]'
        e(f's_mov_b64 exec, {p}')
        e(f's_waitcnt vmcnt({1-s_})')
        for i in range(4): e(f'v_xor_b32 v{G+i}, s{50+i}, v{G+i}')
        e(f'v_or3_b32 v{TT}, v{G+1}, v{G+2}, v{G+3}')
        e(f'v_and_b32 v{TT}, s46, v{TT}')
        e(f'v_and_or_b32 v{TT}, v{G}, s47, v{TT}')
        e(f'v_cmp_eq_u32 s[64:65], 0, v{TT}')
        e('s_mov_b64 exec, s[64:65]')
        e(f'v_bfe_u32 v{CN}, v{G}, 18, 6')
        e('s_mov_b64 exec, -1')
        e(f's_or_b64 {g}, {g}, s[64:65]')
        e(f's_andn2_b64 {p}, {p}, s[64:65]')
        e(f'v_mov_b32_dpp v{CB[s_]}, v{CN} quad_perm:[0,0,0,0] row_mask:0xf bank_mask:0xf')
        e('s_nop 1')
        e(f'v_mov_b32_dpp v{CB[s_]}, v{CB[s_]} row_shr:4 row_mask:0xf bank_mask:0xa')
        e(f'v_cmp_lt_u32 vcc, v{J4}, v{CB[s_]}')
        e(f's_and_b64 {p}, {p}, vcc')
    e('s_or_b64 s[64:65], s[54:55], s[56:57]')
    e('s_cbranch_scc0 L_poll_done')
    e('s_sub_u32 s66, s66, 1')
    e('s_cbranch_scc1 L_poll_done')
    if SLEEP: e(f's_sleep {SLEEP}')
    e('s_mov_b64 exec, s[54:55]')
    e(f'buffer_load_dwordx4 v[{GA}:{GA+3}], v{T16}, s[68:71], 0 offen sc1')
    e('s_mov_b64 exec, s[56:57]')
    e(f'buffer_load_dwordx4 v[{GB}:{GB+3}], v{T16}, s[68:71], s39 offen sc1')
    e('s_branch L_poll')
    lab('L_poll_done')
    stamp(5)
    for s_ in range(2):
        p=54+2*s_; g=58+2*s_
        e(f's_lshr_b64 s[64:65], s[{p}:{p+1}], 1'); e(f's_or_b64 s[{p}:{p+1}], s[{p}:{p+1}], s[64:65]')
        e(f's_lshr_b64 s[64:65], s[{p}:{p+1}], 2'); e(f's_or_b64 s[{p}:{p+1}], s[{p}:{p+1}], s[64:65]')
        e(f's_lshr_b64 s[64:65], s[{p}:{p+1}], 4'); e(f's_or_b64 s[{p}:{p+1}], s[{p}:{p+1}], s[64:65]')
        e(f's_and_b32 s{p}, s{p}, 0x01010101'); e(f's_and_b32 s{p+1}, s{p+1}, 0x01010101')
        e(f's_mul_i32 s{p}, s{p}, 0xff'); e(f's_mul_i32 s{p+1}, s{p+1}, 0xff')
        e(f'v_cmp_lt_u32 vcc, {CAPT}, v{CB[s_]}')
        e(f's_or_b64 s[{p}:{p+1}], s[{p}:{p+1}], vcc')
        e(f's_andn2_b64 s[{g}:{g+1}], s[{g}:{g+1}], s[{p}:{p+1}]')
    e(f'v_and_b32 v{GA}, 0x3f003fff, v{GA}'); e(f'v_and_b32 v{GB}, 0x3f003fff, v{GB}')
    e(f'v_mov_b32 v{X0+15}, 2')
    e('s_mov_b32 s3, 0x3f000000')
    ms=[f's[{42+2*i}:{43+2*i}]' for i in range(4)]+[f's[{72+2*i}:{73+2*i}]' for i in range(2)]+['s[62:63]','s[64:65]']
    regs=[GA+i for i in range(4)]+[GB+i for i in range(4)]
    for i,x in enumerate(regs):
        if i%4==0: e(f's_mov_b64 exec, s[{58+2*(i//4)}:{59+2*(i//4)}]')
        e(f'v_cmp_gt_u32 {ms[i]}, s3, v{x}')
    insert_entries(regs, ms, X0, X0+15)
    e('s_or_b64 s[64:65], s[54:55], s[56:57]')
    e('s_cbranch_scc1 L_rescan')
    lab('L_rescan_done')
    for i in range(16): e(f'v_mov_b32 {r("O",i)}, 0')
    e('s_waitcnt lgkmcnt(0)')
    e('s_barrier')
    stamp(6)
    e('s_or_b32 s3, s2, s36'); e('s_cbranch_scc1 L_counts')
    for i in range(4): e(f'v_mov_b32 v{X0+i}, s{50+i}')
    e(f'v_mov_b32 v{X0+4}, 0')
    e(f's_add_u32 s68, s14, {EPO}'); e('s_addc_u32 s69, s15, 0'); e('s_mov_b32 s70, 16'); e('s_mov_b32 s71, 0x20000')
    e('s_mov_b64 exec, 1')
    e(f'buffer_store_dwordx4 v[{X0}:{X0+3}], v{X0+4}, s[68:71], 0 offen sc1')
    e('s_mov_b64 exec, -1')
    lab('L_counts')
    e(f'v_lshlrev_b32 {r("Z")}, 2, {L}')
    e(f'ds_read_b32 {r("T")}, {r("Z")} offset:{CNT}')
    e('s_movk_i32 s3, 254')
    e('s_add_u32 s46, s36, 16'); e('s_add_u32 s47, s36, 32'); e('s_add_u32 s48, s36, 48')
    e('s_waitcnt lgkmcnt(0)')
    e(f'v_cmp_lt_u32 vcc, s3, {r("T")}')
    e(f'v_add_u32 {r("T")}, 15, {r("T")}'); e(f'v_lshrrev_b32 {r("T")}, 4, {r("T")}')
    e('s_cbranch_vccnz L_slow')
    e(f'v_readlane_b32 s45, {r("T")}, s36'); e(f'v_readlane_b32 s46, {r("T")}, s46'); e(f'v_readlane_b32 s47, {r("T")}, s47'); e(f'v_readlane_b32 s48, {r("T")}, s48')
    e('s_max_u32 s42, s45, s46'); e('s_max_u32 s42, s42, s47'); e('s_max_u32 s42, s42, s48')
    e('s_add_u32 s42, s42, 1'); e('s_lshr_b32 s42, s42, 1')
    e('s_cbranch_scc0 L_loop_done')
    e('s_cmp_lg_u32 s48, 0'); e('s_cbranch_scc1 L_m4')
    main_loop(3)
    lab('L_m4')
    main_loop(4)
    lab('L_loop_done')
    e('s_cmp_lg_u32 s67, 0'); e('s_cbranch_scc1 L_slow_next')
    lab('L_epi')
    stamp(7)
    wfrag_addr(WV)
    wfrag_reads(WF)
    e(f'v_lshrrev_b32 v{TMP+1}, 4, {L}'); e(f'v_mul_u32_u24 v{TMP+1}, 24, v{TMP+1}'); e(f'v_sub_u32 v{TMP+1}, {r("qa")}, v{TMP+1}')
    e('s_nop 4')
    for f in range(4):
        e(f'v_cvt_pk_bf16_f32 v{A1+2*f}, {r("O",4*f)}, {r("O",4*f+1)}'); e(f'v_cvt_pk_bf16_f32 v{A1+2*f+1}, {r("O",4*f+2)}, {r("O",4*f+3)}')
    e('s_mov_b32 s64, 0x000f000f'); e('s_mov_b32 s65, 0x000f000f')
    e('s_mov_b64 exec, s[64:65]')
    for f in range(4):
        e(f'ds_write_b64 v{TMP+1}, v[{A1+2*f}:{A1+2*f+1}] offset:{32*f}')
    e('s_mov_b64 exec, -1')
    e(f'v_and_b32 v{TMP+2}, 15, {L}'); e('s_lshr_b32 s3, s36, 2'); e('s_lshl_b32 s3, s3, 4'); e(f'v_add_u32 v{TMP+2}, s3, v{TMP+2}')
    e(f'v_lshlrev_b32 v{TMP+4}, 15, v{TMP+2}')
    e(f's_movk_i32 s3, {QS}'); e(f'v_mul_u32_u24 v{TMP+2}, s3, v{TMP+2}')
    e(f'v_lshrrev_b32 v{TMP+3}, 4, {L}'); e(f'v_lshl_add_u32 v{TMP+2}, v{TMP+3}, 4, v{TMP+2}')
    e(f'v_lshl_add_u32 v{TMP+4}, v{TMP+3}, 3, v{TMP+4}')
    e('s_and_b32 s3, s36, 3'); e('s_lshl_b32 s3, s3, 5'); e('s_lshl_b32 s38, s2, 7'); e('s_add_u32 s3, s3, s38')
    e(f'v_add_u32 v{TMP+4}, s3, v{TMP+4}')
    e('s_waitcnt lgkmcnt(0)')
    e('s_barrier')
    e(f'ds_read_b128 v[{XQ}:{XQ+3}], v{TMP+2} offset:{QT}'); e(f'ds_read_b128 v[{XQ+4}:{XQ+7}], v{TMP+2} offset:{QT+64}')
    e('s_waitcnt lgkmcnt(1)')
    e(f'v_mfma_f32_16x16x32_bf16 v[{QD}:{QD+3}], v[{WF}:{WF+3}], v[{XQ}:{XQ+3}], 0')
    e('s_waitcnt lgkmcnt(0)')
    e(f'v_mfma_f32_16x16x32_bf16 v[{QD}:{QD+3}], v[{WF+4}:{WF+7}], v[{XQ+4}:{XQ+7}], v[{QD}:{QD+3}]')
    e('s_nop 7')
    e(f'v_cvt_pk_bf16_f32 v{QD+4}, v{QD}, v{QD+1}'); e(f'v_cvt_pk_bf16_f32 v{QD+5}, v{QD+2}, v{QD+3}')
    e(f'buffer_store_dwordx2 v[{QD+4}:{QD+5}], v{TMP+4}, s[32:35], 0 offen')
    if STAMP:
        stamp(8); e('s_waitcnt vmcnt(0)'); stamp(9); stamp_store(14)
    lab('L_end')
    e('s_endpgm')
    lab('L_rescan')
    e('s_lshl_b32 s72, s36, 3')
    lab('L_rs_next')
    e('s_cmp_lg_u64 s[54:55], 0'); e('s_cbranch_scc1 L_rs_have')
    e('s_cmp_eq_u64 s[56:57], 0'); e('s_cbranch_scc1 L_rescan_done')
    e('s_mov_b64 s[54:55], s[56:57]'); e('s_mov_b64 s[56:57], 0'); e('s_add_u32 s72, s72, 128')
    lab('L_rs_have')
    e('s_ff1_i32_b64 s73, s[54:55]')
    e('s_lshl_b64 s[64:65], 0xff, s73'); e('s_andn2_b64 s[54:55], s[54:55], s[64:65]')
    e('s_lshr_b32 s73, s73, 3'); e('s_add_u32 s73, s73, s72')
    e(f's_mul_i32 s73, s73, {CHB}')
    e('s_mov_b32 s74, 0')
    lab('L_rs_loop')
    e(f'v_add_u32 {r("Z")}, s74, {L}')
    e(f'v_lshl_add_u32 {r("T")}, {r("Z")}, 4, s73')
    e(f'v_cmp_gt_u32 vcc, {NQ}, {r("Z")}'); e('s_mov_b64 s[62:63], vcc')
    e(f'v_cmp_gt_u32 vcc, {EB}, {r("T")}'); e('s_and_b64 s[62:63], s[62:63], vcc')
    scan_quads(V['T'],'s[62:63]')
    e('s_add_u32 s74, s74, 64'); e(f's_cmp_lt_u32 s74, {NQ}'); e('s_cbranch_scc1 L_rs_loop')
    e('s_branch L_rs_next')
    lab('L_slow')
    e('s_mov_b32 s67, 1'); e('s_mov_b32 s75, 0')
    lab('L_slow_next')
    e(f's_cmp_ge_u32 s75, {EB}'); e('s_cbranch_scc1 L_epi')
    e('s_barrier')
    list_init(A1)
    stg_zero(A1+8)
    e('s_waitcnt lgkmcnt(0)')
    e('s_barrier')
    e(f'v_lshl_add_u32 {r("T")}, v0, 4, s75')
    e('v_cmp_gt_u32 vcc, 28, v0'); e('s_mov_b64 s[62:63], vcc')
    e(f'v_cmp_gt_u32 vcc, {EB}, {r("T")}'); e('s_and_b64 s[62:63], s[62:63], vcc')
    e('s_cbranch_scc0 L_slow_skip')
    scan_quads(V['T'],'s[62:63]')
    lab('L_slow_skip')
    e('s_add_u32 s75, s75, 448')
    e('s_waitcnt lgkmcnt(0)')
    e('s_barrier')
    e('s_branch L_counts')

def kd(name, nv, ns):
    nva=(nv+3)//4*4
    return ['.p2align 6', f'.amdhsa_kernel {name}', f'  .amdhsa_next_free_vgpr {nv}', f'  .amdhsa_next_free_sgpr {ns}', f'  .amdhsa_accum_offset {nva}',
      '  .amdhsa_group_segment_fixed_size 0','  .amdhsa_kernarg_size 64','  .amdhsa_user_sgpr_count 2','  .amdhsa_user_sgpr_kernarg_segment_ptr 1','  .amdhsa_system_sgpr_workgroup_id_x 1','.end_amdhsa_kernel']
top = hdr + [f'; @launch grid=(256,1,1) block=(1024,1,1) lds={LDS}', '.amdgcn_target "amdgcn-amd-amdhsa--gfx950"','.text',f'.globl {K}']
kernel()
tail=['.section .rodata,"a"']+kd(K,NV,102)
open(OUT,'w').write('\n'.join(top+o+tail)+'\n')
print('vgprs',NV,'lds',LDS, file=sys.stderr)
```

```python
import sys, struct
args=sys.argv[1:]
STAMP = '--stamp' in args
def opt(name, dflt):
    for a in args:
        if a.startswith('--'+name+'='): return int(a.split('=')[1])
    return dflt
TIMEOUT=opt('timeout',4096)
CAPT=opt('cap',32)
PF=opt('pf',1)
SLEEP=opt('sleep',2)
SPIN=opt('spin',0); SPINAT=opt('spinat',0)
NOA1=opt('noa1',0); NOTR=opt('notr',0); FULLW=opt('fullw',0); NOMF=opt('nomf',0)
OUT = [a for a in args if not a.startswith('--')][0]
HDR = open('gather_scatter__kernel_systems_refs_featgraph__graph.s.ref').read().split('\n')
hdr = [l for l in HDR if l.startswith(';') and '@launch' not in l and 'Override' not in l and 'grid=ceil' not in l]
K='gather_scatter__kernel_systems_refs_featgraph__graph_kernel'

N=12500; E=800000; EB=E*4; CHB=12512; NQ=782
XB=N*128
BSTR=32896
EPO=0x1000000
o=[]
def e(s):
    if NOMF and s.startswith('v_mfma') and INLOOP[0]: return
    o.append('    '+s)
INLOOP=[0]
def lab(s): o.append(s+':')
def f2u(f): return struct.unpack('<I',struct.pack('<f',f))[0]
def srd(d, lo, hi, nrec):
    e(f's_mov_b32 s{d}, s{lo}'); e(f's_mov_b32 s{d+1}, s{hi}'); e(f's_mov_b32 s{d+2}, {nrec}'); e(f's_mov_b32 s{d+3}, 0x20000')
NST=10
def stamp(i):
    if STAMP: e(f's_memrealtime s[{80+2*i}:{81+2*i}]')
    if SPIN and i==SPINAT: e('s_memrealtime s[100:101]')
def stamp_store(wsreg):
    if not STAMP: return
    e('s_waitcnt lgkmcnt(0)')
    e('v_cmp_eq_u32 vcc, 0, v0')
    e('s_and_saveexec_b64 s[78:79], vcc')
    e(f's_cbranch_execz L_nostamp')
    e(f's_add_u32 s76, s{wsreg}, 0x8000000'); e(f's_addc_u32 s77, s{wsreg+1}, 0')
    e('s_lshl_b32 s75, s2, 7')
    e('v_mov_b32 v1, s75')
    for i in range(NST):
        e(f'v_mov_b32 v2, s{80+2*i}'); e(f'v_mov_b32 v3, s{81+2*i}')
        e(f'global_store_dwordx2 v1, v[2:3], s[76:77] offset:{8*i}')
        e('s_nop 1')
    lab('L_nostamp')
    e('s_mov_b64 exec, -1')

CNT=0; LIST=256; QS=144; QT=LIST+12544; WV=QT+64*QS; PC=WV+8192; STG=PC+1024; LDS=STG+100352
IMG=STG; WQ=STG+32768; XR=STG+40960
assert STG%128==0 and QT%16==0 and WV%16==0
V={}
_n=[1]
def va(name,cnt=1,al=1):
    while _n[0]%al: _n[0]+=1
    V[name]=_n[0]; _n[0]+=cnt
    return V[name]
va('lane'); va('cA'); va('cB'); va('ia'); va('a10'); va('a11'); va('a2',4); va('m',4); va('cs'); va('idx',8); va('qa'); va('Z'); va('T'); V['Pk']=V['T']
va('O',16,4); va('D',4,4); va('Bq',32,4); va('A1',24,4); va('XT01',16,4); va('XT2',8,2)
NV=_n[0]
assert NV<=128, NV
def r(name,i=0,n=1):
    b=V[name]+i
    return f'v{b}' if n==1 else f'v[{b}:{b+n-1}]'
A1=V['A1']; XT3=A1; P01=A1+8; P2=A1+12; P3=A1+14
X0=V['XT01']
DQ=X0; SQ=X0+4; AD=X0+8; RK=X0+12
PA=A1; PBs=A1+4; CA_=A1+8; SO=A1+10
GA=A1; GB=A1+4
XQ=V['Bq']; WF=V['Bq']+8; QD=V['Bq']+16
EPR=V['Bq']+24
T16=V['Bq']+28; J4=V['Bq']+29; CNA=V['Bq']+30; CNB=V['Bq']+31
TMP=V['XT2']
GA=A1+8+4; GB=A1+16
L=r('lane')
M_=0xC0FFC000; M0_=0xC003C000

def wfrag_addr(base):
    e(f'v_lshrrev_b32 v{TMP}, 4, {L}'); e(f'v_lshlrev_b32 v{TMP}, 10, v{TMP}')
    e(f'v_bfe_u32 v{TMP+1}, {L}, 2, 2'); e(f'v_lshl_add_u32 v{TMP}, v{TMP+1}, 7, v{TMP}')
    e(f'v_and_b32 v{TMP+1}, 3, {L}'); e(f'v_lshl_add_u32 v{TMP}, v{TMP+1}, 3, v{TMP}')
    e('s_and_b32 s3, s36, 3'); e('s_lshl_b32 s3, s3, 5'); e(f's_add_u32 s3, s3, {base}')
    e(f'v_add_u32 v{TMP}, s3, v{TMP}')
def wfrag_reads(dst):
    for ks in range(2):
        for jh in range(2):
            e(f'ds_read_b64_tr_b16 v[{dst+4*ks+2*jh}:{dst+4*ks+2*jh+1}], v{TMP} offset:{ks*4096+jh*512}')

_u=[0]
def dma_issue(nc):
    _u[0]+=1; u=_u[0]
    for k in range(nc):
        e(f's_cmp_lt_u32 s43, s{45+k}'); e(f's_cbranch_scc0 D{u}_{k}')
        e(f'v_lshl_add_u32 {r("idx",2*k)}, {r("idx",2*k)}, 7, {r("cA")}')
        e(f's_add_u32 m0, s37, {k*2048}')
        e(f's_cmp_lt_u32 s44, s{45+k}')
        e(f'buffer_load_dwordx4 {r("idx",2*k)}, s[16:19], 0 offen lds')
        e(f's_cbranch_scc0 D{u}_{k}')
        e(f'v_lshl_add_u32 {r("idx",2*k+1)}, {r("idx",2*k+1)}, 7, {r("cB")}')
        e(f's_add_u32 m0, s37, {k*2048+1024}')
        e('s_nop 0')
        e(f'buffer_load_dwordx4 {r("idx",2*k+1)}, s[16:19], 0 offen lds')
        lab(f'D{u}_{k}')
def idx_reads(nc):
    for k in range(nc):
        e(f'ds_read_u16 {r("idx",2*k)}, {r("ia")} offset:{k*4096}')
        e(f'ds_read_u16 {r("idx",2*k+1)}, {r("ia")} offset:{k*4096+16}')

def main_loop(nc):
    t=f'M{nc}'
    e('s_lshl_b32 s3, s42, 5')
    e('s_add_u32 s3, s3, s41')
    e(f'v_lshrrev_b32 {r("ia")}, 3, {L}')
    e(f'v_lshl_add_u32 {r("ia")}, {r("ia")}, 1, s3')
    idx_reads(nc)
    for i in range(8*nc): e(f'v_mov_b32 {r("Bq",i)}, 0')
    e('s_lshl_b32 s43, s42, 1'); e('s_sub_u32 s44, s43, 1'); e('s_sub_u32 s43, s43, 2')
    e('s_waitcnt lgkmcnt(0)')
    dma_issue(nc)
    for k in range(nc):
        e(f's_lshl_b64 exec, s[6:7], {k}')
        e(f'ds_read_b128 {r("Bq",8*k,4)}, {r("qa")}')
        e(f'ds_read_b128 {r("Bq",8*k+4,4)}, {r("qa")} offset:16')
    e('s_mov_b64 exec, -1')
    lab(f'{t}_loop')
    INLOOP[0]=1
    e(f'v_subrev_u32 {r("ia")}, 32, {r("ia")}')
    e('s_sub_u32 s42, s42, 1'); e('s_sub_u32 s43, s43, 2'); e('s_sub_u32 s44, s44, 2')
    idx_reads(nc)
    e('s_waitcnt vmcnt(0)')
    for k in range(3):
        if NOA1: continue
        e(f'ds_read_b128 {r("A1",8*k,4)}, {r("a10")} offset:{k*2048}')
        e(f'ds_read_b128 {r("A1",8*k+4,4)}, {r("a11")} offset:{k*2048}')
    tr=[]
    for k in range(3):
        for f in range(4):
            d = V['XT01']+4*f+2*k if k<2 else V['XT2']+2*f
            if not NOTR: tr.append(f'ds_read_b64_tr_b16 v[{d}:{d+1}], {r("a2",f)} offset:{k*2048}')
    for x in tr[:6]: e(x)
    e('s_waitcnt lgkmcnt(10)')
    e(f'v_mfma_f32_16x16x32_bf16 {r("D",0,4)}, {r("A1",0,4)}, {r("Bq",0,4)}, 0')
    e(f'v_mfma_f32_16x16x32_bf16 {r("D",0,4)}, {r("A1",4,4)}, {r("Bq",4,4)}, {r("D",0,4)}')
    for x in tr[6:]: e(x)
    if nc==4:
        e(f'ds_read_b128 {r("A1",0,4)}, {r("a10")} offset:{3*2048}')
        e(f'ds_read_b128 {r("A1",4,4)}, {r("a11")} offset:{3*2048}')
        e('s_waitcnt lgkmcnt(14)')
    else:
        e('s_waitcnt lgkmcnt(12)')
    for k in (1,2):
        e(f'v_mfma_f32_16x16x32_bf16 {r("D",0,4)}, {r("A1",8*k,4)}, {r("Bq",8*k,4)}, {r("D",0,4)}')
        e(f'v_mfma_f32_16x16x32_bf16 {r("D",0,4)}, {r("A1",8*k+4,4)}, {r("Bq",8*k+4,4)}, {r("D",0,4)}')
    if nc==4:
        e('s_waitcnt lgkmcnt(0)')
        e(f'v_mfma_f32_16x16x32_bf16 {r("D",0,4)}, {r("A1",0,4)}, {r("Bq",24,4)}, {r("D",0,4)}')
        e(f'v_mfma_f32_16x16x32_bf16 {r("D",0,4)}, {r("A1",4,4)}, {r("Bq",28,4)}, {r("D",0,4)}')
        for f in range(4):
            e(f'ds_read_b64_tr_b16 v[{XT3+2*f}:{XT3+2*f+1}], {r("a2",f)} offset:{3*2048}')
    e('s_waitcnt lgkmcnt(0)')
    e('s_cmp_eq_u32 s42, 0')
    e(f's_cbranch_scc1 {t}_nodma')
    dma_issue(nc)
    lab(f'{t}_nodma')
    e('s_nop 7')
    e(f'v_mul_f32 {r("Z")}, {r("D",0)}, {r("cs")}')
    for i in (1,2,3):
        e(f'v_mul_f32_dpp {r("Z")}, {r("D",i)}, {r("cs")} row_shr:{4*i} row_mask:0xf bank_mask:{1<<i:#x}')
    e(f'v_exp_f32 {r("Z")}, {r("Z")}')
    e('s_nop 0')
    e(f'v_add_f32 {r("Z")}, 1.0, {r("Z")}')
    e(f'v_rcp_f32 {r("Z")}, {r("Z")}')
    e('s_nop 1')
    e(f'v_mov_b32_dpp {r("T")}, {r("Z")} row_shl:4 row_mask:0xf bank_mask:0xf bound_ctrl:0')
    e(f'v_cvt_pk_bf16_f32 {r("Pk")}, {r("Z")}, {r("T")}')
    dsts=[P01,P01+2,P2,P3]
    for k in range(nc):
        e(f'v_and_b32 v{dsts[k]}, {r("Pk")}, {r("m",k)}')
    for k in range(nc):
        e(f'v_and_b32_dpp v{dsts[k]+1}, {r("Pk")}, {r("m",k)} row_shl:8 row_mask:0xf bank_mask:0xf bound_ctrl:0')
    e('s_nop 1')
    for f in range(4):
        e(f'v_mfma_f32_16x16x32_bf16 {r("O",4*f,4)}, {r("XT01",4*f,4)}, v[{P01}:{P01+3}], {r("O",4*f,4)}')
    for f in range(4):
        e(f'v_mfma_f32_16x16x16_bf16 {r("O",4*f,4)}, {r("XT2",2*f,2)}, v[{P2}:{P2+1}], {r("O",4*f,4)}')
    if nc==4:
        for f in range(4):
            e(f'v_mfma_f32_16x16x16_bf16 {r("O",4*f,4)}, v[{XT3+2*f}:{XT3+2*f+1}], v[{P3}:{P3+1}], {r("O",4*f,4)}')
    e('s_cmp_lg_u32 s42, 0')
    e(f's_cbranch_scc1 {t}_loop')
    INLOOP[0]=0
    e('s_branch L_loop_done')

def list_init(t):
    for i in range(4): e(f'v_mov_b32 v{t+i}, -1')
    e(f'v_lshlrev_b32 v{t+4}, 4, v0')
    e('v_cmp_gt_u32 vcc, 784, v0')
    e('s_mov_b64 exec, vcc')
    e(f'ds_write_b128 v{t+4}, v[{t}:{t+3}] offset:{LIST}')
    e('s_mov_b64 exec, -1')
    e(f'v_lshlrev_b32 v{t+5}, 2, {L}')
    e(f'v_mov_b32 v{t+6}, 0')
    e('v_cmp_le_u32 vcc, 960, v0')
    e('s_mov_b64 exec, vcc')
    e(f'ds_write_b32 v{t+5}, v{t+6} offset:{CNT}')
    e('s_mov_b64 exec, -1')
def stg_zero(t):
    for i in range(4): e(f'v_mov_b32 v{t+i}, 0')
    e(f'v_lshl_add_u32 v{t+4}, {L}, 4, s37')
    for i in range(6): e(f'ds_write_b128 v{t+4}, v[{t}:{t+3}] offset:{1024*i}')
    _u[0]+=1; u=_u[0]
    e('s_cmp_lg_u32 s36, 0'); e(f's_cbranch_scc1 Z{u}')
    for i in (6,7): e(f'ds_write_b128 v{t+4}, v[{t}:{t+3}] offset:{1024*i}')
    lab(f'Z{u}')

def insert_entries(regs, masks, tr_, two):
    n=len(regs)
    for i,x in enumerate(regs):
        e(f's_mov_b64 exec, {masks[i]}')
        e(f'v_lshrrev_b32 v{tr_+i}, 22, v{x}')
        e(f'ds_add_rtn_u32 v{tr_+i}, v{tr_+i}, v{two} offset:{CNT}')
    e('s_movk_i32 s3, 254')
    for i,x in enumerate(regs):
        e(f's_mov_b64 exec, {masks[i]}')
        e(f's_waitcnt lgkmcnt({n-1})')
        e(f'v_min_u32 v{tr_+i}, s3, v{tr_+i}')
        e(f'v_add_u32_sdwa v{tr_+i}, v{tr_+i}, v{x} dst_sel:DWORD dst_unused:UNUSED_PAD src0_sel:DWORD src1_sel:WORD_1')
        e(f'ds_write_b16 v{tr_+i}, v{x} offset:{LIST}')
    e('s_mov_b64 exec, -1')

def scan_quads(off, vmask):
    e(f's_mov_b64 exec, {vmask}')
    e(f'buffer_load_dwordx4 v[{DQ}:{DQ+3}], v{off}, s[20:23], 0 offen')
    e(f'buffer_load_dwordx4 v[{SQ}:{SQ+3}], v{off}, s[24:27], 0 offen')
    e(f'v_mov_b32 v{RK}, 2')
    e('s_mov_b32 s3, 0x050c0100')
    e('s_waitcnt vmcnt(0)')
    ms=['s[42:43]','s[44:45]','s[46:47]','s[48:49]']
    for i in range(4):
        e(f'v_and_b32 v{AD+i}, 0xff, v{DQ+i}')
        e(f'v_cmp_eq_u32 {ms[i]}, s2, v{AD+i}')
        e(f'v_perm_b32 v{SQ+i}, v{DQ+i}, v{SQ+i}, s3')
    insert_entries([SQ+i for i in range(4)], ms, AD, RK)

def kernel():
    o.append('.p2align 8'); o.append(f'.type {K},@function'); lab(K)
    e('s_cmp_ge_u32 s2, 256'); e('s_cbranch_scc1 L_end')
    stamp(0)
    e('s_load_dwordx4 s[4:7], s[0:1], 0')
    e('s_load_dwordx2 s[38:39], s[0:1], 16')
    e('s_load_dwordx2 s[14:15], s[0:1], 56')
    e('s_load_dwordx4 s[8:11], s[0:1], 24')
    e('s_load_dwordx2 s[12:13], s[0:1], 40')
    e(f'v_lshrrev_b32 v{TMP}, 6, v0')
    e(f'v_lshlrev_b32 v{T16}, 4, v0')
    e(f'v_readfirstlane_b32 s36, v{TMP}')
    e(f'v_and_b32 {L}, 63, v0')
    e(f's_mul_i32 s42, s2, {CHB}')
    e(f'v_add_u32 v{TMP+1}, s42, v{T16}')
    e(f'v_mov_b32 v{TMP+2}, 0')
    e(f's_mov_b32 s22, {EB}'); e('s_mov_b32 s23, 0x20000'); e(f's_mov_b32 s26, {EB}'); e('s_mov_b32 s27, 0x20000')
    e(f's_mov_b32 s70, 16'); e('s_mov_b32 s71, 0x20000')
    e(f'v_cmp_gt_u32 vcc, {NQ}, v0'); e('s_mov_b64 s[62:63], vcc')
    e(f'v_cmp_gt_u32 vcc, {EB}, v{TMP+1}'); e('s_and_b64 s[62:63], s[62:63], vcc')
    e('s_waitcnt lgkmcnt(0)')
    stamp(1)
    e('s_mov_b32 s20, s38'); e('s_mov_b32 s21, s39'); e('s_mov_b32 s24, s6'); e('s_mov_b32 s25, s7')
    e('s_mov_b64 exec, s[62:63]')
    e(f'buffer_load_dwordx4 v[{DQ}:{DQ+3}], v{TMP+1}, s[20:23], 0 offen')
    e(f'buffer_load_dwordx4 v[{SQ}:{SQ+3}], v{TMP+1}, s[24:27], 0 offen')
    e('s_mov_b64 exec, -1')
    e(f's_add_u32 s68, s14, {EPO}'); e('s_addc_u32 s69, s15, 0')
    e(f'buffer_load_dwordx4 v[{EPR}:{EPR+3}], v{TMP+2}, s[68:71], 0 offen sc1')
    e(f'v_lshlrev_b32 v{TMP+4}, 4, {L}')
    e('s_and_b32 s39, s36, 7'); e('s_lshl_b32 s39, s39, 10')
    e('s_cmp_lt_u32 s36, 8')
    e('s_cselect_b32 s28, s8, s10'); e('s_cselect_b32 s29, s9, s11'); e('s_mov_b32 s30, 8192'); e('s_mov_b32 s31, 0x20000')
    e(f's_cselect_b32 s3, {WQ-WV}, 0')
    e(f's_add_u32 s3, s3, {WV}')
    e('s_add_u32 m0, s3, s39')
    srd(16,4,5,XB)
    e(f'buffer_load_dwordx4 v{TMP+4}, s[28:31], s39 offen lds')
    e(f'v_lshrrev_b32 v{TMP}, 3, v0')
    e(f'v_lshlrev_b32 v{TMP}, 15, v{TMP}')
    e(f'v_lshrrev_b32 v{TMP+3}, 3, {L}'); e(f'v_xor_b32 v{TMP+3}, v{TMP+3}, {L}'); e(f'v_and_b32 v{TMP+3}, 7, v{TMP+3}')
    e(f'v_lshl_add_u32 v{TMP}, v{TMP+3}, 4, v{TMP}')
    e('s_lshl_b32 s38, s2, 7')
    e('s_lshl_b32 s3, s36, 10'); e(f's_add_u32 m0, s3, {XR}')
    e('s_nop 0')
    e(f'buffer_load_dwordx4 v{TMP}, s[16:19], s38 offen lds')
    NPF=4 if PF else 0
    if PF:
        e('s_lshr_b32 s3, s2, 3'); e('s_mul_i32 s3, s3, 50000')
        e('s_add_u32 s96, s4, s3'); e('s_addc_u32 s97, s5, 0'); e('s_mov_b32 s98, 50000'); e('s_mov_b32 s99, 0x20000')
        e('s_movk_i32 s43, 0x4000'); e('s_mov_b32 s44, 0x8000'); e('s_mov_b32 s45, 0xc000')
        for so in ('0','s43','s44','s45'):
            e(f'buffer_load_dwordx4 {r("O",0,4)}, v{T16}, s[96:99], {so} offen')
    for i in range(4): e(f'v_mov_b32 v{A1+i}, 0x3f000000')
    e(f'ds_write_b128 v{T16}, v[{A1}:{A1+3}] offset:{IMG}')
    e(f'ds_write_b128 v{T16}, v[{A1}:{A1+3}] offset:{IMG+16384}')
    e(f'v_lshlrev_b32 v{A1+4}, 2, v0'); e(f'v_mov_b32 v{A1+5}, 0')
    e('s_cmp_lt_u32 s36, 4'); e('s_cbranch_scc0 L_nopc')
    e(f'ds_write_b32 v{A1+4}, v{A1+5} offset:{PC}')
    lab('L_nopc')
    list_init(A1+8)
    e(f'v_mov_b32 v{A1+6}, 4')
    e('s_mov_b32 s49, 0x050c0100')
    e('s_movk_i32 s48, 124')
    e('s_waitcnt lgkmcnt(0)')
    e('s_barrier')
    srd(32,12,13,XB)
    e('s_add_u32 s3, s36, 15'); e('s_and_b32 s3, s3, 15'); e('s_mul_i32 s37, s3, 6144'); e(f's_add_u32 s37, s37, {STG}')
    e('s_movk_i32 s40, 128')
    e('s_lshl_b32 s41, s36, 8'); e(f's_add_u32 s41, s41, {LIST-32}')
    e('s_mov_b32 s6, 0x00010001'); e('s_mov_b32 s7, 0x00010001')
    t0,t1,t2=TMP,TMP+1,TMP+2
    e(f'v_lshrrev_b32 v{t1}, 4, {L}')
    e(f'v_lshrrev_b32 v{t0}, 3, {L}'); e(f'v_and_b32 v{t0}, 6, v{t0}'); e(f'v_and_b32 v{t2}, 7, {L}')
    e(f'v_lshlrev_b32 v{J4}, 2, v{t2}')
    e(f'v_xor_b32 v{t0}, v{t0}, v{t2}'); e(f'v_lshlrev_b32 {r("cA")}, 4, v{t0}'); e(f'v_xor_b32 {r("cB")}, 16, {r("cA")}')
    e(f'v_and_b32 v{t0}, 6, {L}'); e(f'v_bfe_u32 v{t2}, {L}, 3, 1'); e(f'v_or_b32 v{t0}, v{t0}, v{t2}')
    e(f'v_lshlrev_b32 v{t2}, 1, v{t1}'); e(f'v_xor_b32 v{t0}, v{t0}, v{t2}'); e(f'v_lshlrev_b32 v{t0}, 4, v{t0}')
    e(f'v_and_b32 v{t2}, 15, {L}'); e(f'v_lshl_add_u32 v{t0}, v{t2}, 7, v{t0}')
    e(f'v_add_u32 {r("a10")}, s37, v{t0}'); e(f'v_xor_b32 {r("a11")}, 16, {r("a10")}')
    for k in range(4):
        e(f'v_cmp_eq_u32 s[64:65], {k}, v{t2}'); e('s_nop 1'); e(f'v_cndmask_b32 {r("m",k)}, 0, -1, s[64:65]')
    e(f'v_lshlrev_b32 v{t0}, 4, v{t2}'); e(f'v_add_u32 v{t0}, s36, v{t0}'); e(f's_movk_i32 s3, {QS}'); e(f'v_mul_u32_u24 v{t0}, s3, v{t0}')
    e(f'v_lshl_add_u32 v{t0}, v{t1}, 5, v{t0}'); e(f'v_add_u32 {r("qa")}, {QT}, v{t0}')
    e(f'v_lshrrev_b32 v{t0}, 2, {L}')
    e(f'v_and_b32 v{t2}, 6, v{t0}'); e(f'v_lshrrev_b32 {r("Z")}, 3, v{t0}'); e(f'v_or_b32 v{t2}, v{t2}, {r("Z")}')
    e(f'v_bfe_u32 {r("Z")}, {L}, 1, 1'); e(f'v_xor_b32 v{t2}, v{t2}, {r("Z")}'); e(f'v_lshlrev_b32 v{t2}, 4, v{t2}')
    e(f'v_lshl_add_u32 v{t2}, v{t0}, 7, v{t2}')
    e(f'v_and_b32 {r("Z")}, 1, {L}'); e(f'v_lshl_add_u32 v{t2}, {r("Z")}, 3, v{t2}')
    e(f'v_add_u32 {r("a2",0)}, s37, v{t2}')
    for f in (1,2,3): e(f'v_xor_b32 {r("a2",f)}, {32*f}, {r("a2",0)}')
    e(f'v_mov_b32 {r("cs")}, {f2u(-0.125*1.4426950408889634):#x}')
    e(f'v_lshrrev_b32 v{SO+1}, 3, v0'); e(f's_mov_b32 s3, {BSTR}'); e(f'v_mul_u32_u24 v{SO}, s3, v{SO+1}')
    e(f'v_lshl_add_u32 v{SO}, v{J4}, 2, v{SO}')
    e(f'v_lshlrev_b32 v{SO+1}, 2, v{SO+1}')
    e('s_mov_b64 exec, s[62:63]')
    e(f's_waitcnt vmcnt({4+NPF})')
    stamp(2)
    for i in range(4):
        e(f'v_lshlrev_b32_sdwa v{AD+i}, 2, v{DQ+i} dst_sel:DWORD dst_unused:UNUSED_PAD src0_sel:DWORD src1_sel:BYTE_0')
    for i in range(4):
        e(f'ds_add_rtn_u32 v{RK+i}, v{AD+i}, v{A1+6} offset:{PC}')
    e(f's_waitcnt vmcnt({3+NPF})')
    for i in range(4):
        e(f'v_perm_b32 v{SQ+i}, v{DQ+i}, v{SQ+i}, s49')
    for i in range(4):
        e(f's_waitcnt lgkmcnt({3})')
        e(f'v_min_u32 v{RK+i}, s48, v{RK+i}')
        e(f'v_lshl_add_u32 v{RK+i}, v{AD+i}, 5, v{RK+i}')
        e(f'ds_write_b32 v{RK+i}, v{SQ+i} offset:{IMG}')
    e('s_mov_b64 exec, -1')
    e(f's_waitcnt vmcnt({2+NPF})')
    for i in range(4): e(f'v_readfirstlane_b32 s{50+i}, v{EPR+i}')
    e('s_bfe_u32 s42, s51, 0xa000e'); e('s_bfe_u32 s43, s52, 0xa000e'); e('s_bfe_u32 s44, s53, 0xa000e')
    e('s_lshl_b32 s43, s43, 10'); e('s_lshl_b32 s44, s44, 20'); e('s_or_b32 s42, s42, s43'); e('s_or_b32 s42, s42, s44')
    e('s_add_u32 s42, s42, 1')
    e(f's_and_b32 s50, s50, {M0_:#x}')
    for i,sh in ((1,0),(2,10),(3,20)):
        e(f's_and_b32 s{50+i}, s{50+i}, 0xc0000000')
        e(f's_bfe_u32 s43, s42, {0xa0000|sh:#x}'); e('s_lshl_b32 s43, s43, 14'); e(f's_or_b32 s{50+i}, s{50+i}, s43')
    e('s_lshl_b32 s3, s2, 7'); e('s_add_u32 s28, s14, s3'); e('s_addc_u32 s29, s15, 0'); e(f's_mov_b32 s30, {256*BSTR}'); e('s_mov_b32 s31, 0x20000')
    e(f's_mul_i32 s3, s2, {BSTR}'); e('s_add_u32 s68, s14, s3'); e('s_addc_u32 s69, s15, 0'); e('s_mov_b32 s70, 32768'); e('s_mov_b32 s71, 0x20000')
    e(f's_mov_b32 s38, {128*BSTR}'); e('s_movk_i32 s39, 0x4000'); e('s_movk_i32 s48, 252')
    e(f's_waitcnt vmcnt({NPF}) lgkmcnt(0)')
    e('s_barrier')
    stamp(3)
    e(f'ds_read_b32 v{CA_}, v{SO+1} offset:{PC}')
    e(f'ds_read_b32 v{CA_+1}, v{SO+1} offset:{PC+512}')
    e(f'ds_read_b128 v[{PA}:{PA+3}], v{T16} offset:{IMG}')
    e(f'ds_read_b128 v[{PBs}:{PBs+3}], v{T16} offset:{IMG+16384}')
    e(f'v_lshlrev_b32 v{TMP}, 2, v{J4}')
    if FULLW==2: e(f'v_and_b32 v{TMP}, 64, v{TMP}')
    e(f'v_cmp_eq_u32 s[64:65], 0, v{TMP}')
    for s_,(P,C,so) in enumerate(((PA,CA_,'0'),(PBs,CA_+1,'s38'))):
        e(f's_waitcnt lgkmcnt({3-s_})')
        e(f'v_cmp_lt_u32 vcc, v{TMP}, v{C}')
        if FULLW==1: e('s_mov_b64 vcc, -1')
        e(f'v_min_u32 v{C}, s48, v{C}')
        e(f's_or_b64 s[{54+2*s_}:{55+2*s_}], vcc, s[64:65]')
        e(f'v_lshlrev_b32 v{C}, 16, v{C}')
        e(f'v_or_b32 v{C}, s50, v{C}')
    for s_,(P,C,so) in enumerate(((PA,CA_,'0'),(PBs,CA_+1,'s38'))):
        e(f's_waitcnt lgkmcnt({1-s_})')
        e(f'v_xor_b32 v{P}, v{C}, v{P}')
        for i in (1,2,3): e(f'v_xor_b32 v{P+i}, s{50+i}, v{P+i}')
        e(f's_mov_b64 exec, s[{54+2*s_}:{55+2*s_}]')
        e(f'buffer_store_dwordx4 v[{P}:{P+3}], v{SO}, s[28:31], {so} offen sc1')
        e('s_mov_b64 exec, -1')
    stamp(4)
    wfrag_addr(WQ)
    wfrag_reads(WF)
    e(f'v_and_b32 v{TMP+1}, 15, {L}'); e('s_lshr_b32 s3, s36, 2'); e('s_lshl_b32 s3, s3, 4'); e(f'v_add_u32 v{TMP+1}, s3, v{TMP+1}')
    e(f'v_lshrrev_b32 v{TMP+2}, 4, {L}')
    e(f'v_and_b32 v{TMP+3}, 7, {L}'); e(f'v_xor_b32 v{TMP+3}, v{TMP+3}, v{TMP+2}'); e(f'v_lshlrev_b32 v{TMP+3}, 4, v{TMP+3}')
    e(f'v_lshl_add_u32 v{TMP+3}, v{TMP+1}, 7, v{TMP+3}'); e(f'v_add_u32 v{TMP+3}, {XR}, v{TMP+3}'); e(f'v_xor_b32 v{TMP+4}, 64, v{TMP+3}')
    e(f'ds_read_b128 v[{XQ}:{XQ+3}], v{TMP+3}'); e(f'ds_read_b128 v[{XQ+4}:{XQ+7}], v{TMP+4}')
    e(f's_movk_i32 s3, {QS}'); e(f'v_mul_u32_u24 v{TMP+1}, s3, v{TMP+1}')
    e(f'v_lshl_add_u32 v{TMP+1}, v{TMP+2}, 3, v{TMP+1}')
    e('s_and_b32 s3, s36, 3'); e('s_lshl_b32 s3, s3, 5'); e(f's_add_u32 s3, s3, {QT}'); e(f'v_add_u32 v{TMP+1}, s3, v{TMP+1}')
    e(f'buffer_load_dwordx4 v[{GA}:{GA+3}], v{T16}, s[68:71], 0 offen sc1')
    e(f'buffer_load_dwordx4 v[{GB}:{GB+3}], v{T16}, s[68:71], s39 offen sc1')
    e('s_waitcnt lgkmcnt(0)')
    e(f'v_mfma_f32_16x16x32_bf16 v[{QD}:{QD+3}], v[{WF}:{WF+3}], v[{XQ}:{XQ+3}], 0')
    e(f'v_mfma_f32_16x16x32_bf16 v[{QD}:{QD+3}], v[{WF+4}:{WF+7}], v[{XQ+4}:{XQ+7}], v[{QD}:{QD+3}]')
    e('s_mov_b64 s[54:55], -1'); e('s_mov_b64 s[56:57], -1'); e('s_mov_b64 s[58:59], 0'); e('s_mov_b64 s[60:61], 0')
    e(f'v_mov_b32 v{CNA}, 0xff'); e(f'v_mov_b32 v{CNB}, 0xff')
    e(f's_movk_i32 s66, {TIMEOUT}'); e('s_mov_b32 s67, 0')
    e(f's_mov_b32 s46, {M_:#x}'); e(f's_mov_b32 s47, {M0_:#x}')
    e('s_nop 1')
    e(f'v_cvt_pk_bf16_f32 v{QD+4}, v{QD}, v{QD+1}'); e(f'v_cvt_pk_bf16_f32 v{QD+5}, v{QD+2}, v{QD+3}')
    e(f'ds_write_b64 v{TMP+1}, v[{QD+4}:{QD+5}]')
    e('s_waitcnt lgkmcnt(0)')
    e('s_barrier')
    stg_zero(X0)
    lab('L_poll')
    CB=[X0+8,X0+9]; TT=X0+10
    for s_,(G,CN) in enumerate(((GA,CNA),(GB,CNB))):
        p=f's[{54+2*s_}:{55+2*s_}]'; g=f's[{58+2*s_}:{59+2*s_}]'
        e(f's_mov_b64 exec, {p}')
        e(f's_waitcnt vmcnt({1-s_})')
        for i in range(4): e(f'v_xor_b32 v{G+i}, s{50+i}, v{G+i}')
        e(f'v_or3_b32 v{TT}, v{G+1}, v{G+2}, v{G+3}')
        e(f'v_and_b32 v{TT}, s46, v{TT}')
        e(f'v_and_or_b32 v{TT}, v{G}, s47, v{TT}')
        e(f'v_cmp_eq_u32 s[64:65], 0, v{TT}')
        e('s_mov_b64 exec, s[64:65]')
        e(f'v_bfe_u32 v{CN}, v{G}, 18, 6')
        e('s_mov_b64 exec, -1')
        e(f's_or_b64 {g}, {g}, s[64:65]')
        e(f's_andn2_b64 {p}, {p}, s[64:65]')
        e(f'v_mov_b32_dpp v{CB[s_]}, v{CN} quad_perm:[0,0,0,0] row_mask:0xf bank_mask:0xf')
        e('s_nop 1')
        e(f'v_mov_b32_dpp v{CB[s_]}, v{CB[s_]} row_shr:4 row_mask:0xf bank_mask:0xa')
        e(f'v_cmp_lt_u32 vcc, v{J4}, v{CB[s_]}')
        e(f's_and_b64 {p}, {p}, vcc')
    e('s_or_b64 s[64:65], s[54:55], s[56:57]')
    e('s_cbranch_scc0 L_poll_done')
    e('s_sub_u32 s66, s66, 1')
    e('s_cbranch_scc1 L_poll_done')
    if SLEEP: e(f's_sleep {SLEEP}')
    e('s_mov_b64 exec, s[54:55]')
    e(f'buffer_load_dwordx4 v[{GA}:{GA+3}], v{T16}, s[68:71], 0 offen sc1')
    e('s_mov_b64 exec, s[56:57]')
    e(f'buffer_load_dwordx4 v[{GB}:{GB+3}], v{T16}, s[68:71], s39 offen sc1')
    e('s_branch L_poll')
    lab('L_poll_done')
    stamp(5)
    for s_ in range(2):
        p=54+2*s_; g=58+2*s_
        e(f's_lshr_b64 s[64:65], s[{p}:{p+1}], 1'); e(f's_or_b64 s[{p}:{p+1}], s[{p}:{p+1}], s[64:65]')
        e(f's_lshr_b64 s[64:65], s[{p}:{p+1}], 2'); e(f's_or_b64 s[{p}:{p+1}], s[{p}:{p+1}], s[64:65]')
        e(f's_lshr_b64 s[64:65], s[{p}:{p+1}], 4'); e(f's_or_b64 s[{p}:{p+1}], s[{p}:{p+1}], s[64:65]')
        e(f's_and_b32 s{p}, s{p}, 0x01010101'); e(f's_and_b32 s{p+1}, s{p+1}, 0x01010101')
        e(f's_mul_i32 s{p}, s{p}, 0xff'); e(f's_mul_i32 s{p+1}, s{p+1}, 0xff')
        e(f'v_cmp_lt_u32 vcc, {CAPT}, v{CB[s_]}')
        e(f's_or_b64 s[{p}:{p+1}], s[{p}:{p+1}], vcc')
        e(f's_andn2_b64 s[{g}:{g+1}], s[{g}:{g+1}], s[{p}:{p+1}]')
    e(f'v_and_b32 v{GA}, 0x3f003fff, v{GA}'); e(f'v_and_b32 v{GB}, 0x3f003fff, v{GB}')
    e(f'v_mov_b32 v{X0+15}, 2')
    e('s_mov_b32 s3, 0x3f000000')
    ms=[f's[{42+2*i}:{43+2*i}]' for i in range(4)]+[f's[{72+2*i}:{73+2*i}]' for i in range(2)]+['s[62:63]','s[64:65]']
    regs=[GA+i for i in range(4)]+[GB+i for i in range(4)]
    for i,x in enumerate(regs):
        if i%4==0: e(f's_mov_b64 exec, s[{58+2*(i//4)}:{59+2*(i//4)}]')
        e(f'v_cmp_gt_u32 {ms[i]}, s3, v{x}')
    insert_entries(regs, ms, X0, X0+15)
    e('s_or_b64 s[64:65], s[54:55], s[56:57]')
    e('s_cbranch_scc1 L_rescan')
    lab('L_rescan_done')
    for i in range(16): e(f'v_mov_b32 {r("O",i)}, 0')
    e('s_waitcnt lgkmcnt(0)')
    e('s_barrier')
    stamp(6)
    e('s_or_b32 s3, s2, s36'); e('s_cbranch_scc1 L_counts')
    for i in range(4): e(f'v_mov_b32 v{X0+i}, s{50+i}')
    e(f'v_mov_b32 v{X0+4}, 0')
    e(f's_add_u32 s68, s14, {EPO}'); e('s_addc_u32 s69, s15, 0'); e('s_mov_b32 s70, 16'); e('s_mov_b32 s71, 0x20000')
    e('s_mov_b64 exec, 1')
    e(f'buffer_store_dwordx4 v[{X0}:{X0+3}], v{X0+4}, s[68:71], 0 offen sc1')
    e('s_mov_b64 exec, -1')
    lab('L_counts')
    e(f'v_lshlrev_b32 {r("Z")}, 2, {L}')
    e(f'ds_read_b32 {r("T")}, {r("Z")} offset:{CNT}')
    e('s_movk_i32 s3, 254')
    e('s_add_u32 s46, s36, 16'); e('s_add_u32 s47, s36, 32'); e('s_add_u32 s48, s36, 48')
    e('s_waitcnt lgkmcnt(0)')
    e(f'v_cmp_lt_u32 vcc, s3, {r("T")}')
    e(f'v_add_u32 {r("T")}, 15, {r("T")}'); e(f'v_lshrrev_b32 {r("T")}, 4, {r("T")}')
    e('s_cbranch_vccnz L_slow')
    e(f'v_readlane_b32 s45, {r("T")}, s36'); e(f'v_readlane_b32 s46, {r("T")}, s46'); e(f'v_readlane_b32 s47, {r("T")}, s47'); e(f'v_readlane_b32 s48, {r("T")}, s48')
    e('s_max_u32 s42, s45, s46'); e('s_max_u32 s42, s42, s47'); e('s_max_u32 s42, s42, s48')
    e('s_add_u32 s42, s42, 1'); e('s_lshr_b32 s42, s42, 1')
    e('s_cbranch_scc0 L_loop_done')
    e('s_cmp_lg_u32 s48, 0'); e('s_cbranch_scc1 L_m4')
    main_loop(3)
    lab('L_m4')
    main_loop(4)
    lab('L_loop_done')
    e('s_cmp_lg_u32 s67, 0'); e('s_cbranch_scc1 L_slow_next')
    lab('L_epi')
    stamp(7)
    wfrag_addr(WV)
    wfrag_reads(WF)
    e(f'v_lshrrev_b32 v{TMP+1}, 4, {L}'); e(f'v_mul_u32_u24 v{TMP+1}, 24, v{TMP+1}'); e(f'v_sub_u32 v{TMP+1}, {r("qa")}, v{TMP+1}')
    e('s_nop 4')
    for f in range(4):
        e(f'v_cvt_pk_bf16_f32 v{A1+2*f}, {r("O",4*f)}, {r("O",4*f+1)}'); e(f'v_cvt_pk_bf16_f32 v{A1+2*f+1}, {r("O",4*f+2)}, {r("O",4*f+3)}')
    e('s_mov_b32 s64, 0x000f000f'); e('s_mov_b32 s65, 0x000f000f')
    e('s_mov_b64 exec, s[64:65]')
    for f in range(4):
        e(f'ds_write_b64 v{TMP+1}, v[{A1+2*f}:{A1+2*f+1}] offset:{32*f}')
    e('s_mov_b64 exec, -1')
    e(f'v_and_b32 v{TMP+2}, 15, {L}'); e('s_lshr_b32 s3, s36, 2'); e('s_lshl_b32 s3, s3, 4'); e(f'v_add_u32 v{TMP+2}, s3, v{TMP+2}')
    e(f'v_lshlrev_b32 v{TMP+4}, 15, v{TMP+2}')
    e(f's_movk_i32 s3, {QS}'); e(f'v_mul_u32_u24 v{TMP+2}, s3, v{TMP+2}')
    e(f'v_lshrrev_b32 v{TMP+3}, 4, {L}'); e(f'v_lshl_add_u32 v{TMP+2}, v{TMP+3}, 4, v{TMP+2}')
    e(f'v_lshl_add_u32 v{TMP+4}, v{TMP+3}, 3, v{TMP+4}')
    e('s_and_b32 s3, s36, 3'); e('s_lshl_b32 s3, s3, 5'); e('s_lshl_b32 s38, s2, 7'); e('s_add_u32 s3, s3, s38')
    e(f'v_add_u32 v{TMP+4}, s3, v{TMP+4}')
    e('s_waitcnt lgkmcnt(0)')
    e('s_barrier')
    e(f'ds_read_b128 v[{XQ}:{XQ+3}], v{TMP+2} offset:{QT}'); e(f'ds_read_b128 v[{XQ+4}:{XQ+7}], v{TMP+2} offset:{QT+64}')
    e('s_waitcnt lgkmcnt(1)')
    e(f'v_mfma_f32_16x16x32_bf16 v[{QD}:{QD+3}], v[{WF}:{WF+3}], v[{XQ}:{XQ+3}], 0')
    e('s_waitcnt lgkmcnt(0)')
    e(f'v_mfma_f32_16x16x32_bf16 v[{QD}:{QD+3}], v[{WF+4}:{WF+7}], v[{XQ+4}:{XQ+7}], v[{QD}:{QD+3}]')
    e('s_nop 7')
    e(f'v_cvt_pk_bf16_f32 v{QD+4}, v{QD}, v{QD+1}'); e(f'v_cvt_pk_bf16_f32 v{QD+5}, v{QD+2}, v{QD+3}')
    e(f'buffer_store_dwordx2 v[{QD+4}:{QD+5}], v{TMP+4}, s[32:35], 0 offen')
    stamp(8)
    if STAMP:
        e('s_waitcnt vmcnt(0)'); stamp(9); stamp_store(14)
    if SPIN:
        lab('L_spin')
        e('s_sleep 4'); e('s_memrealtime s[98:99]'); e('s_waitcnt lgkmcnt(0)'); e('s_sub_u32 s98, s98, s100'); e(f's_cmp_lt_u32 s98, {SPIN}'); e('s_cbranch_scc1 L_spin')
    lab('L_end')
    e('s_endpgm')
    lab('L_rescan')
    e('s_lshl_b32 s72, s36, 3')
    lab('L_rs_next')
    e('s_cmp_lg_u64 s[54:55], 0'); e('s_cbranch_scc1 L_rs_have')
    e('s_cmp_eq_u64 s[56:57], 0'); e('s_cbranch_scc1 L_rescan_done')
    e('s_mov_b64 s[54:55], s[56:57]'); e('s_mov_b64 s[56:57], 0'); e('s_add_u32 s72, s72, 128')
    lab('L_rs_have')
    e('s_ff1_i32_b64 s73, s[54:55]')
    e('s_lshl_b64 s[64:65], 0xff, s73'); e('s_andn2_b64 s[54:55], s[54:55], s[64:65]')
    e('s_lshr_b32 s73, s73, 3'); e('s_add_u32 s73, s73, s72')
    e(f's_mul_i32 s73, s73, {CHB}')
    e('s_mov_b32 s74, 0')
    lab('L_rs_loop')
    e(f'v_add_u32 {r("Z")}, s74, {L}')
    e(f'v_lshl_add_u32 {r("T")}, {r("Z")}, 4, s73')
    e(f'v_cmp_gt_u32 vcc, {NQ}, {r("Z")}'); e('s_mov_b64 s[62:63], vcc')
    e(f'v_cmp_gt_u32 vcc, {EB}, {r("T")}'); e('s_and_b64 s[62:63], s[62:63], vcc')
    scan_quads(V['T'],'s[62:63]')
    e('s_add_u32 s74, s74, 64'); e(f's_cmp_lt_u32 s74, {NQ}'); e('s_cbranch_scc1 L_rs_loop')
    e('s_branch L_rs_next')
    lab('L_slow')
    e('s_mov_b32 s67, 1'); e('s_mov_b32 s75, 0')
    lab('L_slow_next')
    e(f's_cmp_ge_u32 s75, {EB}'); e('s_cbranch_scc1 L_epi')
    e('s_barrier')
    list_init(A1)
    stg_zero(A1+8)
    e('s_waitcnt lgkmcnt(0)')
    e('s_barrier')
    e(f'v_lshl_add_u32 {r("T")}, v0, 4, s75')
    e('v_cmp_gt_u32 vcc, 28, v0'); e('s_mov_b64 s[62:63], vcc')
    e(f'v_cmp_gt_u32 vcc, {EB}, {r("T")}'); e('s_and_b64 s[62:63], s[62:63], vcc')
    e('s_cbranch_scc0 L_slow_skip')
    scan_quads(V['T'],'s[62:63]')
    lab('L_slow_skip')
    e('s_add_u32 s75, s75, 448')
    e('s_waitcnt lgkmcnt(0)')
    e('s_barrier')
    e('s_branch L_counts')

def kd(name, nv, ns):
    nva=(nv+3)//4*4
    return ['.p2align 6', f'.amdhsa_kernel {name}', f'  .amdhsa_next_free_vgpr {nv}', f'  .amdhsa_next_free_sgpr {ns}', f'  .amdhsa_accum_offset {nva}',
      '  .amdhsa_group_segment_fixed_size 0','  .amdhsa_kernarg_size 64','  .amdhsa_user_sgpr_count 2','  .amdhsa_user_sgpr_kernarg_segment_ptr 1','  .amdhsa_system_sgpr_workgroup_id_x 1','.end_amdhsa_kernel']
top = hdr + [f'; @launch grid=(256,1,1) block=(1024,1,1) lds={LDS}', '.amdgcn_target "amdgcn-amd-amdhsa--gfx950"','.text',f'.globl {K}']
kernel()
tail=['.section .rodata,"a"']+kd(K,NV,102)
open(OUT,'w').write('\n'.join(top+o+tail)+'\n')
print('vgprs',NV,'lds',LDS, file=sys.stderr)
```

```python
import sys, struct
args=sys.argv[1:]
STAMP = '--stamp' in args
def opt(name, dflt):
    for a in args:
        if a.startswith('--'+name+'='): return int(a.split('=')[1])
    return dflt
TIMEOUT=opt('timeout',4096); PF=opt('pf',0); PFPOS=opt('pfpos',3); SLEEP=opt('sleep',2); DELAY=opt('delay',0)
SPIN=opt('spin',0); SPINAT=opt('spinat',0); SPINCYC=opt('spincyc',0); TR=opt('trace',0); DEC=opt('dec',1); WIN=opt('win',1); ETAB=opt('etab',1); ACK=opt('ack',0); TLB=opt('tlb',0); PRIO=opt('prio',2); PASSW=opt('passw',8)
OUT = [a for a in args if not a.startswith('--')][0]
HDR = open('gather_scatter__kernel_systems_refs_featgraph__graph.s.ref').read().split('\n')
hdr = [l for l in HDR if l.startswith(';') and '@launch' not in l and 'Override' not in l and 'grid=ceil' not in l]
K='gather_scatter__kernel_systems_refs_featgraph__graph_kernel'
N=12500; E=800000; EB=E*4; CHB=12512; NQ=782
XB=N*128
ESTR=16384+128
TABO=0x410000
EPO=0x4a0000
TSTR=2176
o=[]
def e(s): o.append('    '+s)
def lab(s): o.append(s+':')
def f2u(f): return struct.unpack('<I',struct.pack('<f',f))[0]
def srd(d, lo, hi, nrec):
    e(f's_mov_b32 s{d}, s{lo}'); e(f's_mov_b32 s{d+1}, s{hi}'); e(f's_mov_b32 s{d+2}, {nrec}'); e(f's_mov_b32 s{d+3}, 0x20000')
NST=10
def stamp(i):
    if STAMP: e(f's_memrealtime s[{80+2*i}:{81+2*i}]')
    if SPIN and i==SPINAT: e('s_memtime s[100:101]' if SPINCYC else 's_memrealtime s[100:101]')
def tr(lane):
    if not TR: return
    e('s_memrealtime s[78:79]'); e('s_waitcnt lgkmcnt(0)')
    if isinstance(lane,str):
        e(f's_lshl_b64 exec, 1, {lane}'); e('v_mov_b32 v27, s78'); e('s_mov_b64 exec, -1')
    else:
        e(f'v_writelane_b32 v27, s78, {lane}')
def tr_store():
    if not TR: return
    e('s_add_u32 s76, s14, 0xa000000'); e('s_addc_u32 s77, s15, 0')
    e(f's_lshl_b32 s75, s{SP}, 12')
    e('v_lshl_add_u32 v1, v0, 2, s75')
    e('global_store_dword v1, v27, s[76:77]')
def stamp_store(wsreg):
    if not STAMP: return
    e('s_waitcnt lgkmcnt(0)')
    e('v_cmp_eq_u32 vcc, 0, v0')
    e('s_and_saveexec_b64 s[78:79], vcc')
    e(f's_cbranch_execz L_nostamp')
    e(f's_add_u32 s76, s{wsreg}, 0x8000000'); e(f's_addc_u32 s77, s{wsreg+1}, 0')
    e(f's_lshl_b32 s75, s{SP}, 7')
    e('v_mov_b32 v1, s75')
    for i in range(NST):
        e(f'v_mov_b32 v2, s{80+2*i}'); e(f'v_mov_b32 v3, s{81+2*i}')
        e(f'global_store_dwordx2 v1, v[2:3], s[76:77] offset:{8*i}')
        e('s_nop 1')
    lab('L_nostamp')
    e('s_mov_b64 exec, -1')

CNT=0; QS=144; QT=256; WV=QT+64*QS; PC=WV+8192; ST=PC; TOTL=PC+1024; WQ=TOTL+128; XR=WQ+8192; IMG=XR+8192; STG=IMG+15616; LIST=STG+100352; LDS=LIST+12544
assert STG%128==0 and QT%16==0 and WV%16==0 and IMG+16384<=65536 and LDS<=163840
V={}
_n=[1]
def va(name,cnt=1,al=1):
    while _n[0]%al: _n[0]+=1
    V[name]=_n[0]; _n[0]+=cnt
    return V[name]
va('lane'); va('cA'); va('cB'); va('ia'); va('a10'); va('a11'); va('a2',4); va('m',4); va('cs'); va('idx',8); va('qa'); va('Z'); va('T'); V['Pk']=V['T']
va('O',16,4); va('D',4,4); va('Bq',32,4); va('A1',24,4); va('XT01',16,4); va('XT2',8,2)
NV=_n[0]
assert NV<=128, NV
def r(name,i=0,n=1):
    b=V[name]+i
    return f'v{b}' if n==1 else f'v[{b}:{b+n-1}]'
A1=V['A1']; XT3=A1; P01=A1+8; P2=A1+12; P3=A1+14
X0=V['XT01']; TMP=V['XT2']; OO=V['O']; ID=V['idx']
L=r('lane')
DQ=X0; SQ=X0+4; AD=X0+8; RK=X0+12
EPR=ID; T16=V['D']; L16=V['D']+1; FOUR=V['D']+2
SC=A1; TGS=A1+16
XQ=A1; WF=A1+8; QD=V['D']; QAW=ID+4; QAX=ID+5; QAX2=ID+6; QAT=ID+7
TG=[X0+8, X0+10]; GA=[X0, X0+4]; CNTV=[X0+12, X0+13]; TT=X0+14
TOF=TMP; POF=[TMP+1,TMP+2]; J16=TMP+3; TWO=TMP+4
SP=49
M_=0xC0FFC000

def wfrag_addr_q():
    e(f'v_lshrrev_b32 v{TMP}, 4, {L}'); e(f'v_lshlrev_b32 v{TMP}, 10, v{TMP}')
    e(f'v_bfe_u32 v{TMP+1}, {L}, 2, 2'); e(f'v_lshl_add_u32 v{TMP}, v{TMP+1}, 7, v{TMP}')
    e(f'v_and_b32 v{TMP+1}, 3, {L}'); e(f'v_lshl_add_u32 v{TMP}, v{TMP+1}, 3, v{TMP}')
    e('s_and_b32 s3, s36, 3'); e('s_lshl_b32 s3, s3, 5')
    e(f'v_add_u32 v{TMP}, s3, v{TMP}')

_u=[0]
def dma_issue(nc):
    _u[0]+=1; u=_u[0]
    for k in range(nc):
        e(f's_cmp_lt_u32 s43, s{45+k}'); e(f's_cbranch_scc0 D{u}_{k}')
        e(f'v_lshl_add_u32 {r("idx",2*k)}, {r("idx",2*k)}, 7, {r("cA")}')
        e(f's_add_u32 m0, s37, {k*2048}')
        e(f's_cmp_lt_u32 s44, s{45+k}')
        e(f'buffer_load_dwordx4 {r("idx",2*k)}, s[16:19], 0 offen lds')
        e(f's_cbranch_scc0 D{u}_{k}')
        e(f'v_lshl_add_u32 {r("idx",2*k+1)}, {r("idx",2*k+1)}, 7, {r("cB")}')
        e(f's_add_u32 m0, s37, {k*2048+1024}')
        e('s_nop 0')
        e(f'buffer_load_dwordx4 {r("idx",2*k+1)}, s[16:19], 0 offen lds')
        lab(f'D{u}_{k}')
def idx_reads(nc):
    for k in range(nc):
        e(f'ds_read_u16 {r("idx",2*k)}, {r("ia")} offset:{k*4096}')
        e(f'ds_read_u16 {r("idx",2*k+1)}, {r("ia")} offset:{k*4096+16}')

def wv_reads():
    WFE=V['Bq']; a=ID
    e(f'v_lshrrev_b32 v{a}, 2, {L}'); e(f'v_lshlrev_b32 v{a}, 7, v{a}')
    e(f'v_and_b32 v{a+1}, 3, {L}'); e(f'v_lshl_add_u32 v{a}, v{a+1}, 5, v{a}')
    e(f'v_lshlrev_b32 v{a+1}, 1, {L}'); e(f'v_and_b32 v{a+1}, 16, v{a+1}'); e(f'v_or_b32 v{a}, v{a}, v{a+1}'); e(f'v_xor_b32 v{a+1}, 16, v{a}')
    for Mt in range(4):
        for ks in range(2):
            for jh in range(2):
                d=WFE+8*Mt+4*ks+2*jh
                e(f'ds_read_b64_tr_b16 v[{d}:{d+1}], v{a+(Mt>>1)} offset:{WV+(2*ks+jh)*2048+8*(Mt&1)}')

def main_loop(nc):
    t=f'M{nc}'
    e(f'v_add_u32 {r("ia")}, s3, {r("Z")}')
    idx_reads(nc)
    e('s_lshl_b32 s43, s42, 1'); e('s_sub_u32 s44, s43, 1'); e('s_sub_u32 s43, s43, 2')
    e('s_waitcnt lgkmcnt(0)')
    dma_issue(nc)
    tr(11)
    lab(f'{t}_loop')
    if PRIO==2:
        e('s_setprio 3'); e('s_cmp_gt_u32 s42, 3'); e(f's_cbranch_scc1 {t}_pd')
        e('s_setprio 2'); e('s_cmp_gt_u32 s42, 2'); e(f's_cbranch_scc1 {t}_pd')
        e('s_setprio 1'); e('s_cmp_gt_u32 s42, 1'); e(f's_cbranch_scc1 {t}_pd')
        e('s_setprio 0')
        lab(f'{t}_pd')
    e(f'v_subrev_u32 {r("ia")}, 32, {r("ia")}')
    e('s_sub_u32 s42, s42, 1'); e('s_sub_u32 s43, s43, 2'); e('s_sub_u32 s44, s44, 2')
    idx_reads(nc)
    e('s_waitcnt vmcnt(0)')
    tr('s42')
    for k in range(3):
        e(f'ds_read_b128 {r("A1",8*k,4)}, {r("a10")} offset:{k*2048}')
        e(f'ds_read_b128 {r("A1",8*k+4,4)}, {r("a11")} offset:{k*2048}')
    trl=[]
    for k in range(3):
        for f in range(4):
            d = V['XT01']+4*f+2*k if k<2 else V['XT2']+2*f
            trl.append(f'ds_read_b64_tr_b16 v[{d}:{d+1}], {r("a2",f)} offset:{k*2048}')
    for x in trl[:6]: e(x)
    e('s_waitcnt lgkmcnt(10)')
    e(f'v_mfma_f32_16x16x32_bf16 {r("D",0,4)}, {r("A1",0,4)}, {r("Bq",0,4)}, 0')
    e(f'v_mfma_f32_16x16x32_bf16 {r("D",0,4)}, {r("A1",4,4)}, {r("Bq",4,4)}, {r("D",0,4)}')
    for x in trl[6:]: e(x)
    if nc==4:
        e(f'ds_read_b128 {r("A1",0,4)}, {r("a10")} offset:{3*2048}')
        e(f'ds_read_b128 {r("A1",4,4)}, {r("a11")} offset:{3*2048}')
        e('s_waitcnt lgkmcnt(14)')
    else:
        e('s_waitcnt lgkmcnt(12)')
    for k in (1,2):
        e(f'v_mfma_f32_16x16x32_bf16 {r("D",0,4)}, {r("A1",8*k,4)}, {r("Bq",8*k,4)}, {r("D",0,4)}')
        e(f'v_mfma_f32_16x16x32_bf16 {r("D",0,4)}, {r("A1",8*k+4,4)}, {r("Bq",8*k+4,4)}, {r("D",0,4)}')
    if nc==4:
        e('s_waitcnt lgkmcnt(0)')
        e(f'v_mfma_f32_16x16x32_bf16 {r("D",0,4)}, {r("A1",0,4)}, {r("Bq",24,4)}, {r("D",0,4)}')
        e(f'v_mfma_f32_16x16x32_bf16 {r("D",0,4)}, {r("A1",4,4)}, {r("Bq",28,4)}, {r("D",0,4)}')
        for f in range(4):
            e(f'ds_read_b64_tr_b16 v[{XT3+2*f}:{XT3+2*f+1}], {r("a2",f)} offset:{3*2048}')
    e('s_waitcnt lgkmcnt(0)')
    e('s_cmp_eq_u32 s42, 0')
    e(f's_cbranch_scc1 {t}_last')
    dma_issue(nc)
    lab(f'{t}_nodma')
    if TR: e('s_add_u32 s75, s42, 16'); tr('s75')
    e('s_nop 7')
    e(f'v_mul_f32 {r("Z")}, {r("D",0)}, {r("cs")}')
    for i in (1,2,3):
        e(f'v_mul_f32_dpp {r("Z")}, {r("D",i)}, {r("cs")} row_shr:{4*i} row_mask:0xf bank_mask:{1<<i:#x}')
    e(f'v_exp_f32 {r("Z")}, {r("Z")}')
    e('s_nop 0')
    e(f'v_add_f32 {r("Z")}, 1.0, {r("Z")}')
    e(f'v_rcp_f32 {r("Z")}, {r("Z")}')
    e('s_nop 1')
    e(f'v_mov_b32_dpp {r("T")}, {r("Z")} row_shl:4 row_mask:0xf bank_mask:0xf bound_ctrl:0')
    e(f'v_cvt_pk_bf16_f32 {r("Pk")}, {r("Z")}, {r("T")}')
    dsts=[P01,P01+2,P2,P3]
    for k in range(nc):
        e(f'v_and_b32 v{dsts[k]}, {r("Pk")}, {r("m",k)}')
    for k in range(nc):
        e(f'v_and_b32_dpp v{dsts[k]+1}, {r("Pk")}, {r("m",k)} row_shl:8 row_mask:0xf bank_mask:0xf bound_ctrl:0')
    e('s_nop 1')
    for f in range(4):
        e(f'v_mfma_f32_16x16x32_bf16 {r("O",4*f,4)}, {r("XT01",4*f,4)}, v[{P01}:{P01+3}], {r("O",4*f,4)}')
    for f in range(4):
        e(f'v_mfma_f32_16x16x16_bf16 {r("O",4*f,4)}, {r("XT2",2*f,2)}, v[{P2}:{P2+1}], {r("O",4*f,4)}')
    if nc==4:
        for f in range(4):
            e(f'v_mfma_f32_16x16x16_bf16 {r("O",4*f,4)}, v[{XT3+2*f}:{XT3+2*f+1}], v[{P3}:{P3+1}], {r("O",4*f,4)}')
    e('s_cmp_lg_u32 s42, 0')
    e(f's_cbranch_scc1 {t}_loop')
    e('s_branch L_loop_done')
    lab(f'{t}_last')
    e('s_cmp_lg_u32 s67, 0'); e(f's_cbranch_scc1 {t}_nodma')
    wv_reads()
    e(f's_branch {t}_nodma')

def list_init(t):
    for i in range(4): e(f'v_mov_b32 v{t+i}, -1')
    e(f'v_lshlrev_b32 v{t+4}, 4, v0')
    e(f'v_add_u32 v{t+4}, {LIST}, v{t+4}')
    e('v_cmp_gt_u32 vcc, 784, v0')
    e('s_mov_b64 exec, vcc')
    e(f'ds_write_b128 v{t+4}, v[{t}:{t+3}]')
    e('s_mov_b64 exec, -1')
    _u[0]+=1; u=_u[0]
    e('s_cmp_lg_u32 s36, 14'); e(f's_cbranch_scc1 I{u}')
    e(f'v_lshlrev_b32 v{t+5}, 2, {L}')
    e(f'v_lshlrev_b32 v{t+6}, 8, {L}'); e(f'v_add_u32 v{t+6}, {LIST}, v{t+6}')
    e(f'v_writelane_b32 v{t+6}, s40, 63')
    e(f'ds_write_b32 v{t+5}, v{t+6} offset:{CNT}')
    lab(f'I{u}')
def stg_zero(t):
    for i in range(4): e(f'v_mov_b32 v{t+i}, 0')
    e(f'v_lshl_add_u32 v{t+4}, {L}, 4, s37')
    for i in range(6): e(f'ds_write_b128 v{t+4}, v[{t}:{t+3}] offset:{1024*i}')
    _u[0]+=1; u=_u[0]
    e('s_cmp_lg_u32 s36, 0'); e(f's_cbranch_scc1 Z{u}')
    for i in (6,7): e(f'ds_write_b128 v{t+4}, v[{t}:{t+3}] offset:{1024*i}')
    lab(f'Z{u}')

def insert_entries(groups, tr_, two):
    n=sum(len(g[1]) for g in groups)
    i=0
    for m,regs in groups:
        e(f's_mov_b64 exec, {m}')
        for x in regs:
            e(f'v_lshrrev_b32 v{tr_+i}, 22, v{x}')
            e(f'ds_add_rtn_u32 v{tr_+i}, v{tr_+i}, v{two} offset:{CNT}')
            i+=1
    i=0
    for m,regs in groups:
        e(f's_mov_b64 exec, {m}')
        for x in regs:
            e(f's_waitcnt lgkmcnt({n-1})')
            e(f'ds_write_b16 v{tr_+i}, v{x}')
            i+=1
    e('s_mov_b64 exec, -1')

def scan_quads(off, vmask):
    e(f's_mov_b64 exec, {vmask}')
    e(f'buffer_load_dwordx4 v[{DQ}:{DQ+3}], v{off}, s[20:23], 0 offen')
    e(f'buffer_load_dwordx4 v[{SQ}:{SQ+3}], v{off}, s[24:27], 0 offen')
    e(f'v_mov_b32 v{RK}, 2')
    e('s_mov_b32 s3, 0x050c0100')
    e('s_waitcnt vmcnt(0)')
    ms=['s[42:43]','s[44:45]','s[46:47]','s[64:65]']
    for i in range(4):
        e(f'v_and_b32 v{AD+i}, 0xff, v{DQ+i}')
        e(f'v_cmp_eq_u32 {ms[i]}, s2, v{AD+i}')
        e(f'v_perm_b32 v{SQ+i}, v{DQ+i}, v{SQ+i}, s3')
    insert_entries([(ms[i],[SQ+i]) for i in range(4)], AD, RK)

def pf_loads():
    if not PF: return
    e(f's_lshr_b32 s3, s{SP}, 3'); e('s_mul_i32 s3, s3, 50000')
    e('s_add_u32 s96, s4, s3'); e('s_addc_u32 s97, s5, 0'); e('s_mov_b32 s98, 50000'); e('s_mov_b32 s99, 0x20000')
    e(f'v_lshlrev_b32 v{TMP+6}, 6, v0')
    e(f'buffer_load_dword v{TMP+5}, v{TMP+6}, s[96:99], 0 offen')

def expand_bytes(p):
    e(f's_lshr_b64 s[64:65], s[{p}:{p+1}], 1'); e(f's_or_b64 s[{p}:{p+1}], s[{p}:{p+1}], s[64:65]')
    e(f's_lshr_b64 s[64:65], s[{p}:{p+1}], 2'); e(f's_or_b64 s[{p}:{p+1}], s[{p}:{p+1}], s[64:65]')
    e(f's_lshr_b64 s[64:65], s[{p}:{p+1}], 4'); e(f's_or_b64 s[{p}:{p+1}], s[{p}:{p+1}], s[64:65]')
    e(f's_and_b32 s{p}, s{p}, 0x01010101'); e(f's_and_b32 s{p+1}, s{p+1}, 0x01010101')
    e(f's_mul_i32 s{p}, s{p}, 0xff'); e(f's_mul_i32 s{p+1}, s{p+1}, 0xff')

def kernel():
    o.append('.p2align 8'); o.append(f'.type {K},@function'); lab(K)
    e('s_cmp_ge_u32 s2, 256'); e('s_cbranch_scc1 L_end')
    stamp(0)
    if TR: e('v_mov_b32 v27, 0'); tr(8)
    e('s_load_dwordx4 s[4:7], s[0:1], 0')
    e('s_load_dwordx2 s[38:39], s[0:1], 16')
    e('s_load_dwordx2 s[14:15], s[0:1], 56')
    e('s_load_dwordx4 s[8:11], s[0:1], 24')
    e('s_load_dwordx2 s[12:13], s[0:1], 40')
    t0,t1,t2,t3=A1+8,A1+9,A1+10,A1+11
    e(f'v_lshrrev_b32 v{t0}, 6, v0')
    e(f'v_lshlrev_b32 v{T16}, 4, v0')
    e(f'v_readfirstlane_b32 s36, v{t0}')
    e(f'v_and_b32 {L}, 63, v0')
    e(f's_mul_i32 s42, s2, {CHB}')
    e(f'v_add_u32 v{t1}, s42, v{T16}')
    e(f'v_mov_b32 v{t2}, 0')
    e(f's_mov_b32 s22, {EB}'); e('s_mov_b32 s23, 0x20000'); e(f's_mov_b32 s26, {EB}'); e('s_mov_b32 s27, 0x20000')
    e(f's_mov_b32 s70, 16'); e('s_mov_b32 s71, 0x20000')
    e(f'v_cmp_gt_u32 vcc, {NQ}, v0'); e('s_mov_b64 s[62:63], vcc')
    e(f'v_cmp_gt_u32 vcc, {EB}, v{t1}'); e('s_and_b64 s[62:63], s[62:63], vcc')
    for i in range(4): e(f'v_mov_b32 v{A1+i}, 0x3f000000')
    e(f'v_cmp_gt_u32 vcc, {15616//16}, v0')
    e('s_mov_b64 exec, vcc')
    e(f'ds_write_b128 v{T16}, v[{A1}:{A1+3}] offset:{IMG}')
    e('s_mov_b64 exec, -1')
    e(f'v_lshlrev_b32 v{A1+4}, 2, v0')
    e('s_cmp_lt_u32 s36, 4'); e('s_cbranch_scc0 L_nopc')
    e(f'ds_write_b32 v{A1+4}, v{t2} offset:{PC}')
    lab('L_nopc')
    e(f's_mov_b32 s{SP}, s2')
    e('s_and_b32 s3, s2, 7'); e('s_lshl_b32 s3, s3, 5'); e('s_lshr_b32 s2, s2, 3'); e('s_or_b32 s2, s2, s3')
    e('s_waitcnt lgkmcnt(0)')
    stamp(1)
    e('s_mov_b32 s20, s38'); e('s_mov_b32 s21, s39'); e('s_mov_b32 s24, s6'); e('s_mov_b32 s25, s7')
    e(f's_add_u32 s68, s14, {EPO}'); e('s_addc_u32 s69, s15, 0')
    e(f'buffer_load_dwordx4 v[{EPR}:{EPR+3}], v{t2}, s[68:71], 0 offen sc1')
    e('s_mov_b64 exec, s[62:63]')
    e(f'buffer_load_dwordx4 v[{DQ}:{DQ+3}], v{t1}, s[20:23], 0 offen')
    e(f'buffer_load_dwordx4 v[{SQ}:{SQ+3}], v{t1}, s[24:27], 0 offen')
    e('s_mov_b64 exec, -1')
    e('s_barrier')
    e(f'v_lshlrev_b32 v{L16}, 4, {L}')
    e(f'v_and_b32 v{t0}, 16, {L}'); e(f'v_xor_b32 v{t0}, v{t0}, v{L16}')
    e('s_and_b32 s39, s36, 7'); e('s_lshl_b32 s39, s39, 10')
    e('s_cmp_lt_u32 s36, 8')
    e('s_cselect_b32 s28, s8, s10'); e('s_cselect_b32 s29, s9, s11'); e('s_mov_b32 s30, 8192'); e('s_mov_b32 s31, 0x20000')
    e(f's_cselect_b32 s3, {WQ-WV}, 0')
    e(f's_add_u32 s3, s3, {WV}')
    e('s_add_u32 m0, s3, s39')
    srd(16,4,5,XB)
    e(f'buffer_load_dwordx4 v{t0}, s[28:31], s39 offen lds')
    e(f'v_bfe_u32 v{t0}, v0, 3, 6')
    e(f'v_lshlrev_b32 v{t0}, 15, v{t0}')
    e(f'v_lshrrev_b32 v{t3}, 3, {L}'); e(f'v_xor_b32 v{t3}, v{t3}, {L}'); e(f'v_and_b32 v{t3}, 7, v{t3}')
    e(f'v_lshl_add_u32 v{t0}, v{t3}, 4, v{t0}')
    e('s_lshl_b32 s38, s2, 7')
    e(f's_add_u32 m0, s39, {XR}')
    e(f'v_mov_b32 v{FOUR}, 4')
    e(f'buffer_load_dwordx4 v{t0}, s[16:19], s38 offen lds')
    if PFPOS==1: pf_loads()
    N1=1 if (PF and PFPOS==1) else 0
    N2=1 if (PF and PFPOS<=2) else 0
    N3=1 if PF else 0
    if TLB:
        srd(96,14,15,0x600000)
        e(f's_mov_b32 s3, {120*ESTR}'); e(f'v_mul_u32_u24 v{t0}, s3, {L}'); e(f'v_add_u32 v{t0}, {10*ESTR+16384}, v{t0}')
        e('s_mov_b64 exec, 7')
        e(f'buffer_load_dword v{A1+15}, v{t0}, s[96:99], 0 offen')
        e('s_mov_b64 exec, -1')
    e('s_mov_b32 s48, 0x050c0100'); e('s_mov_b32 s40, 0x30000')
    e('s_add_u32 s3, s36, 15'); e('s_and_b32 s3, s3, 15'); e('s_mul_i32 s37, s3, 6144'); e(f's_add_u32 s37, s37, {STG}')
    if not WIN:
        list_init(A1)
        stg_zero(A1+16)
    e(f's_mul_i32 s3, s{SP}, {ESTR}'); e('s_add_u32 s28, s14, s3'); e('s_addc_u32 s29, s15, 0'); e('s_mov_b32 s30, 16384'); e('s_mov_b32 s31, 0x20000')
    e(f's_mul_i32 s3, s{SP}, {TSTR}'); e(f's_add_u32 s3, s3, {TABO}'); e('s_add_u32 s32, s14, s3'); e('s_addc_u32 s33, s15, 0'); e('s_mov_b32 s34, 2048'); e('s_mov_b32 s35, 0x20000')
    e('s_lshl_b32 s41, s36, 8'); e(f's_add_u32 s41, s41, {LIST-32}')
    e('s_mov_b32 s6, 0x00010001'); e('s_mov_b32 s7, 0x00010001')
    e(f'v_lshrrev_b32 v{t1}, 4, {L}')
    e(f'v_lshrrev_b32 v{t0}, 3, {L}'); e(f'v_and_b32 v{t0}, 6, v{t0}'); e(f'v_and_b32 v{t2}, 7, {L}')
    e(f'v_lshlrev_b32 v{J16}, 4, v{t2}')
    e(f'v_xor_b32 v{t0}, v{t0}, v{t2}'); e(f'v_lshlrev_b32 {r("cA")}, 4, v{t0}'); e(f'v_xor_b32 {r("cB")}, 16, {r("cA")}')
    e(f'v_and_b32 v{t0}, 6, {L}'); e(f'v_bfe_u32 v{t2}, {L}, 3, 1'); e(f'v_or_b32 v{t0}, v{t0}, v{t2}')
    e(f'v_lshlrev_b32 v{t2}, 1, v{t1}'); e(f'v_xor_b32 v{t0}, v{t0}, v{t2}'); e(f'v_lshlrev_b32 v{t0}, 4, v{t0}')
    e(f'v_and_b32 v{t2}, 15, {L}'); e(f'v_lshl_add_u32 v{t0}, v{t2}, 7, v{t0}')
    e(f'v_add_u32 {r("a10")}, s37, v{t0}'); e(f'v_xor_b32 {r("a11")}, 16, {r("a10")}')
    for k in range(4):
        e(f'v_cmp_eq_u32 s[64:65], {k}, v{t2}'); e('s_nop 1'); e(f'v_cndmask_b32 {r("m",k)}, 0, -1, s[64:65]')
    e(f'v_lshlrev_b32 v{t0}, 4, v{t2}'); e(f'v_add_u32 v{t0}, s36, v{t0}'); e(f's_movk_i32 s3, {QS}'); e(f'v_mul_u32_u24 v{t0}, s3, v{t0}')
    e(f'v_lshl_add_u32 {r("qa")}, v{t1}, 5, v{t0}')
    e('s_lshr_b32 s3, s36, 2'); e('s_lshl_b32 s3, s3, 4'); e(f'v_add_u32 v{t2}, s3, v{t2}')
    e(f'v_and_b32 v{t0}, 7, {L}'); e(f'v_xor_b32 v{t0}, v{t0}, v{t1}'); e(f'v_lshlrev_b32 v{t0}, 4, v{t0}')
    e(f'v_lshl_add_u32 v{QAX}, v{t2}, 7, v{t0}'); e(f'v_xor_b32 v{QAX2}, 64, v{QAX}')
    e(f's_movk_i32 s3, {QS}'); e(f'v_mul_u32_u24 v{t2}, s3, v{t2}')
    e(f'v_lshl_add_u32 v{t2}, v{t1}, 3, v{t2}')
    e('s_and_b32 s3, s36, 3'); e('s_lshl_b32 s3, s3, 5'); e(f'v_add_u32 v{QAT}, s3, v{t2}')
    e(f'v_lshlrev_b32 v{t0}, 10, v{t1}'); e(f'v_bfe_u32 v{t2}, {L}, 2, 2'); e(f'v_lshl_add_u32 v{t0}, v{t2}, 7, v{t0}')
    e(f'v_and_b32 v{t2}, 3, {L}'); e(f'v_lshl_add_u32 v{t0}, v{t2}, 3, v{t0}'); e(f'v_add_u32 v{t0}, s3, v{t0}')
    e(f'v_lshlrev_b32 v{t2}, 1, {L}'); e(f'v_and_b32 v{t2}, 16, v{t2}'); e(f'v_xor_b32 v{QAW}, v{t0}, v{t2}')
    e(f'v_lshrrev_b32 v{t0}, 2, {L}')
    e(f'v_and_b32 v{t2}, 6, v{t0}'); e(f'v_lshrrev_b32 v{t3}, 3, v{t0}'); e(f'v_or_b32 v{t2}, v{t2}, v{t3}')
    e(f'v_bfe_u32 v{t3}, {L}, 1, 1'); e(f'v_xor_b32 v{t2}, v{t2}, v{t3}'); e(f'v_lshlrev_b32 v{t2}, 4, v{t2}')
    e(f'v_lshl_add_u32 v{t2}, v{t0}, 7, v{t2}')
    e(f'v_and_b32 v{t3}, 1, {L}'); e(f'v_lshl_add_u32 v{t2}, v{t3}, 3, v{t2}')
    e(f'v_add_u32 {r("a2",0)}, s37, v{t2}')
    for f in (1,2,3): e(f'v_xor_b32 {r("a2",f)}, {32*f}, {r("a2",0)}')
    e(f'v_mov_b32 {r("cs")}, {f2u(-0.125*1.4426950408889634):#x}')
    e(f'v_lshrrev_b32 v{t0}, 3, {L}'); e('s_lshl_b32 s3, s36, 4'); e(f'v_add_u32 v{t0}, s3, v{t0}')
    e(f's_movk_i32 s3, {TSTR}'); e(f'v_mul_u32_u24 v{TOF}, s3, v{t0}'); e('s_lshl_b32 s3, s2, 3'); e(f'v_add_u32 v{TOF}, s3, v{TOF}')
    e(f's_movk_i32 s3, {ESTR}'); e(f'v_mad_u32_u24 v{POF[0]}, v{t0}, s3, v{J16}')
    e(f'v_add_u32 v{POF[1]}, {8*ESTR}, v{POF[0]}')
    e(f's_add_u32 s68, s14, {TABO}'); e('s_addc_u32 s69, s15, 0'); e(f's_mov_b32 s70, {256*TSTR}'); e('s_mov_b32 s71, 0x20000')
    e(f's_movk_i32 s39, {8*TSTR}')
    e(f'v_mov_b32 v{TWO}, 2')
    if not WIN:
        for i in range(32): e(f'v_mov_b32 {r("Bq",i)}, 0')
        for i in range(16): e(f'v_mov_b32 {r("O",i)}, 0')
    e('s_mov_b64 s[56:57], -1'); e('s_mov_b64 s[58:59], -1')
    e(f's_movk_i32 s66, {TIMEOUT}'); e('s_mov_b32 s67, 0')
    e(f's_mov_b32 s46, {M_:#x}'); e('s_mov_b32 s47, 0xffc00000')
    e(f's_waitcnt vmcnt({4+TLB+N1})')
    for i in range(4): e(f'v_readfirstlane_b32 s{50+i}, v{EPR+i}')
    e('s_bfe_u32 s42, s51, 0xa000e'); e('s_bfe_u32 s43, s52, 0xa000e'); e('s_bfe_u32 s44, s53, 0xa000e')
    e('s_lshl_b32 s43, s43, 10'); e('s_lshl_b32 s44, s44, 20'); e('s_or_b32 s42, s42, s43'); e('s_or_b32 s42, s42, s44')
    e('s_add_u32 s42, s42, 1')
    e(f's_and_b32 s50, s50, {M_:#x}')
    for i,sh in ((1,0),(2,10),(3,20)):
        e(f's_and_b32 s{50+i}, s{50+i}, 0xc0000000')
        e(f's_bfe_u32 s43, s42, {0xa0000|sh:#x}'); e('s_lshl_b32 s43, s43, 14'); e(f's_or_b32 s{50+i}, s{50+i}, s43')
    e('s_lshr_b32 s43, s42, 10'); e('s_and_b32 s55, s43, 0x3fff'); e('s_and_b32 s43, s42, 0x3f000000')
    e('s_or_b32 s55, s55, s43'); e('s_or_b32 s55, s55, s51')
    e('s_lshl_b32 s54, s50, 8'); e('s_and_b32 s54, s54, 0xffc00000')
    e('s_mov_b64 exec, s[62:63]')
    e(f's_waitcnt vmcnt({3+TLB+N1})')
    stamp(2); tr(15)
    for i in range(4):
        e(f'v_lshlrev_b32_sdwa v{AD+i}, 2, v{DQ+i} dst_sel:DWORD dst_unused:UNUSED_PAD src0_sel:DWORD src1_sel:BYTE_0')
    for i in range(4):
        e(f'ds_add_rtn_u32 v{RK+i}, v{AD+i}, v{FOUR} offset:{PC}')
    e('s_mov_b64 exec, -1')
    if PFPOS==2: pf_loads()
    e('s_waitcnt lgkmcnt(0)')
    e('s_barrier')
    stamp(3); tr(43)
    c=SC; pc=SC+4; st=SC+8; tot=SC+12; inc=SC+13; tg=TGS
    e('s_cmp_lg_u32 s36, 15'); e('s_cbranch_scc1 L_noscan')
    e('s_setprio 3')
    e(f'ds_read_b128 v[{c}:{c+3}], v{L16} offset:{PC}')
    e(f'v_mov_b32 v{tot+2}, 0')
    e('s_waitcnt lgkmcnt(0)')
    for i in range(4):
        e(f'v_add_u32 v{pc+i}, 15, v{c+i}')
    for i in range(4):
        e(f'v_and_b32 v{pc+i}, -16, v{pc+i}')
    e(f'v_add_u32 v{st+2}, v{pc}, v{pc+1}'); e(f'v_add_u32 v{st+3}, v{st+2}, v{pc+2}'); e(f'v_add_u32 v{tot}, v{st+3}, v{pc+3}')
    e(f'v_mov_b32 v{inc}, v{tot}')
    for sh in (1,2,4,8):
        e('s_nop 1'); e(f'v_add_u32_dpp v{inc}, v{inc}, v{inc} row_shr:{sh} row_mask:0xf bank_mask:0xf bound_ctrl:0')
    e('s_nop 1'); e(f'v_add_u32_dpp v{inc}, v{inc}, v{inc} row_bcast:15 row_mask:0xa bank_mask:0xf')
    e('s_nop 1'); e(f'v_add_u32_dpp v{inc}, v{inc}, v{inc} row_bcast:31 row_mask:0xc bank_mask:0xf')
    e(f'v_sub_u32 v{st}, v{inc}, v{tot}')
    e(f'v_add_u32 v{st+1}, v{st}, v{pc}'); e(f'v_add_u32 v{st+2}, v{st}, v{st+2}'); e(f'v_add_u32 v{st+3}, v{st}, v{st+3}')
    e(f'ds_write_b128 v{L16}, v[{st}:{st+3}] offset:{ST}')
    e('s_lshl_b64 exec, 1, 63')
    e(f'ds_write_b32 v{tot+2}, v{inc} offset:{TOTL}')
    e('s_mov_b64 exec, -1')
    e('s_waitcnt lgkmcnt(0)')
    e('s_setprio 0')
    e('s_barrier')
    for i in range(4):
        e(f'v_lshrrev_b32 v{tg+2*i}, 4, v{st+i}')
        e(f'v_lshl_or_b32 v{tg+2*i}, v{c+i}, 8, v{tg+2*i}')
        e(f'v_or_b32 v{tg+2*i}, s54, v{tg+2*i}')
        e(f'v_mov_b32 v{tg+2*i+1}, s55')
    if ETAB:
        e(f'v_lshlrev_b32 v{tot}, 1, v{L16}')
        e(f'buffer_store_dwordx4 v[{tg}:{tg+3}], v{tot}, s[32:35], 0 offen sc1')
        e(f'buffer_store_dwordx4 v[{tg+4}:{tg+7}], v{tot}, s[32:35], 0 offen offset:16 sc1')
        e(f'v_readlane_b32 s42, v{inc}, 63')
        e('s_nop 1')
        e(f'v_cmp_gt_u32 vcc, s42, v{T16}')
        e(f's_waitcnt lgkmcnt(0)' if DEC else f's_waitcnt vmcnt(2) lgkmcnt(0)')
        e('s_branch L_scanned2')
    e(f'v_readlane_b32 s42, v{inc}, 63')
    e('s_branch L_scanned')
    lab('L_noscan')
    e(f'v_mov_b32 v{tot}, 0')
    e('s_mov_b64 exec, s[62:63]')
    e(f's_waitcnt vmcnt({2+TLB+N2})')
    for i in range(4):
        e(f'v_perm_b32 v{SQ+i}, v{DQ+i}, v{SQ+i}, s48')
    e('s_barrier')
    for i in range(4):
        e(f'ds_read_b32 v{AD+i}, v{AD+i} offset:{ST}')
    e('s_mov_b64 exec, -1')
    e(f'ds_read_b32 v{tot}, v{tot} offset:{TOTL}')
    e('s_mov_b64 exec, s[62:63]')
    for i in range(4):
        e(f's_waitcnt lgkmcnt(4)')
        e(f'v_add_u32 v{AD+i}, v{AD+i}, v{RK+i}')
        e(f'ds_write_b32 v{AD+i}, v{SQ+i} offset:{IMG}')
    e('s_mov_b64 exec, -1')
    e('s_waitcnt lgkmcnt(4)')
    e(f'v_readfirstlane_b32 s42, v{tot}')
    lab('L_scanned')
    e(f'v_lshlrev_b32 v{L16}, 1, v{L16}')
    e('s_nop 0')
    e(f'v_cmp_gt_u32 vcc, s42, v{T16}')
    e(f's_waitcnt lgkmcnt(0)' if DEC else f's_waitcnt vmcnt(0) lgkmcnt(0)')
    lab('L_scanned2')
    e('s_barrier')
    def qreads():
        for ks in range(2):
            for jh in range(2):
                e(f'ds_read_b64_tr_b16 v[{WF+4*ks+2*jh}:{WF+4*ks+2*jh+1}], v{QAW} offset:{WQ+ks*4096+jh*512}')
        e(f'ds_read_b128 v[{XQ}:{XQ+3}], v{QAX} offset:{XR}'); e(f'ds_read_b128 v[{XQ+4}:{XQ+7}], v{QAX2} offset:{XR}')
    e(f'ds_read_b128 v[{DQ}:{DQ+3}], v{T16} offset:{IMG}')
    if not DEC: qreads()
    e(f's_waitcnt lgkmcnt({0 if DEC else 6})')
    for i in range(4): e(f'v_xor_b32 v{DQ+i}, s{50+i}, v{DQ+i}')
    e('s_mov_b64 exec, vcc')
    e(f'buffer_store_dwordx4 v[{DQ}:{DQ+3}], v{T16}, s[28:31], 0 offen sc1')
    e('s_mov_b64 exec, -1')
    stamp(4); tr(12)
    if PFPOS==3: pf_loads()
    srd(32,12,13,XB)
    srd(28,14,15,256*ESTR)
    if DEC:
        list_init(A1+16)
        for i in range(16): e(f'v_mov_b32 {r("O",i)}, 0')
        e(f'v_lshl_add_u32 v{TMP+7}, {L}, 4, s37')
        for i in range(6): e(f'ds_write_b128 v{TMP+7}, {r("O",0,4)} offset:{1024*i}')
        e('s_cmp_lg_u32 s36, 0'); e(f's_cbranch_scc1 ZW')
        for i in (6,7): e(f'ds_write_b128 v{TMP+7}, {r("O",0,4)} offset:{1024*i}')
        lab('ZW')
        e('s_cmp_lg_u32 s36, 15'); e('s_cbranch_scc1 W1')
        e(f's_waitcnt vmcnt({3+N3})'); e('s_branch W2')
        lab('W1')
        e(f's_waitcnt vmcnt({1+N3})')
        lab('W2')
        e('s_barrier')
        qreads()
    e('s_waitcnt lgkmcnt(0)')
    e(f'v_mfma_f32_16x16x32_bf16 v[{QD}:{QD+3}], v[{WF}:{WF+3}], v[{XQ}:{XQ+3}], 0')
    e(f'v_mfma_f32_16x16x32_bf16 v[{QD}:{QD+3}], v[{WF+4}:{WF+7}], v[{XQ+4}:{XQ+7}], v[{QD}:{QD+3}]')
    if WIN:
        for i in range(32): e(f'v_mov_b32 {r("Bq",i)}, 0')
    else:
        e('s_nop 7')
    e(f'v_cvt_pk_bf16_f32 v{A1}, v{QD}, v{QD+1}'); e(f'v_cvt_pk_bf16_f32 v{A1+1}, v{QD+2}, v{QD+3}')
    e(f'ds_write_b64 v{QAT}, v[{A1}:{A1+1}] offset:{QT}')
    if WIN and not DEC:
        list_init(A1+8)
        for i in range(16): e(f'v_mov_b32 {r("O",i)}, 0')
        e(f'v_lshl_add_u32 v{A1+2}, {L}, 4, s37')
        for i in range(6): e(f'ds_write_b128 v{A1+2}, {r("O",0,4)} offset:{1024*i}')
        e('s_cmp_lg_u32 s36, 0'); e(f's_cbranch_scc1 ZW')
        for i in (6,7): e(f'ds_write_b128 v{A1+2}, {r("O",0,4)} offset:{1024*i}')
        lab('ZW')
    e('s_waitcnt lgkmcnt(0)')
    tr(42)
    e('s_barrier')
    if ACK: e('s_waitcnt vmcnt(0)'); tr(44)
    if DELAY: e(f's_sleep {DELAY}')
    e(f'buffer_load_dwordx2 v[{TG[0]}:{TG[0]+1}], v{TOF}, s[68:71], 0 offen sc1')
    e(f'buffer_load_dwordx2 v[{TG[1]}:{TG[1]+1}], v{TOF}, s[68:71], s39 offen sc1')
    for k in range(4):
        e(f's_lshl_b64 exec, s[6:7], {k}')
        e(f'ds_read_b128 {r("Bq",8*k,4)}, {r("qa")} offset:{QT}')
        e(f'ds_read_b128 {r("Bq",8*k+4,4)}, {r("qa")} offset:{QT+16}')
    e('s_mov_b64 exec, -1')
    lab('L_tpoll')
    for s_ in range(2):
        p=f's[{56+2*s_}:{57+2*s_}]'
        e(f's_mov_b64 exec, {p}')
        e(f's_waitcnt vmcnt({1-s_})')
        e(f'v_xor_b32 v{TG[s_]}, s54, v{TG[s_]}'); e(f'v_xor_b32 v{TT}, s55, v{TG[s_]+1}')
        e(f'v_and_or_b32 v{TT}, v{TG[s_]}, s47, v{TT}')
        e(f'v_cmp_ne_u32 {p}, 0, v{TT}')
    e('s_mov_b64 exec, -1')
    if TR:
        e(f's_cmp_lg_u32 s66, {TIMEOUT}'); e('s_cbranch_scc1 L_tr6'); tr(6); lab('L_tr6')
    e('s_or_b64 s[64:65], s[56:57], s[58:59]')
    e('s_cbranch_scc0 L_tdone')
    e('s_sub_u32 s66, s66, 1')
    e('s_cbranch_scc1 L_tdone')
    if SLEEP: e(f's_sleep {SLEEP}')
    e('s_mov_b64 exec, s[56:57]')
    e(f'buffer_load_dwordx2 v[{TG[0]}:{TG[0]+1}], v{TOF}, s[68:71], 0 offen sc1')
    e('s_mov_b64 exec, s[58:59]')
    e(f'buffer_load_dwordx2 v[{TG[1]}:{TG[1]+1}], v{TOF}, s[68:71], s39 offen sc1')
    e('s_branch L_tpoll')
    lab('L_tdone')
    tr(7)
    if TR: e('v_writelane_b32 v27, s66, 40')
    for s_ in range(2):
        e(f'v_bfe_u32 v{CNTV[s_]}, v{TG[s_]}, 10, 12')
        e(f'v_lshlrev_b32 v{CNTV[s_]}, 2, v{CNTV[s_]}')
        e(f'v_and_b32 v{TT}, 0x3ff, v{TG[s_]}')
        e(f'v_lshl_add_u32 v{POF[s_]}, v{TT}, 4, v{POF[s_]}')
    lab('L_pass')
    for s_ in range(2):
        p=f's[{60+2*s_}:{61+2*s_}]'
        e(f'v_cmp_lt_u32 {p}, v{J16}, v{CNTV[s_]}')
        e(f's_andn2_b64 {p}, {p}, s[{56+2*s_}:{57+2*s_}]')
        e(f's_mov_b64 s[{72+2*s_}:{73+2*s_}], {p}')
    lab('L_pissue')
    for s_ in range(2):
        e(f's_mov_b64 exec, s[{60+2*s_}:{61+2*s_}]')
        e(f'buffer_load_dwordx4 v[{GA[s_]}:{GA[s_]+3}], v{POF[s_]}, s[28:31], 0 offen sc1')
    for s_ in range(2):
        G=GA[s_]; p=f's[{60+2*s_}:{61+2*s_}]'
        e(f's_mov_b64 exec, {p}')
        e(f's_waitcnt vmcnt({1-s_})')
        for i in range(4): e(f'v_xor_b32 v{G+i}, s{50+i}, v{G+i}')
        e(f'v_or3_b32 v{TT}, v{G}, v{G+1}, v{G+2}')
        e(f'v_or_b32 v{TT}, v{G+3}, v{TT}')
        e(f'v_and_b32 v{TT}, s46, v{TT}')
        e(f'v_cmp_ne_u32 {p}, 0, v{TT}')
    e('s_mov_b64 exec, -1')
    e('s_or_b64 s[64:65], s[60:61], s[62:63]')
    e('s_cbranch_scc0 L_pdone')
    e('s_sub_u32 s66, s66, 1')
    e('s_cbranch_scc1 L_ptimeout')
    if SLEEP: e(f's_sleep {SLEEP}')
    e('s_branch L_pissue')
    lab('L_pdone')
    stamp(5); tr(9)
    if TR: e('v_writelane_b32 v27, s66, 41')
    insert_entries([('s[72:73]',[GA[0]+i for i in range(4)]),('s[74:75]',[GA[1]+i for i in range(4)])], A1, TWO)
    e(f'v_add_u32 v{J16}, 128, v{J16}'); e(f'v_add_u32 v{POF[0]}, 128, v{POF[0]}'); e(f'v_add_u32 v{POF[1]}, 128, v{POF[1]}')
    e(f'v_cmp_lt_u32 vcc, v{J16}, v{CNTV[0]}'); e('s_andn2_b64 s[64:65], vcc, s[56:57]')
    e(f'v_cmp_lt_u32 vcc, v{J16}, v{CNTV[1]}'); e('s_andn2_b64 vcc, vcc, s[58:59]')
    e('s_or_b64 s[64:65], s[64:65], vcc')
    e('s_cbranch_scc1 L_pass')
    e('s_or_b64 s[64:65], s[56:57], s[58:59]')
    e('s_cbranch_scc1 L_rescan')
    lab('L_rescan_done')
    e(f'v_lshrrev_b32 {r("Z")}, 3, {L}'); e(f'v_lshl_add_u32 {r("Z")}, {r("Z")}, 1, s41')
    e(f'v_lshlrev_b32 {r("ia")}, 2, {L}')
    e('s_waitcnt lgkmcnt(0)')
    e('s_barrier')
    stamp(6); tr(10)
    lab('L_counts')
    e(f'ds_read_b32 {r("T")}, {r("ia")} offset:{CNT}')
    e(f'v_lshlrev_b32 {r("ia")}, 6, {r("ia")}')
    e(f'v_subrev_u32 {r("ia")}, {15-LIST & 0xffffffff}, {r("ia")}')
    e('s_movk_i32 s3, 271')
    e('s_add_u32 s46, s36, 16'); e('s_add_u32 s47, s36, 32'); e('s_add_u32 s48, s36, 48')
    e('s_min_u32 s48, s48, 62')
    e('s_waitcnt lgkmcnt(0)')
    e(f'v_sub_u32 {r("T")}, {r("T")}, {r("ia")}')
    e(f'v_cmp_lt_u32 vcc, s3, {r("T")}')
    e(f'v_lshrrev_b32 {r("T")}, 4, {r("T")}')
    e('s_bitset0_b32 vcc_hi, 31')
    e('s_cmp_lg_u64 vcc, 0')
    e('s_cbranch_scc1 L_slow')
    e(f'v_readlane_b32 s45, {r("T")}, s36'); e(f'v_readlane_b32 s46, {r("T")}, s46'); e(f'v_readlane_b32 s47, {r("T")}, s47'); e(f'v_readlane_b32 s48, {r("T")}, s48')
    e('s_max_u32 s42, s45, s46'); e('s_max_u32 s42, s42, s47'); e('s_max_u32 s42, s42, s48')
    e('s_add_u32 s42, s42, 1'); e('s_lshr_b32 s42, s42, 1')
    e('s_cbranch_scc0 L_r0')
    e('s_lshl_b32 s3, s42, 5')
    e('s_cmp_lg_u32 s48, 0'); e('s_cbranch_scc1 L_m4')
    main_loop(3)
    lab('L_m4')
    main_loop(4)
    lab('L_loop_done')
    e('s_cmp_lg_u32 s67, 0'); e('s_cbranch_scc1 L_slow_next')
    lab('L_epi')
    stamp(7); tr(13)
    WFE=V['Bq']
    e(f'v_and_b32 v{TMP+2}, 15, {L}'); e(f'v_lshlrev_b32 v{TMP+2}, 19, v{TMP+2}')
    e(f'v_lshrrev_b32 v{TMP+3}, 4, {L}'); e(f'v_lshl_add_u32 v{TMP+2}, v{TMP+3}, 5, v{TMP+2}')
    e('s_lshl_b32 s3, s36, 8'); e('s_add_u32 s3, s3, s2'); e('s_lshl_b32 s3, s3, 7')
    e(f'v_add_u32 v{TMP+2}, s3, v{TMP+2}')
    for f in range(4):
        e(f'v_cvt_pk_bf16_f32 v{A1+2*f}, {r("O",4*f)}, {r("O",4*f+1)}'); e(f'v_cvt_pk_bf16_f32 v{A1+2*f+1}, {r("O",4*f+2)}, {r("O",4*f+3)}')
    e('s_mov_b32 s64, 0x000f000f'); e('s_mov_b32 s65, 0x000f000f')
    for Mt in range(4):
        e(f's_waitcnt lgkmcnt({12-4*Mt})')
        e(f'v_mfma_f32_16x16x32_bf16 v[{X0+4*Mt}:{X0+4*Mt+3}], v[{WFE+8*Mt}:{WFE+8*Mt+3}], v[{A1}:{A1+3}], 0')
        e(f'v_mfma_f32_16x16x32_bf16 v[{X0+4*Mt}:{X0+4*Mt+3}], v[{WFE+8*Mt+4}:{WFE+8*Mt+7}], v[{A1+4}:{A1+7}], v[{X0+4*Mt}:{X0+4*Mt+3}]')
    e('s_mov_b64 exec, s[64:65]')
    e('s_nop 2')
    for Mt in range(4):
        if Mt==3: e('s_nop 3')
        e(f'v_cvt_pk_bf16_f32 v{A1+8+2*Mt}, v{X0+4*Mt}, v{X0+4*Mt+1}'); e(f'v_cvt_pk_bf16_f32 v{A1+9+2*Mt}, v{X0+4*Mt+2}, v{X0+4*Mt+3}')
        if Mt==1: e(f'buffer_store_dwordx4 v[{A1+8}:{A1+11}], v{TMP+2}, s[32:35], 0 offen')
    e(f'buffer_store_dwordx4 v[{A1+12}:{A1+15}], v{TMP+2}, s[32:35], 0 offen offset:16')
    e('s_mov_b64 exec, -1')
    e(f's_or_b32 s3, s{SP}, s36'); e('s_cbranch_scc1 L_noep')
    for i in range(4): e(f'v_mov_b32 v{X0+i}, s{50+i}')
    e(f'v_mov_b32 v{X0+4}, 0')
    e(f's_add_u32 s68, s14, {EPO}'); e('s_addc_u32 s69, s15, 0'); e('s_mov_b32 s70, 16'); e('s_mov_b32 s71, 0x20000')
    e('s_mov_b64 exec, 1')
    e(f'buffer_store_dwordx4 v[{X0}:{X0+3}], v{X0+4}, s[68:71], 0 offen sc1')
    e('s_mov_b64 exec, -1')
    lab('L_noep')
    stamp(8); tr(14); tr_store()
    if STAMP:
        e('s_waitcnt vmcnt(0)'); stamp(9); stamp_store(14)
    if SPIN:
        lab('L_spin')
        e('s_sleep 4'); e('s_memtime s[98:99]' if SPINCYC else 's_memrealtime s[98:99]'); e('s_waitcnt lgkmcnt(0)'); e('s_sub_u32 s98, s98, s100'); e(f's_cmp_lt_u32 s98, {SPIN}'); e('s_cbranch_scc1 L_spin')
    lab('L_end')
    e('s_endpgm')
    lab('L_r0')
    e('s_cmp_lg_u32 s67, 0'); e('s_cbranch_scc1 L_slow_next')
    lab('L_epi_ld')
    wv_reads()
    e('s_branch L_epi')
    lab('L_ptimeout')
    e('s_mov_b32 s66, 0')
    e(f'v_readfirstlane_b32 s3, v{J16}')
    e('s_cmp_lg_u32 s3, 0'); e('s_cbranch_scc1 L_force_slow')
    for s_ in range(2):
        p=60+2*s_
        expand_bytes(p)
        e(f's_or_b64 s[{56+2*s_}:{57+2*s_}], s[{56+2*s_}:{57+2*s_}], s[{p}:{p+1}]')
        e(f's_andn2_b64 s[{72+2*s_}:{73+2*s_}], s[{72+2*s_}:{73+2*s_}], s[{p}:{p+1}]')
    e('s_branch L_pdone')
    lab('L_force_slow')
    e(f'v_mov_b32 v{TT}, 0x10000'); e(f'v_mov_b32 v{X0}, 248')
    e('s_mov_b64 exec, 1')
    e(f'ds_add_u32 v{X0}, v{TT} offset:{CNT}')
    e('s_mov_b64 exec, -1')
    e('s_branch L_rescan_done')
    lab('L_rescan')
    e('s_lshl_b32 s72, s36, 4')
    lab('L_rs_next')
    e('s_cmp_lg_u64 s[56:57], 0'); e('s_cbranch_scc1 L_rs_have')
    e('s_cmp_eq_u64 s[58:59], 0'); e('s_cbranch_scc1 L_rescan_done')
    e('s_mov_b64 s[56:57], s[58:59]'); e('s_mov_b64 s[58:59], 0'); e('s_add_u32 s72, s72, 8')
    lab('L_rs_have')
    e('s_ff1_i32_b64 s73, s[56:57]')
    e('s_lshl_b64 s[64:65], 0xff, s73'); e('s_andn2_b64 s[56:57], s[56:57], s[64:65]')
    e('s_lshr_b32 s73, s73, 3'); e('s_add_u32 s73, s73, s72')
    e(f's_mul_i32 s73, s73, {CHB}')
    e('s_mov_b32 s74, 0')
    lab('L_rs_loop')
    e(f'v_add_u32 {r("Z")}, s74, {L}')
    e(f'v_lshl_add_u32 {r("T")}, {r("Z")}, 4, s73')
    e(f'v_cmp_gt_u32 vcc, {NQ}, {r("Z")}'); e('s_mov_b64 s[62:63], vcc')
    e(f'v_cmp_gt_u32 vcc, {EB}, {r("T")}'); e('s_and_b64 s[62:63], s[62:63], vcc')
    scan_quads(V['T'],'s[62:63]')
    e('s_add_u32 s74, s74, 64'); e(f's_cmp_lt_u32 s74, {NQ}'); e('s_cbranch_scc1 L_rs_loop')
    e('s_branch L_rs_next')
    lab('L_slow')
    e('s_mov_b32 s67, 1'); e('s_mov_b32 s75, 0')
    lab('L_slow_next')
    e(f's_cmp_ge_u32 s75, {EB}'); e('s_cbranch_scc1 L_epi_ld')
    e('s_barrier')
    list_init(A1)
    stg_zero(A1+8)
    e('s_waitcnt lgkmcnt(0)')
    e('s_barrier')
    e(f'v_lshl_add_u32 {r("T")}, v0, 4, s75')
    e('v_cmp_gt_u32 vcc, 28, v0'); e('s_mov_b64 s[62:63], vcc')
    e(f'v_cmp_gt_u32 vcc, {EB}, {r("T")}'); e('s_and_b64 s[62:63], s[62:63], vcc')
    e('s_cbranch_scc0 L_slow_skip')
    scan_quads(V['T'],'s[62:63]')
    lab('L_slow_skip')
    e('s_add_u32 s75, s75, 448')
    e('s_branch L_rescan_done')

def kd(name, nv, ns):
    nva=(nv+3)//4*4
    return ['.p2align 6', f'.amdhsa_kernel {name}', f'  .amdhsa_next_free_vgpr {nv}', f'  .amdhsa_next_free_sgpr {ns}', f'  .amdhsa_accum_offset {nva}',
      '  .amdhsa_group_segment_fixed_size 0','  .amdhsa_kernarg_size 64','  .amdhsa_user_sgpr_count 2','  .amdhsa_user_sgpr_kernarg_segment_ptr 1','  .amdhsa_system_sgpr_workgroup_id_x 1','.end_amdhsa_kernel']
top = hdr + [f'; @launch grid=(256,1,1) block=(1024,1,1) lds={LDS}', '.amdgcn_target "amdgcn-amd-amdhsa--gfx950"','.text',f'.globl {K}']
kernel()
tail=['.section .rodata,"a"']+kd(K,NV,102)
open(OUT,'w').write('\n'.join(top+o+tail)+'\n')
print('vgprs',NV,'lds',LDS, file=sys.stderr)
```

```python
import sys, struct
args=sys.argv[1:]
STAMP = '--stamp' in args
def opt(name, dflt):
    for a in args:
        if a.startswith('--'+name+'='): return int(a.split('=')[1])
    return dflt
TIMEOUT=opt('timeout',4096); PF=opt('pf',0); PFPOS=opt('pfpos',3); SLEEP=opt('sleep',2); DELAY=opt('delay',0)
SPIN=opt('spin',0); SPINAT=opt('spinat',0); SPINCYC=opt('spincyc',0); TR=opt('trace',0); OSC=['',' sc1',' nt',' sc0 sc1'][opt('osc',2)]; MSK=opt('msk',1); EPL=opt('epl',1); EARLY=opt('early',0); HSK=opt('hsk',0); PM=opt('pm',0); SPEC=opt('spec',0); LIW=opt('liw',1); TPOS=opt('tpos',3); DEC=opt('dec',1); WIN=opt('win',1); ETAB=opt('etab',1); ACK=opt('ack',0); TLB=opt('tlb',0); PRIO=opt('prio',2); PASSW=opt('passw',8)
OUT = [a for a in args if not a.startswith('--')][0]
HDR = open('gather_scatter__kernel_systems_refs_featgraph__graph.s.ref').read().split('\n')
hdr = [l for l in HDR if l.startswith(';') and '@launch' not in l and 'Override' not in l and 'grid=ceil' not in l]
K='gather_scatter__kernel_systems_refs_featgraph__graph_kernel'
N=12500; E=800000; EB=E*4; CHB=12512; NQ=782
XB=N*128
HSTR=16384+128; SECD=0x420000
ESTR=16384+128
TABO=0x410000
EPO=0xd00000
TSTR=2176
o=[]
def e(s): o.append('    '+s)
def lab(s): o.append(s+':')
def f2u(f): return struct.unpack('<I',struct.pack('<f',f))[0]
def srd(d, lo, hi, nrec):
    e(f's_mov_b32 s{d}, s{lo}'); e(f's_mov_b32 s{d+1}, s{hi}'); e(f's_mov_b32 s{d+2}, {nrec}'); e(f's_mov_b32 s{d+3}, 0x20000')
NST=10
def stamp(i):
    if STAMP: e(f's_memrealtime s[{80+2*i}:{81+2*i}]')
    if SPIN and i==SPINAT: e('s_memtime s[100:101]' if SPINCYC else 's_memrealtime s[100:101]')
def tr(lane):
    if not TR: return
    e('s_memrealtime s[78:79]'); e('s_waitcnt lgkmcnt(0)')
    if isinstance(lane,str):
        e(f's_lshl_b64 exec, 1, {lane}'); e('v_mov_b32 v27, s78'); e('s_mov_b64 exec, -1')
    else:
        e(f'v_writelane_b32 v27, s78, {lane}')
def tr_store():
    if not TR: return
    e('s_add_u32 s76, s14, 0xa000000'); e('s_addc_u32 s77, s15, 0')
    e(f's_lshl_b32 s75, s{SP}, 12')
    e('v_lshl_add_u32 v1, v0, 2, s75')
    e('global_store_dword v1, v27, s[76:77]')
def stamp_store(wsreg):
    if not STAMP: return
    e('s_waitcnt lgkmcnt(0)')
    e('v_cmp_eq_u32 vcc, 0, v0')
    e('s_and_saveexec_b64 s[78:79], vcc')
    e(f's_cbranch_execz L_nostamp')
    e(f's_add_u32 s76, s{wsreg}, 0x8000000'); e(f's_addc_u32 s77, s{wsreg+1}, 0')
    e(f's_lshl_b32 s75, s{SP}, 7')
    e('v_mov_b32 v1, s75')
    for i in range(NST):
        e(f'v_mov_b32 v2, s{80+2*i}'); e(f'v_mov_b32 v3, s{81+2*i}')
        e(f'global_store_dwordx2 v1, v[2:3], s[76:77] offset:{8*i}')
        e('s_nop 1')
    lab('L_nostamp')
    e('s_mov_b64 exec, -1')

CNT=0; QS=144; QT=256; WV=QT+64*QS; PC=WV+8192; WQ=PC+1024; XR=WQ+8192; STG=XR+8192; IMG=STG; LIST=STG+100352; LDS=LIST+12544
assert STG%128==0 and QT%16==0 and WV%16==0 and IMG+128<=65536 and LDS<=163840
V={}
_n=[1]
def va(name,cnt=1,al=1):
    while _n[0]%al: _n[0]+=1
    V[name]=_n[0]; _n[0]+=cnt
    return V[name]
va('lane'); va('cA'); va('cB'); va('ia'); va('a10'); va('a11'); va('a2',4); va('m',4); va('cs'); va('idx',8); va('qa'); va('Z'); va('T'); V['Pk']=V['T']
va('O',16,4); va('D',4,4); va('Bq',32,4); va('A1',24,4); va('XT01',16,4); va('XT2',8,2)
NV=_n[0]
assert NV<=128, NV
def r(name,i=0,n=1):
    b=V[name]+i
    return f'v{b}' if n==1 else f'v[{b}:{b+n-1}]'
A1=V['A1']; XT3=A1; P01=A1+8; P2=A1+12; P3=A1+14
X0=V['XT01']; TMP=V['XT2']; OO=V['O']; ID=V['idx']
L=r('lane')
DQ=X0; SQ=X0+4; AD=X0+8; RK=X0+12
EPR=ID; T16=V['D']; L16=V['D']+1; FOUR=V['D']+2
SC=A1; TGS=A1+16
XQ=A1; WF=A1+8; QD=V['D']; QAW=ID+4; QAX=ID+5; QAX2=ID+6; QAT=ID+7
GA=[X0, X0+4]; CNV=X0+8; TT=X0+9; PO2=X0+10
HOF=TMP; SOF=TMP+1; J4=TMP+2; TWO=TMP+4; PIA=TMP+5; PSO=TMP+6; PCA=TMP+7
M0_=0xC003C000
SP=49
M_=0xC0FFC000

def wfrag_addr_q():
    e(f'v_lshrrev_b32 v{TMP}, 4, {L}'); e(f'v_lshlrev_b32 v{TMP}, 10, v{TMP}')
    e(f'v_bfe_u32 v{TMP+1}, {L}, 2, 2'); e(f'v_lshl_add_u32 v{TMP}, v{TMP+1}, 7, v{TMP}')
    e(f'v_and_b32 v{TMP+1}, 3, {L}'); e(f'v_lshl_add_u32 v{TMP}, v{TMP+1}, 3, v{TMP}')
    e('s_and_b32 s3, s36, 3'); e('s_lshl_b32 s3, s3, 5')
    e(f'v_add_u32 v{TMP}, s3, v{TMP}')

_u=[0]
def dma_issue(nc, check):
    _u[0]+=1; u=_u[0]
    if check and HSK: e('s_lshl_b32 s77, s43, 1'); e('s_add_u32 s77, s77, 1')
    for k in range(nc):
        if check: e(f's_cmp_lt_u32 s43, s{45+k}'); e(f's_cbranch_scc0 D{u}_{k}')
        e(f'v_lshl_add_u32 {r("idx",2*k)}, {r("idx",2*k)}, 7, {r("cA")}')
        e(f's_add_u32 m0, s37, {k*2048}')
        e(f'v_lshl_add_u32 {r("idx",2*k+1)}, {r("idx",2*k+1)}, 7, {r("cB")}')
        e(f'buffer_load_dwordx4 {r("idx",2*k)}, s[16:19], 0 offen lds')
        if check and HSK: e(f's_cmp_lt_u32 s77, s{8+k}'); e(f's_cbranch_scc0 D{u}_{k}')
        e(f's_add_u32 m0, s37, {k*2048+1024}')
        e('s_nop 0')
        e(f'buffer_load_dwordx4 {r("idx",2*k+1)}, s[16:19], 0 offen lds')
        if check: lab(f'D{u}_{k}')
def idx_reads(nc):
    for k in range(nc):
        e(f'ds_read_u16 {r("idx",2*k)}, {r("ia")} offset:{k*4096}')
        e(f'ds_read_u16 {r("idx",2*k+1)}, {r("ia")} offset:{k*4096+16}')

def wv_reads():
    WFE=V['Bq']; a=ID
    e(f'v_lshrrev_b32 v{a}, 2, {L}'); e(f'v_lshlrev_b32 v{a}, 7, v{a}')
    e(f'v_and_b32 v{a+1}, 3, {L}'); e(f'v_lshl_add_u32 v{a}, v{a+1}, 5, v{a}')
    e(f'v_lshlrev_b32 v{a+1}, 1, {L}'); e(f'v_and_b32 v{a+1}, 16, v{a+1}'); e(f'v_or_b32 v{a}, v{a}, v{a+1}'); e(f'v_xor_b32 v{a+1}, 16, v{a}')
    for Mt in range(4):
        for ks in range(2):
            for jh in range(2):
                d=WFE+8*Mt+4*ks+2*jh
                e(f'ds_read_b64_tr_b16 v[{d}:{d+1}], v{a+(Mt>>1)} offset:{WV+(2*ks+jh)*2048+8*(Mt&1)}')

def sigmoid(nc):
    e(f'v_mul_f32 {r("Z")}, {r("D",0)}, {r("cs")}')
    for i in (1,2,3):
        e(f'v_mul_f32_dpp {r("Z")}, {r("D",i)}, {r("cs")} row_shr:{4*i} row_mask:0xf bank_mask:{1<<i:#x}')
    e(f'v_exp_f32 {r("Z")}, {r("Z")}')
    e('s_nop 0')
    e(f'v_add_f32 {r("Z")}, 1.0, {r("Z")}')
    e(f'v_rcp_f32 {r("Z")}, {r("Z")}')
    e('s_nop 1')
    e(f'v_mov_b32_dpp {r("T")}, {r("Z")} row_shl:4 row_mask:0xf bank_mask:0xf bound_ctrl:0')
    e(f'v_cvt_pk_bf16_f32 {r("Pk")}, {r("Z")}, {r("T")}')
    dsts=[P01,P01+2,P2,P3]
    for k in range(nc):
        e(f'v_and_b32 v{dsts[k]}, {r("Pk")}, {r("m",k)}')
    for k in range(nc):
        e(f'v_and_b32_dpp v{dsts[k]+1}, {r("Pk")}, {r("m",k)} row_shl:8 row_mask:0xf bank_mask:0xf bound_ctrl:0')
    e('s_nop 1')
def xt(k,f):
    return V['XT01']+4*f+2*k if k<2 else (V['XT2']+2*f if k==2 else XT3+2*f)
def a1r(k):
    return 8*k if k<3 else 0
def mf1(k, first):
    c0 = '0' if first else r("D",0,4)
    e(f'v_mfma_f32_16x16x32_bf16 {r("D",0,4)}, {r("A1",a1r(k),4)}, {r("Bq",8*k,4)}, {c0}')
    e(f'v_mfma_f32_16x16x32_bf16 {r("D",0,4)}, {r("A1",a1r(k)+4,4)}, {r("Bq",8*k+4,4)}, {r("D",0,4)}')
def a1reads(k):
    e(f'ds_read_b128 {r("A1",a1r(k),4)}, {r("a10")} offset:{k*2048}')
    e(f'ds_read_b128 {r("A1",a1r(k)+4,4)}, {r("a11")} offset:{k*2048}')
def trreads(k):
    return [f'ds_read_b64_tr_b16 v[{xt(k,f)}:{xt(k,f)+1}], {r("a2",f)} offset:{k*2048}' for f in range(4)]
def mf2pair():
    for f in range(4):
        e(f'v_mfma_f32_16x16x32_bf16 {r("O",4*f,4)}, {r("XT01",4*f,4)}, v[{P01}:{P01+3}], {r("O",4*f,4)}')
def mf2single(k):
    P=P2 if k==2 else P3
    for f in range(4):
        e(f'v_mfma_f32_16x16x16_bf16 {r("O",4*f,4)}, v[{xt(k,f)}:{xt(k,f)+1}], v[{P}:{P+1}], {r("O",4*f,4)}')

def main_loop(nc):
    t=f'M{nc}'
    e('s_cmp_eq_u32 s42, 5'); e(f's_cbranch_scc1 {t}_spec')
    e(f'v_add_u32 {r("ia")}, s3, {r("Z")}')
    idx_reads(nc)
    lab(f'{t}_spec')
    if EARLY:
        for k in range(nc): e(f's_sub_u32 s{45+k}, s{45+k}, s13')
        e('s_sub_u32 s42, s42, s13')
    e('s_min_u32 s44, s45, s46'); e('s_min_u32 s44, s44, s47')
    if nc==4: e('s_min_u32 s44, s44, s48')
    e('s_sub_u32 s43, s42, 1')
    if EARLY: e('s_cmp_lg_u32 s13, 0'); e(f's_cbranch_scc1 {t}_early')
    e('s_waitcnt lgkmcnt(0)')
    dma_issue(nc, True)
    if not EARLY: tr(11)
    lab(f'{t}_loop')
    if PRIO==2:
        th=[(3,2,1),(4,2,1),(4,3,1),(4,3,2)][PM]
        e('s_setprio 3'); e(f's_cmp_gt_u32 s42, {th[0]}'); e(f's_cbranch_scc1 {t}_pd')
        e('s_setprio 2'); e(f's_cmp_gt_u32 s42, {th[1]}'); e(f's_cbranch_scc1 {t}_pd')
        e('s_setprio 1'); e(f's_cmp_gt_u32 s42, {th[2]}'); e(f's_cbranch_scc1 {t}_pd')
        e('s_setprio 0')
        lab(f'{t}_pd')
    e(f'v_subrev_u32 {r("ia")}, 32, {r("ia")}')
    e('s_sub_u32 s42, s42, 1'); e('s_sub_u32 s43, s42, 1')
    idx_reads(nc)
    e('s_cmp_ge_u32 s42, s44'); e(f's_cbranch_scc1 {t}_ramp')
    e('s_waitcnt vmcnt(0)')
    tr('s42')
    for k in range(3): a1reads(k)
    trl=trreads(0)+trreads(1)+trreads(2)
    for x in trl[:6]: e(x)
    e('s_waitcnt lgkmcnt(10)')
    mf1(0,True)
    for x in trl[6:]: e(x)
    if nc==4:
        a1reads(3)
        e('s_waitcnt lgkmcnt(14)')
    else:
        e('s_waitcnt lgkmcnt(12)')
    mf1(1,False); mf1(2,False)
    if nc==4:
        e('s_waitcnt lgkmcnt(0)')
        mf1(3,False)
        for x in trreads(3): e(x)
    e('s_waitcnt lgkmcnt(0)')
    e('s_cmp_eq_u32 s42, 0')
    e(f's_cbranch_scc1 {t}_last')
    dma_issue(nc, False)
    lab(f'{t}_nodma')
    if TR: e('s_add_u32 s75, s42, 16'); tr('s75')
    sigmoid(nc)
    mf2pair(); mf2single(2)
    if nc==4: mf2single(3)
    e('s_cmp_lg_u32 s42, 0')
    e(f's_cbranch_scc1 {t}_loop')
    e('s_branch L_loop_done')
    lab(f'{t}_last')
    e('s_nop 4')
    e('s_cmp_lg_u32 s67, 0'); e(f's_cbranch_scc1 {t}_nodma')
    wv_reads()
    e(f's_branch {t}_nodma')
    if EARLY:
        lab(f'{t}_early')
        e('s_waitcnt vmcnt(0)')
        tr(5)
        for k in range(3): a1reads(k)
        trl=trreads(0)+trreads(1)+trreads(2)
        for x in trl[:6]: e(x)
        e('s_waitcnt lgkmcnt(10)')
        mf1(0,True)
        for x in trl[6:]: e(x)
        if nc==4:
            a1reads(3)
            e('s_waitcnt lgkmcnt(14)')
        else:
            e('s_waitcnt lgkmcnt(12)')
        mf1(1,False); mf1(2,False)
        if nc==4:
            e('s_waitcnt lgkmcnt(0)')
            mf1(3,False)
            for x in trreads(3): e(x)
        e('s_waitcnt lgkmcnt(0)')
        e('s_cmp_eq_u32 s42, 0')
        e(f's_cbranch_scc1 {t}_elast')
        dma_issue(nc, True)
        lab(f'{t}_enodma')
        tr(21)
        e('s_nop 7')
        sigmoid(nc)
        mf2pair()
        for i in range(16): e(f'v_mov_b32 {r("XT01",i)}, 0')
        mf2single(2)
        if nc==4: mf2single(3)
        e('s_cmp_lg_u32 s42, 0')
        e(f's_cbranch_scc1 {t}_loop')
        e('s_branch L_loop_done')
        lab(f'{t}_elast')
        wv_reads()
        e(f's_branch {t}_enodma')
    lab(f'{t}_ramp')
    for i in range(4): e(f'v_mov_b32 {r("D",i)}, 0')
    e('s_waitcnt vmcnt(0)')
    tr('s42')
    for k in range(3):
        e(f's_cmp_lt_u32 s42, s{45+k}'); e(f's_cbranch_scc0 {t}_r1{k}')
        a1reads(k)
        for x in trreads(k): e(x)
        lab(f'{t}_r1{k}')
    e('s_waitcnt lgkmcnt(0)')
    for k in range(3):
        e(f's_cmp_lt_u32 s42, s{45+k}'); e(f's_cbranch_scc0 {t}_r2{k}')
        mf1(k,False)
        lab(f'{t}_r2{k}')
    if nc==4:
        e(f's_cmp_lt_u32 s42, s48'); e(f's_cbranch_scc0 {t}_r23')
        a1reads(3)
        e('s_waitcnt lgkmcnt(0)')
        mf1(3,False)
        for x in trreads(3): e(x)
        e('s_waitcnt lgkmcnt(0)')
        lab(f'{t}_r23')
    e('s_cmp_eq_u32 s42, 0')
    e(f's_cbranch_scc1 {t}_rlast')
    dma_issue(nc, True)
    lab(f'{t}_rnodma')
    if TR: e('s_add_u32 s75, s42, 16'); tr('s75')
    e('s_nop 7')
    sigmoid(nc)
    mf2pair()
    e(f's_cmp_lt_u32 s42, s47'); e(f's_cbranch_scc0 {t}_r32')
    mf2single(2)
    lab(f'{t}_r32')
    if nc==4:
        e(f's_cmp_lt_u32 s42, s48'); e(f's_cbranch_scc0 {t}_r33')
        mf2single(3)
        lab(f'{t}_r33')
    e('s_cmp_lg_u32 s42, 0')
    e(f's_cbranch_scc1 {t}_loop')
    e('s_branch L_loop_done')
    lab(f'{t}_rlast')
    e('s_cmp_lg_u32 s67, 0'); e(f's_cbranch_scc1 {t}_rnodma')
    wv_reads()
    e(f's_branch {t}_rnodma')

def list_init(t):
    for i in range(4): e(f'v_mov_b32 v{t+i}, -1')
    e(f'v_lshlrev_b32 v{t+4}, 4, v0')
    e(f'v_add_u32 v{t+4}, {LIST}, v{t+4}')
    e('v_cmp_gt_u32 vcc, 784, v0')
    e('s_mov_b64 exec, vcc')
    e(f'ds_write_b128 v{t+4}, v[{t}:{t+3}]')
    e('s_mov_b64 exec, -1')
    _u[0]+=1; u=_u[0]
    e('s_cmp_lg_u32 s36, 13'); e(f's_cbranch_scc1 I{u}')
    e(f'v_lshlrev_b32 v{t+5}, 2, {L}')
    e(f'v_lshlrev_b32 v{t+6}, 8, {L}'); e(f'v_add_u32 v{t+6}, {LIST}, v{t+6}')
    e(f'v_mov_b32 v{t+4}, s40')
    e(f'v_cmp_le_u32 vcc, 56, {L}')
    e('s_nop 1')
    e(f'v_cndmask_b32 v{t+6}, v{t+6}, v{t+4}, vcc')
    e(f'ds_write_b32 v{t+5}, v{t+6} offset:{CNT}')
    lab(f'I{u}')
def stg_zero(t):
    for i in range(4): e(f'v_mov_b32 v{t+i}, 0')
    e(f'v_lshl_add_u32 v{t+4}, {L}, 4, s37')
    for i in range(6): e(f'ds_write_b128 v{t+4}, v[{t}:{t+3}] offset:{1024*i}')
    _u[0]+=1; u=_u[0]
    e('s_cmp_lg_u32 s36, 0'); e(f's_cbranch_scc1 Z{u}')
    for i in (6,7): e(f'ds_write_b128 v{t+4}, v[{t}:{t+3}] offset:{1024*i}')
    lab(f'Z{u}')

def insert_entries(groups, tr_, two):
    n=sum(len(g[1]) for g in groups)
    i=0
    for m,regs in groups:
        e(f's_mov_b64 exec, {m}')
        for x in regs:
            e(f'v_lshrrev_b32 v{tr_+i}, 22, v{x}')
            e(f'ds_add_rtn_u32 v{tr_+i}, v{tr_+i}, v{two} offset:{CNT}')
            i+=1
    i=0
    for m,regs in groups:
        e(f's_mov_b64 exec, {m}')
        for x in regs:
            e(f's_waitcnt lgkmcnt({n-1})')
            e(f'ds_write_b16 v{tr_+i}, v{x}')
            i+=1
    e('s_mov_b64 exec, -1')

def scan_quads(off, vmask):
    e(f's_mov_b64 exec, {vmask}')
    e(f'buffer_load_dwordx4 v[{DQ}:{DQ+3}], v{off}, s[20:23], 0 offen')
    e(f'buffer_load_dwordx4 v[{SQ}:{SQ+3}], v{off}, s[24:27], 0 offen')
    e(f'v_mov_b32 v{RK}, 2')
    e('s_mov_b32 s3, 0x050c0100')
    e('s_waitcnt vmcnt(0)')
    ms=['s[42:43]','s[44:45]','s[46:47]','s[64:65]']
    for i in range(4):
        e(f'v_and_b32 v{AD+i}, 0xff, v{DQ+i}')
        e(f'v_cmp_eq_u32 {ms[i]}, s2, v{AD+i}')
        e(f'v_perm_b32 v{SQ+i}, v{DQ+i}, v{SQ+i}, s3')
    insert_entries([(ms[i],[SQ+i]) for i in range(4)], AD, RK)

def pf_loads():
    if not PF: return
    e(f's_lshr_b32 s3, s{SP}, 3'); e('s_mul_i32 s3, s3, 50000')
    e('s_add_u32 s96, s4, s3'); e('s_addc_u32 s97, s5, 0'); e('s_mov_b32 s98, 50000'); e('s_mov_b32 s99, 0x20000')
    e(f'v_lshlrev_b32 v{TMP+6}, 6, v0')
    e(f'buffer_load_dword v{TMP+5}, v{TMP+6}, s[96:99], 0 offen')

def expand_bytes(p):
    e(f's_lshr_b64 s[64:65], s[{p}:{p+1}], 1'); e(f's_or_b64 s[{p}:{p+1}], s[{p}:{p+1}], s[64:65]')
    e(f's_lshr_b64 s[64:65], s[{p}:{p+1}], 2'); e(f's_or_b64 s[{p}:{p+1}], s[{p}:{p+1}], s[64:65]')
    e(f's_lshr_b64 s[64:65], s[{p}:{p+1}], 4'); e(f's_or_b64 s[{p}:{p+1}], s[{p}:{p+1}], s[64:65]')
    e(f's_and_b32 s{p}, s{p}, 0x01010101'); e(f's_and_b32 s{p+1}, s{p+1}, 0x01010101')
    e(f's_mul_i32 s{p}, s{p}, 0xff'); e(f's_mul_i32 s{p+1}, s{p+1}, 0xff')

def head_issue():
    if DELAY: e(f's_sleep {DELAY}')
    e(f'buffer_load_dwordx4 v[{GA[0]}:{GA[0]+3}], v{HOF}, s[68:71], 0 offen sc1')
    if SPEC: e(f'buffer_load_dwordx4 v[{GA[1]}:{GA[1]+3}], v{SOF}, s[68:71], 0 offen sc1')

def validate(G, p):
    for i in range(4): e(f'v_xor_b32 v{G+i}, s{50+i}, v{G+i}')
    e(f'v_or3_b32 v{TT}, v{G+1}, v{G+2}, v{G+3}')
    e(f'v_and_b32 v{TT}, s46, v{TT}')
    e(f'v_and_or_b32 v{TT}, v{G}, s47, v{TT}')
    e(f'v_cmp_ne_u32 {p}, 0, v{TT}')
    e(f's_cmp_lg_u64 {p}, 0')

def kernel():
    o.append('.p2align 8'); o.append(f'.type {K},@function'); lab(K)
    e('s_cmp_ge_u32 s2, 256'); e('s_cbranch_scc1 L_end')
    stamp(0)
    if TR: e('v_mov_b32 v27, 0'); tr(8)
    e('s_load_dwordx8 s[16:23], s[0:1], 0')
    e('s_load_dwordx8 s[8:15], s[0:1], 32')
    t0,t1,t2,t3=A1+8,A1+9,A1+10,A1+11
    e(f'v_lshrrev_b32 v{t0}, 6, v0')
    e(f'v_lshlrev_b32 v{T16}, 4, v0')
    e(f'v_readfirstlane_b32 s36, v{t0}')
    e('s_and_b32 s3, s2, 7'); e('s_add_u32 s3, s3, 56'); e('s_lshl_b32 s3, s3, 24')
    for i in range(4): e(f'v_mov_b32 v{A1+i}, s3')
    e(f'v_lshrrev_b32 v{PCA}, 2, v0'); e(f'v_lshl_add_u32 v{PIA}, v{PCA}, 7, v{T16}')
    e(f'v_and_b32 {L}, 63, v0')
    e(f's_mul_i32 s42, s2, {CHB}')
    e(f'v_add_u32 v{t1}, s42, v{T16}')
    e(f'v_mov_b32 v{t2}, 0')
    e(f's_mov_b32 s26, {EB}'); e('s_mov_b32 s27, 0x20000')
    e(f's_mov_b32 s70, 16'); e('s_mov_b32 s71, 0x20000'); e('s_mov_b32 s98, 256'); e('s_mov_b32 s99, 0x20000'); e('s_mov_b32 s58, 0')
    e(f'v_cmp_gt_u32 vcc, {NQ}, v0'); e('s_mov_b64 s[62:63], vcc')
    e(f'v_cmp_gt_u32 vcc, {EB}, v{t1}'); e('s_and_b64 s[62:63], s[62:63], vcc')
    e(f'v_lshlrev_b32 v{A1+4}, 2, v0')
    e(f'v_cndmask_b32 v{t1}, 4.0, v{t1}, s[62:63]')
    e(f's_mov_b32 s{SP}, s2')
    e('s_and_b32 s3, s2, 7'); e('s_lshl_b32 s3, s3, 5'); e('s_lshr_b32 s2, s2, 3'); e('s_or_b32 s2, s2, s3')
    e('s_waitcnt lgkmcnt(0)')
    stamp(1)
    e('s_mov_b64 s[24:25], s[18:19]'); e('s_mov_b64 s[96:97], s[12:13]'); e('s_mov_b64 s[12:13], s[10:11]'); e('s_mov_b64 s[10:11], s[8:9]'); e('s_mov_b64 s[8:9], s[22:23]')
    e(f's_mov_b32 s22, {EB}'); e('s_mov_b32 s23, 0x20000')
    e(f's_add_u32 s68, s14, {EPO}'); e('s_addc_u32 s69, s15, 0')
    if not EPL:
        e(f'buffer_load_dwordx4 v[{EPR}:{EPR+3}], v{t2}, s[68:71], 0 offen sc1')
    e(f'buffer_load_dwordx4 v[{DQ}:{DQ+3}], v{t1}, s[20:23], 0 offen')
    e(f'buffer_load_dwordx4 v[{SQ}:{SQ+3}], v{t1}, s[24:27], 0 offen')
    if EPL:
        e(f'buffer_load_dwordx4 v[{EPR}:{EPR+3}], v{t2}, s[68:71], 0 offen sc1')
    for i in range(3): e(f'ds_write_b128 v{PIA}, v[{A1}:{A1+3}] offset:{IMG+64*i}')
    e('s_cmp_lt_u32 s36, 4'); e('s_cbranch_scc0 L_nopc')
    e(f'ds_write_b32 v{A1+4}, v{t2} offset:{PC}')
    lab('L_nopc')
    e('s_waitcnt lgkmcnt(0)')
    e('s_barrier')
    e(f'v_lshlrev_b32 v{L16}, 4, {L}')
    e(f'v_and_b32 v{t0}, 16, {L}'); e(f'v_xor_b32 v{t0}, v{t0}, v{L16}')
    e('s_and_b32 s39, s36, 7'); e('s_lshl_b32 s39, s39, 10')
    e('s_cmp_lt_u32 s36, 8')
    e('s_cselect_b32 s28, s8, s10'); e('s_cselect_b32 s29, s9, s11'); e('s_mov_b32 s30, 8192'); e('s_mov_b32 s31, 0x20000')
    e(f's_cselect_b32 s3, {WQ-WV}, 0')
    e(f's_add_u32 s3, s3, {WV}')
    e('s_add_u32 m0, s3, s39')
    e(f's_mov_b32 s18, {XB}'); e('s_mov_b32 s19, 0x20000')
    e(f'buffer_load_dwordx4 v{t0}, s[28:31], s39 offen lds')
    e(f'v_bfe_u32 v{t0}, v0, 3, 6')
    e(f'v_lshlrev_b32 v{t0}, 15, v{t0}')
    e(f'v_lshrrev_b32 v{t3}, 3, {L}'); e(f'v_xor_b32 v{t3}, v{t3}, {L}'); e(f'v_and_b32 v{t3}, 7, v{t3}')
    e(f'v_lshl_add_u32 v{t0}, v{t3}, 4, v{t0}')
    e('s_lshl_b32 s38, s2, 7')
    e(f's_add_u32 m0, s39, {XR}')
    e(f'v_mov_b32 v{FOUR}, 4')
    e(f'buffer_load_dwordx4 v{t0}, s[16:19], s38 offen lds')
    e('s_mov_b32 s48, 0x050c0100'); e('s_mov_b32 s40, 0x30000')
    e('s_add_u32 s3, s36, 15'); e('s_and_b32 s3, s3, 15'); e('s_mul_i32 s37, s3, 6144'); e(f's_add_u32 s37, s37, {STG}')
    if not LIW: list_init(A1)
    e(f's_mul_i32 s3, s{SP}, {HSTR}'); e('s_add_u32 s28, s14, s3'); e('s_addc_u32 s29, s15, 0'); e(f's_mov_b32 s30, {2*SECD+16384}'); e('s_mov_b32 s31, 0x20000')
    e(f's_mov_b32 s54, {SECD}'); e(f's_mov_b32 s55, {2*SECD}')
    e('s_lshl_b32 s41, s36, 8'); e(f's_add_u32 s41, s41, {LIST-32}')
    e('s_mov_b32 s6, 0x00010001'); e('s_mov_b32 s7, 0x00010001')
    e(f'v_lshrrev_b32 v{t1}, 4, {L}')
    e(f'v_lshrrev_b32 v{t0}, 3, {L}'); e(f'v_and_b32 v{t0}, 6, v{t0}'); e(f'v_and_b32 v{t2}, 7, {L}')
    e(f'v_xor_b32 v{t0}, v{t0}, v{t2}'); e(f'v_lshlrev_b32 {r("cA")}, 4, v{t0}'); e(f'v_xor_b32 {r("cB")}, 16, {r("cA")}')
    e(f'v_and_b32 v{t0}, 6, {L}'); e(f'v_bfe_u32 v{t2}, {L}, 3, 1'); e(f'v_or_b32 v{t0}, v{t0}, v{t2}')
    e(f'v_lshlrev_b32 v{t2}, 1, v{t1}'); e(f'v_xor_b32 v{t0}, v{t0}, v{t2}'); e(f'v_lshlrev_b32 v{t0}, 4, v{t0}')
    e(f'v_and_b32 v{t2}, 15, {L}'); e(f'v_lshl_add_u32 v{t0}, v{t2}, 7, v{t0}')
    e(f'v_add_u32 {r("a10")}, s37, v{t0}'); e(f'v_xor_b32 {r("a11")}, 16, {r("a10")}')
    for k in range(4):
        e(f'v_cmp_eq_u32 s[64:65], {k}, v{t2}'); e('s_nop 1'); e(f'v_cndmask_b32 {r("m",k)}, 0, -1, s[64:65]')
    e(f'v_lshlrev_b32 v{t0}, 4, v{t2}'); e(f'v_add_u32 v{t0}, s36, v{t0}'); e(f's_movk_i32 s3, {QS}'); e(f'v_mul_u32_u24 v{t0}, s3, v{t0}')
    e(f'v_lshl_add_u32 {r("qa")}, v{t1}, 5, v{t0}')
    e('s_lshr_b32 s3, s36, 2'); e('s_lshl_b32 s3, s3, 4'); e(f'v_add_u32 v{t2}, s3, v{t2}')
    e(f'v_and_b32 v{t0}, 7, {L}'); e(f'v_xor_b32 v{t0}, v{t0}, v{t1}'); e(f'v_lshlrev_b32 v{t0}, 4, v{t0}')
    e(f'v_lshl_add_u32 v{QAX}, v{t2}, 7, v{t0}'); e(f'v_xor_b32 v{QAX2}, 64, v{QAX}')
    e(f's_movk_i32 s3, {QS}'); e(f'v_mul_u32_u24 v{t2}, s3, v{t2}')
    e(f'v_lshl_add_u32 v{t2}, v{t1}, 3, v{t2}')
    e('s_and_b32 s3, s36, 3'); e('s_lshl_b32 s3, s3, 5'); e(f'v_add_u32 v{QAT}, s3, v{t2}')
    e(f'v_lshlrev_b32 v{t0}, 10, v{t1}'); e(f'v_bfe_u32 v{t2}, {L}, 2, 2'); e(f'v_lshl_add_u32 v{t0}, v{t2}, 7, v{t0}')
    e(f'v_and_b32 v{t2}, 3, {L}'); e(f'v_lshl_add_u32 v{t0}, v{t2}, 3, v{t0}'); e(f'v_add_u32 v{t0}, s3, v{t0}')
    e(f'v_lshlrev_b32 v{J4}, 4, v{t2}')
    e(f'v_lshlrev_b32 v{t2}, 1, {L}'); e(f'v_and_b32 v{t2}, 16, v{t2}'); e(f'v_xor_b32 v{QAW}, v{t0}, v{t2}')
    e(f'v_lshrrev_b32 v{t0}, 2, {L}')
    e(f'v_and_b32 v{t2}, 6, v{t0}'); e(f'v_lshrrev_b32 v{t3}, 3, v{t0}'); e(f'v_or_b32 v{t2}, v{t2}, v{t3}')
    e(f'v_bfe_u32 v{t3}, {L}, 1, 1'); e(f'v_xor_b32 v{t2}, v{t2}, v{t3}'); e(f'v_lshlrev_b32 v{t2}, 4, v{t2}')
    e(f'v_lshl_add_u32 v{t2}, v{t0}, 7, v{t2}')
    e(f'v_and_b32 v{t3}, 1, {L}'); e(f'v_lshl_add_u32 v{t2}, v{t3}, 3, v{t2}')
    e(f'v_add_u32 {r("a2",0)}, s37, v{t2}')
    for f in (1,2,3): e(f'v_xor_b32 {r("a2",f)}, {32*f}, {r("a2",0)}')
    e(f'v_mov_b32 {r("cs")}, {f2u(-0.125*1.4426950408889634):#x}')
    e(f's_movk_i32 s3, {HSTR}'); e(f'v_mad_u32_u24 v{HOF}, v{PCA}, s3, v{J4}'); e('s_lshl_b32 s3, s2, 6'); e(f'v_add_u32 v{HOF}, s3, v{HOF}')
    e(f'v_add_u32 v{SOF}, {SECD}, v{HOF}')
    e(f'v_lshlrev_b32 v{PCA}, 2, v{PCA}')
    e(f'v_add_u32 v{J4}, 64, v{J4}')
    srd(68,14,15,2*SECD+256*HSTR)
    e(f'v_mov_b32 v{TWO}, 2')
    e('s_mov_b64 s[60:61], -1'); e('s_mov_b64 s[56:57], 0')
    e(f's_movk_i32 s66, {TIMEOUT}'); e('s_mov_b32 s67, 0')
    e(f's_mov_b32 s46, {M_:#x}'); e(f's_mov_b32 s47, {M0_:#x}')
    e('s_movk_i32 s44, 188'); e('s_movk_i32 s45, 252')
    def tags(w):
        e(f's_waitcnt vmcnt({w})')
        for i in range(4): e(f'v_readfirstlane_b32 s{50+i}, v{EPR+i}')
        e('s_bfe_u32 s42, s51, 0xa000e'); e('s_bfe_u32 s43, s52, 0xa000e'); e('s_bfe_u32 s3, s53, 0xa000e')
        e('s_lshl_b32 s43, s43, 10'); e('s_lshl_b32 s3, s3, 20'); e('s_or_b32 s42, s42, s43'); e('s_or_b32 s42, s42, s3')
        e('s_add_u32 s42, s42, 1')
        e(f's_and_b32 s50, s50, {M0_:#x}')
        for i,sh in ((1,0),(2,10),(3,20)):
            e(f's_and_b32 s{50+i}, s{50+i}, 0xc0000000')
            e(f's_bfe_u32 s43, s42, {0xa0000|sh:#x}'); e('s_lshl_b32 s43, s43, 14'); e(f's_or_b32 s{50+i}, s{50+i}, s43')
    if not EPL: tags(4)
    e('s_mov_b64 exec, s[62:63]')
    e(f's_waitcnt vmcnt({4 if EPL else 3})')
    stamp(2); tr(15)
    for i in range(4):
        e(f'v_lshlrev_b32_sdwa v{AD+i}, 2, v{DQ+i} dst_sel:DWORD dst_unused:UNUSED_PAD src0_sel:DWORD src1_sel:BYTE_0')
    for i in range(4):
        e(f'ds_add_rtn_u32 v{RK+i}, v{AD+i}, v{FOUR} offset:{PC}')
    e(f's_waitcnt vmcnt({3 if EPL else 2})')
    for i in range(4):
        e(f'v_perm_b32 v{SQ+i}, v{DQ+i}, v{SQ+i}, s48')
    for i in range(4):
        e(f's_waitcnt lgkmcnt(3)')
        e(f'v_min_u32 v{RK+i}, s44, v{RK+i}')
        e(f'v_mad_u32_u24 v{RK+i}, v{AD+i}, 48, v{RK+i}')
        e(f'ds_write_b32 v{RK+i}, v{SQ+i} offset:{IMG}')
    e('s_mov_b64 exec, -1')
    if EPL: tags(2)
    e('s_waitcnt lgkmcnt(0)')
    e('s_barrier')
    stamp(3); tr(43)
    C=AD
    e(f'ds_read_b32 v{C}, v{PCA} offset:{PC}')
    e(f'ds_read_b128 v[{DQ}:{DQ+3}], v{PIA} offset:{IMG}')
    e(f'ds_read_b128 v[{SQ}:{SQ+3}], v{PIA} offset:{IMG+64}')
    e('s_waitcnt lgkmcnt(2)')
    e(f'v_cmp_lt_u32 s[64:65], v{J4}, v{C}')
    e(f'v_cmp_lt_u32 vcc, 128, v{C}')
    e(f'v_min_u32 v{C+1}, s45, v{C}')
    e(f'v_lshl_or_b32 v{C+1}, v{C+1}, 16, s50')
    e('s_waitcnt lgkmcnt(1)')
    e(f'v_xor_b32 v{DQ}, v{C+1}, v{DQ}')
    for i in (1,2,3): e(f'v_xor_b32 v{DQ+i}, s{50+i}, v{DQ+i}')
    e(f'buffer_store_dwordx4 v[{DQ}:{DQ+3}], v{T16}, s[28:31], 0 offen sc1')
    e(f'v_cndmask_b32 v{C+2}, 4.0, v{T16}, s[64:65]')
    e('s_waitcnt lgkmcnt(0)')
    e(f'v_xor_b32 v{SQ}, v{C+1}, v{SQ}')
    for i in (1,2,3): e(f'v_xor_b32 v{SQ+i}, s{50+i}, v{SQ+i}')
    e(f'buffer_store_dwordx4 v[{SQ}:{SQ+3}], v{C+2}, s[28:31], s54 offen sc1')
    e('s_cbranch_vccnz L_third')
    lab('L_third_done')
    stamp(4); tr(12)
    srd(32,12,13,XB)
    if LIW: list_init(A1+16)
    tr(45)
    if TPOS==0: head_issue(); tr(46)
    for i in range(16): e(f'v_mov_b32 {r("O",i)}, 0')
    e(f's_waitcnt vmcnt({3 if TPOS==0 else 2})')
    tr(44)
    e('s_barrier')
    for ks in range(2):
        for jh in range(2):
            e(f'ds_read_b64_tr_b16 v[{WF+4*ks+2*jh}:{WF+4*ks+2*jh+1}], v{QAW} offset:{WQ+ks*4096+jh*512}')
    e(f'ds_read_b128 v[{XQ}:{XQ+3}], v{QAX} offset:{XR}'); e(f'ds_read_b128 v[{XQ+4}:{XQ+7}], v{QAX2} offset:{XR}')
    if TPOS==1: head_issue(); tr(46)
    e('s_waitcnt lgkmcnt(0)')
    e(f'v_mfma_f32_16x16x32_bf16 v[{QD}:{QD+3}], v[{WF}:{WF+3}], v[{XQ}:{XQ+3}], 0')
    e(f'v_mfma_f32_16x16x32_bf16 v[{QD}:{QD+3}], v[{WF+4}:{WF+7}], v[{XQ+4}:{XQ+7}], v[{QD}:{QD+3}]')
    for i in range(32): e(f'v_mov_b32 {r("Bq",i)}, 0')
    e(f'v_cvt_pk_bf16_f32 v{A1}, v{QD}, v{QD+1}'); e(f'v_cvt_pk_bf16_f32 v{A1+1}, v{QD+2}, v{QD+3}')
    e(f'ds_write_b64 v{QAT}, v[{A1}:{A1+1}] offset:{QT}')
    if TPOS==2: head_issue(); tr(46)
    e('s_waitcnt lgkmcnt(0)')
    tr(42)
    e('s_barrier')
    if TPOS==3: head_issue(); tr(46)
    for k in range(4):
        e(f's_lshl_b64 exec, s[6:7], {k}')
        e(f'ds_read_b128 {r("Bq",8*k,4)}, {r("qa")} offset:{QT}')
        e(f'ds_read_b128 {r("Bq",8*k+4,4)}, {r("qa")} offset:{QT+16}')
    e('s_mov_b64 exec, -1')
    e(f's_waitcnt vmcnt({1 if SPEC else 0})')
    tr(6)
    lab('L_hv')
    validate(GA[0], 's[60:61]')
    e('s_cbranch_scc1 L_hretry')
    lab('L_hok')
    e('s_mov_b64 exec, -1')
    stamp(5)
    tr(7)
    if TR: e('v_writelane_b32 v27, s66, 40')
    e(f'v_bfe_u32 v{CNV}, v{GA[0]}, 16, 8')
    e(f'v_cmp_lt_u32 vcc, s44, v{CNV}')
    e(f'v_cmp_lt_u32 s[62:63], v{J4}, v{CNV}')
    e('s_or_b64 s[56:57], s[56:57], vcc')
    e('s_andn2_b64 s[62:63], s[62:63], s[56:57]')
    e('s_mov_b64 s[74:75], s[62:63]')
    if not SPEC:
        e(f'v_cndmask_b32 v{PO2}, 4.0, v{SOF}, s[62:63]')
        e(f'buffer_load_dwordx4 v[{GA[1]}:{GA[1]+3}], v{PO2}, s[68:71], 0 offen sc1')
    e(f'v_and_b32 v{GA[0]}, 0x3f003fff, v{GA[0]}')
    if MSK:
        e(f'v_add_u32 v{PO2+1}, 64, v{CNV}'); e(f'v_sub_u32 v{PO2+1}, v{PO2+1}, v{J4}')
        ms=['s[42:43]','s[64:65]','s[72:73]','s[76:77]']
        e('s_andn2_b64 exec, -1, s[56:57]')
        for i in range(4): e(f'v_cmp_lt_i32 {ms[i]}, {4*i}, v{PO2+1}')
        for i in range(4):
            e(f's_mov_b64 exec, {ms[i]}')
            e(f'v_lshrrev_b32 v{A1+i}, 22, v{GA[0]+i}')
            e(f'ds_add_rtn_u32 v{A1+i}, v{A1+i}, v{TWO} offset:{CNT}')
        for i in range(4):
            e(f's_mov_b64 exec, {ms[i]}')
            e(f's_waitcnt lgkmcnt(3)')
            e(f'ds_write_b16 v{A1+i}, v{GA[0]+i}')
    else:
        e('s_andn2_b64 exec, -1, s[56:57]')
        for i in range(4):
            e(f'v_lshrrev_b32 v{A1+i}, 22, v{GA[0]+i}')
            e(f'ds_add_rtn_u32 v{A1+i}, v{A1+i}, v{TWO} offset:{CNT}')
        for i in range(4):
            e(f's_waitcnt lgkmcnt(3)')
            e(f'ds_write_b16 v{A1+i}, v{GA[0]+i}')
    e('s_mov_b32 s13, 0')
    if EARLY:
        e('s_mov_b64 exec, -1')
        e(f'v_lshrrev_b32 {r("Z")}, 3, {L}'); e(f'v_lshl_add_u32 {r("Z")}, {r("Z")}, 1, s41')
        e(f'v_add_u32 {r("ia")}, 32, {r("Z")}')
        e('s_cmp_lt_u32 s2, 212'); e('s_cselect_b32 s12, 0, 1'); e('s_or_b32 s12, s12, s36')
        e('s_mov_b32 s3, 0xffff')
        e('s_waitcnt lgkmcnt(0)')
        e('s_barrier')
        stamp(6); tr(10)
        e('s_setprio 3')
        idx_reads(4)
        e('s_cmp_eq_u32 s12, 0'); e('s_cbranch_scc1 L_e4')
        for nc in (3,4):
            if nc==4: lab('L_e4')
            e(f's_waitcnt lgkmcnt({2 if nc==3 else 0})')
            e(f'v_max3_u32 {r("T")}, {r("idx",0)}, {r("idx",1)}, {r("idx",2)}')
            e(f'v_max3_u32 {r("T")}, {r("T")}, {r("idx",3)}, {r("idx",4)}')
            if nc==3: e(f'v_max_u32 {r("T")}, {r("T")}, {r("idx",5)}')
            else:
                e(f'v_max3_u32 {r("T")}, {r("T")}, {r("idx",5)}, {r("idx",6)}'); e(f'v_max_u32 {r("T")}, {r("T")}, {r("idx",7)}')
            e(f'v_cmp_eq_u32 vcc, s3, {r("T")}')
            e('s_cbranch_vccnz L_sec')
            dma_issue(nc, False)
            tr(11)
            e('s_mov_b32 s13, 1')
            e('s_mov_b64 exec, s[62:63]')
            e('s_cbranch_execz L_secdone')
            e(f's_waitcnt vmcnt({2*nc})')
            e('s_branch L_sv')
    lab('L_sec')
    e('s_mov_b64 exec, s[62:63]')
    e('s_cbranch_execz L_secdone')
    e('s_waitcnt vmcnt(0)')
    lab('L_sv')
    validate(GA[1], 's[62:63]')
    e('s_cbranch_scc1 L_sretry')
    tr(9)
    e('s_mov_b64 exec, s[74:75]')
    e(f'v_and_b32 v{GA[1]}, 0x3f003fff, v{GA[1]}')
    for i in range(4):
        e(f'v_lshrrev_b32 v{A1+4+i}, 22, v{GA[1]+i}')
        e(f'ds_add_rtn_u32 v{A1+4+i}, v{A1+4+i}, v{TWO} offset:{CNT}')
    for i in range(4):
        e(f's_waitcnt lgkmcnt(3)')
        e(f'ds_write_b16 v{A1+4+i}, v{GA[1]+i}')
    e('s_mov_b64 exec, -1')
    e(f'v_add_u32 v{J4}, 64, v{J4}'); e(f'v_add_u32 v{SOF}, {SECD}, v{SOF}')
    e(f'v_cmp_lt_u32 s[62:63], v{J4}, v{CNV}')
    e('s_and_b64 s[62:63], s[62:63], s[74:75]')
    e('s_cbranch_scc1 L_more')
    lab('L_secdone')
    e('s_mov_b64 exec, -1')
    e('s_cmp_lg_u64 s[56:57], 0')
    e('s_cbranch_scc1 L_rescan')
    lab('L_rescan_done')
    e(f'v_lshrrev_b32 {r("Z")}, 3, {L}'); e(f'v_lshl_add_u32 {r("Z")}, {r("Z")}, 1, s41')
    e('s_waitcnt lgkmcnt(0)')
    e(f'v_lshlrev_b32 v{A1}, 2, {L}')
    e(f'v_lshlrev_b32 v{A1+1}, 8, {L}')
    e(f'v_subrev_u32 v{A1+1}, {15-LIST & 0xffffffff}, v{A1+1}')
    e(f'v_add_u32 {r("ia")}, {5*32}, {r("Z")}')
    for i in range(16): e(f'v_mov_b32 {r("XT01",i)}, 0')
    e('s_movk_i32 s3, 271')
    e('s_add_u32 s46, s36, 16'); e('s_add_u32 s47, s36, 32'); e('s_add_u32 s48, s36, 48')
    e('s_min_u32 s48, s48, 49')
    e('s_barrier')
    if not EARLY: stamp(6); tr(10)
    else: tr(48)
    lab('L_counts')
    e(f'ds_read_b32 {r("T")}, v{A1} offset:{CNT}')
    idx_reads(4)
    e('s_waitcnt lgkmcnt(8)')
    e(f'v_sub_u32 {r("T")}, {r("T")}, v{A1+1}')
    e(f'v_cmp_lt_u32 vcc, s3, {r("T")}')
    e(f'v_lshrrev_b32 {r("T")}, 4, {r("T")}')
    e('s_and_b32 vcc_hi, vcc_hi, 0xffffff')
    e(f'v_readlane_b32 s59, {r("T")}, 53')
    e('s_or_b32 s58, s58, s59')
    e('s_cmp_lg_u64 vcc, 0')
    e('s_cbranch_scc1 L_slow')
    e(f'v_readlane_b32 s8, {r("T")}, s36'); e(f'v_readlane_b32 s9, {r("T")}, s46'); e(f'v_readlane_b32 s10, {r("T")}, s47'); e(f'v_readlane_b32 s11, {r("T")}, s48')
    for k in range(4): e(f's_add_u32 s{45+k}, s{8+k}, 1'); e(f's_lshr_b32 s{45+k}, s{45+k}, 1')
    e('s_max_u32 s42, s45, s46'); e('s_max_u32 s42, s42, s47'); e('s_max_u32 s42, s42, s48')
    e('s_cmp_lg_u32 s42, 0')
    e('s_cbranch_scc0 L_r0')
    e('s_lshl_b32 s3, s42, 5')
    e('s_cmp_lg_u32 s48, 0'); e('s_cbranch_scc1 L_m4')
    main_loop(3)
    lab('L_m4')
    main_loop(4)
    lab('L_loop_done')
    e('s_cmp_lg_u32 s67, 0'); e('s_cbranch_scc1 L_slow_next')
    lab('L_epi')
    stamp(7); tr(13)
    e('s_cmp_lg_u32 s36, 0'); e('s_cbranch_scc1 L_nochk')
    e(f'v_mov_b32 {r("Z")}, 0')
    e(f'buffer_load_dword {r("T")}, {r("Z")}, s[96:99], 0 offen sc1')
    lab('L_nochk')
    WFE=V['Bq']
    e(f'v_and_b32 v{TMP+2}, 15, {L}'); e(f'v_lshlrev_b32 v{TMP+2}, 19, v{TMP+2}')
    e(f'v_lshrrev_b32 v{TMP+3}, 4, {L}'); e(f'v_lshl_add_u32 v{TMP+2}, v{TMP+3}, 5, v{TMP+2}')
    e('s_lshl_b32 s3, s36, 8'); e('s_add_u32 s3, s3, s2'); e('s_lshl_b32 s3, s3, 7')
    e(f'v_add_u32 v{TMP+2}, s3, v{TMP+2}')
    for f in range(4):
        e(f'v_cvt_pk_bf16_f32 v{A1+2*f}, {r("O",4*f)}, {r("O",4*f+1)}'); e(f'v_cvt_pk_bf16_f32 v{A1+2*f+1}, {r("O",4*f+2)}, {r("O",4*f+3)}')
    e('s_mov_b32 s64, 0x000f000f'); e('s_mov_b32 s65, 0x000f000f')
    for Mt in range(4):
        e(f's_waitcnt lgkmcnt({12-4*Mt})')
        e(f'v_mfma_f32_16x16x32_bf16 v[{X0+4*Mt}:{X0+4*Mt+3}], v[{WFE+8*Mt}:{WFE+8*Mt+3}], v[{A1}:{A1+3}], 0')
        e(f'v_mfma_f32_16x16x32_bf16 v[{X0+4*Mt}:{X0+4*Mt+3}], v[{WFE+8*Mt+4}:{WFE+8*Mt+7}], v[{A1+4}:{A1+7}], v[{X0+4*Mt}:{X0+4*Mt+3}]')
    e('s_mov_b64 exec, s[64:65]')
    e('s_nop 2')
    for Mt in range(4):
        if Mt==3: e('s_nop 3')
        e(f'v_cvt_pk_bf16_f32 v{A1+8+2*Mt}, v{X0+4*Mt}, v{X0+4*Mt+1}'); e(f'v_cvt_pk_bf16_f32 v{A1+9+2*Mt}, v{X0+4*Mt+2}, v{X0+4*Mt+3}')
        if Mt==1: e(f'buffer_store_dwordx4 v[{A1+8}:{A1+11}], v{TMP+2}, s[32:35], 0 offen{OSC}')
    e(f'buffer_store_dwordx4 v[{A1+12}:{A1+15}], v{TMP+2}, s[32:35], 0 offen offset:16{OSC}')
    e('s_mov_b64 exec, -1')
    e('s_or_b32 s3, s58, s36'); e('s_cbranch_scc1 L_noep')
    e(f's_cmp_eq_u32 s{SP}, 0'); e('s_cbranch_scc1 L_pub')
    e('s_waitcnt vmcnt(2)')
    e(f'v_readfirstlane_b32 s3, {r("T")}')
    e('s_cmp_eq_u32 s3, 0'); e('s_cbranch_scc1 L_noep')
    lab('L_pub')
    for i in range(4): e(f'v_mov_b32 v{X0+i}, s{50+i}')
    e(f'v_mov_b32 v{X0+4}, 0')
    e(f's_add_u32 s68, s14, {EPO}'); e('s_addc_u32 s69, s15, 0'); e('s_mov_b32 s70, 16'); e('s_mov_b32 s71, 0x20000')
    e('s_mov_b64 exec, 1')
    e(f'buffer_store_dwordx4 v[{X0}:{X0+3}], v{X0+4}, s[68:71], 0 offen sc1')
    e('s_mov_b64 exec, -1')
    lab('L_noep')
    stamp(8); tr(14); tr_store()
    if STAMP:
        e('s_waitcnt vmcnt(0)'); stamp(9); stamp_store(14)
    if SPIN:
        lab('L_spin')
        e('s_sleep 4'); e('s_memtime s[94:95]' if SPINCYC else 's_memrealtime s[94:95]'); e('s_waitcnt lgkmcnt(0)'); e('s_sub_u32 s94, s94, s100'); e(f's_cmp_lt_u32 s94, {SPIN}'); e('s_cbranch_scc1 L_spin')
    lab('L_end')
    e('s_endpgm')
    lab('L_r0')
    e('s_cmp_lg_u32 s67, 0'); e('s_cbranch_scc1 L_slow_next')
    lab('L_epi_ld')
    wv_reads()
    e('s_branch L_epi')
    lab('L_third')
    e(f'ds_read_b128 v[{A1}:{A1+3}], v{PIA} offset:{IMG+128}')
    e(f'v_add_u32 v{AD+3}, 64, v{J4}')
    e(f'v_cmp_lt_u32 s[64:65], v{AD+3}, v{AD}')
    e('s_waitcnt lgkmcnt(0)')
    e(f'v_xor_b32 v{A1}, v{AD+1}, v{A1}')
    e(f'v_cndmask_b32 v{AD+2}, 4.0, v{T16}, s[64:65]')
    for i in (1,2,3): e(f'v_xor_b32 v{A1+i}, s{50+i}, v{A1+i}')
    e(f'buffer_store_dwordx4 v[{A1}:{A1+3}], v{AD+2}, s[28:31], s55 offen sc1')
    e('s_waitcnt vmcnt(1)')
    e('s_branch L_third_done')
    lab('L_more')
    e('s_mov_b64 s[74:75], s[62:63]')
    e('s_waitcnt lgkmcnt(0)')
    e('s_mov_b64 exec, s[62:63]')
    e(f'buffer_load_dwordx4 v[{GA[1]}:{GA[1]+3}], v{SOF}, s[68:71], 0 offen sc1')
    e('s_branch L_sec')
    lab('L_hretry')
    e('s_sub_u32 s66, s66, 1')
    e('s_cbranch_scc1 L_hto')
    if SLEEP: e(f's_sleep {SLEEP}')
    e('s_mov_b64 exec, s[60:61]')
    e(f'buffer_load_dwordx4 v[{GA[0]}:{GA[0]+3}], v{HOF}, s[68:71], 0 offen sc1')
    e('s_waitcnt vmcnt(0)')
    e('s_branch L_hv')
    lab('L_hto')
    e('s_mov_b32 s66, 0')
    e('s_lshr_b64 s[64:65], s[60:61], 1'); e('s_or_b64 s[60:61], s[60:61], s[64:65]')
    e('s_lshr_b64 s[64:65], s[60:61], 2'); e('s_or_b64 s[60:61], s[60:61], s[64:65]')
    e('s_and_b32 s60, s60, 0x11111111'); e('s_and_b32 s61, s61, 0x11111111')
    e('s_mul_i32 s56, s60, 15'); e('s_mul_i32 s57, s61, 15')
    e('s_mov_b64 exec, -1')
    e(f'v_mov_b32 v{TT}, 212'); e(f'v_mov_b32 v{PO2}, 0')
    e('s_mov_b64 exec, 1')
    e(f'ds_add_u32 v{TT}, v{TWO} offset:{CNT}')
    e(f'buffer_store_dword v{TT}, v{PO2}, s[96:99], 0 offen sc1')
    e('s_branch L_hok')
    lab('L_sretry')
    e('s_sub_u32 s66, s66, 1')
    e('s_cbranch_scc1 L_force_slow')
    if SLEEP: e(f's_sleep {SLEEP}')
    e('s_mov_b64 exec, s[62:63]')
    e(f'buffer_load_dwordx4 v[{GA[1]}:{GA[1]+3}], v{SOF}, s[68:71], 0 offen sc1')
    e('s_waitcnt vmcnt(0)')
    e('s_branch L_sv')
    lab('L_force_slow')
    e('s_mov_b64 exec, -1')
    e('s_waitcnt vmcnt(0)')
    e(f'v_mov_b32 v{TT}, 0x10000'); e(f'v_mov_b32 v{X0}, 220')
    e('s_mov_b64 exec, 1')
    e(f'ds_add_u32 v{X0}, v{TT} offset:{CNT}')
    e('s_mov_b64 exec, -1')
    e('s_branch L_rescan_done')
    lab('L_rescan')
    e('s_lshl_b32 s72, s36, 4')
    lab('L_rs_next')
    e('s_cmp_eq_u64 s[56:57], 0'); e('s_cbranch_scc1 L_rescan_done')
    e('s_ff1_i32_b64 s73, s[56:57]')
    e('s_lshl_b64 s[64:65], 15, s73'); e('s_andn2_b64 s[56:57], s[56:57], s[64:65]')
    e('s_lshr_b32 s73, s73, 2'); e('s_add_u32 s73, s73, s72')
    e(f's_mul_i32 s73, s73, {CHB}')
    e('s_mov_b32 s74, 0')
    lab('L_rs_loop')
    e(f'v_add_u32 {r("Z")}, s74, {L}')
    e(f'v_lshl_add_u32 {r("T")}, {r("Z")}, 4, s73')
    e(f'v_cmp_gt_u32 vcc, {NQ}, {r("Z")}'); e('s_mov_b64 s[62:63], vcc')
    e(f'v_cmp_gt_u32 vcc, {EB}, {r("T")}'); e('s_and_b64 s[62:63], s[62:63], vcc')
    scan_quads(V['T'],'s[62:63]')
    e('s_add_u32 s74, s74, 64'); e(f's_cmp_lt_u32 s74, {NQ}'); e('s_cbranch_scc1 L_rs_loop')
    e('s_branch L_rs_next')
    lab('L_slow')
    e('s_mov_b32 s67, 1'); e('s_mov_b32 s75, 0'); e('s_mov_b32 s13, 0'); e('s_waitcnt vmcnt(0)')
    lab('L_slow_next')
    e(f's_cmp_ge_u32 s75, {EB}'); e('s_cbranch_scc1 L_epi_ld')
    e('s_barrier')
    list_init(A1)
    e('s_waitcnt lgkmcnt(0)')
    e('s_barrier')
    e(f'v_lshl_add_u32 {r("T")}, v0, 4, s75')
    e('v_cmp_gt_u32 vcc, 28, v0'); e('s_mov_b64 s[62:63], vcc')
    e(f'v_cmp_gt_u32 vcc, {EB}, {r("T")}'); e('s_and_b64 s[62:63], s[62:63], vcc')
    e('s_cbranch_scc0 L_slow_skip')
    scan_quads(V['T'],'s[62:63]')
    lab('L_slow_skip')
    e('s_add_u32 s75, s75, 448')
    e('s_branch L_rescan_done')

def kd(name, nv, ns):
    nva=(nv+3)//4*4
    return ['.p2align 6', f'.amdhsa_kernel {name}', f'  .amdhsa_next_free_vgpr {nv}', f'  .amdhsa_next_free_sgpr {ns}', f'  .amdhsa_accum_offset {nva}',
      '  .amdhsa_group_segment_fixed_size 0','  .amdhsa_kernarg_size 64','  .amdhsa_user_sgpr_count 2','  .amdhsa_user_sgpr_kernarg_segment_ptr 1','  .amdhsa_system_sgpr_workgroup_id_x 1','.end_amdhsa_kernel']
top = hdr + [f'; @launch grid=(256,1,1) block=(1024,1,1) lds={LDS}', '.amdgcn_target "amdgcn-amd-amdhsa--gfx950"','.text',f'.globl {K}']
kernel()
tail=['.section .rodata,"a"']+kd(K,NV,102)
open(OUT,'w').write('\n'.join(top+o+tail)+'\n')
print('vgprs',NV,'lds',LDS, file=sys.stderr)
```

```python
import sys, struct
args=sys.argv[1:]
STAMP = '--stamp' in args
def opt(name, dflt):
    for a in args:
        if a.startswith('--'+name+'='): return int(a.split('=')[1])
    return dflt
TIMEOUT=opt('timeout',4096); PF=opt('pf',0); PFPOS=opt('pfpos',3); SLEEP=opt('sleep',2); DELAY=opt('delay',0)
SPIN=opt('spin',0); SPINAT=opt('spinat',0); SPINCYC=opt('spincyc',0); TR=opt('trace',0); OSC=['',' sc1',' nt',' sc0 sc1'][opt('osc',2)]; MSK=opt('msk',1); EPL=opt('epl',1); TW=opt('tw',0); AUXE=opt('auxe',0); EARLY=opt('early',0); HSK=opt('hsk',0); PM=opt('pm',0); SPEC=opt('spec',0); LIW=opt('liw',1); TPOS=opt('tpos',3); DEC=opt('dec',1); WIN=opt('win',1); ETAB=opt('etab',1); ACK=opt('ack',0); TLB=opt('tlb',0); PRIO=opt('prio',2); PASSW=opt('passw',8)
OUT = [a for a in args if not a.startswith('--')][0]
HDR = open('gather_scatter__kernel_systems_refs_featgraph__graph.s.ref').read().split('\n')
hdr = [l for l in HDR if l.startswith(';') and '@launch' not in l and 'Override' not in l and 'grid=ceil' not in l]
K='gather_scatter__kernel_systems_refs_featgraph__graph_kernel'
N=12500; E=800000; EB=E*4; CHB=12512; NQ=782
XB=N*128
HSTR=16384+128; SECD=0x420000
ESTR=16384+128
TABO=0x410000
EPO=0xd00000
TSTR=2176
o=[]
def e(s): o.append('    '+s)
def lab(s): o.append(s+':')
def f2u(f): return struct.unpack('<I',struct.pack('<f',f))[0]
def srd(d, lo, hi, nrec):
    e(f's_mov_b32 s{d}, s{lo}'); e(f's_mov_b32 s{d+1}, s{hi}'); e(f's_mov_b32 s{d+2}, {nrec}'); e(f's_mov_b32 s{d+3}, 0x20000')
NST=10
def stamp(i):
    if STAMP: e(f's_memrealtime s[{80+2*i}:{81+2*i}]')
    if SPIN and i==SPINAT: e('s_memtime s[100:101]' if SPINCYC else 's_memrealtime s[100:101]')
def tr(lane):
    if not TR: return
    e('s_memrealtime s[78:79]'); e('s_waitcnt lgkmcnt(0)')
    if isinstance(lane,str):
        e(f's_lshl_b64 exec, 1, {lane}'); e('v_mov_b32 v27, s78'); e('s_mov_b64 exec, -1')
    else:
        e(f'v_writelane_b32 v27, s78, {lane}')
def tr_store():
    if not TR: return
    e('s_add_u32 s76, s14, 0xa000000'); e('s_addc_u32 s77, s15, 0')
    e(f's_lshl_b32 s75, s{SP}, 12')
    e('v_lshl_add_u32 v1, v0, 2, s75')
    e('global_store_dword v1, v27, s[76:77]')
def stamp_store(wsreg):
    if not STAMP: return
    e('s_waitcnt lgkmcnt(0)')
    e('v_cmp_eq_u32 vcc, 0, v0')
    e('s_and_saveexec_b64 s[78:79], vcc')
    e(f's_cbranch_execz L_nostamp')
    e(f's_add_u32 s76, s{wsreg}, 0x8000000'); e(f's_addc_u32 s77, s{wsreg+1}, 0')
    e(f's_lshl_b32 s75, s{SP}, 7')
    e('v_mov_b32 v1, s75')
    for i in range(NST):
        e(f'v_mov_b32 v2, s{80+2*i}'); e(f'v_mov_b32 v3, s{81+2*i}')
        e(f'global_store_dwordx2 v1, v[2:3], s[76:77] offset:{8*i}')
        e('s_nop 1')
    lab('L_nostamp')
    e('s_mov_b64 exec, -1')

CNT=0; QS=144; QT=256; WV=QT+64*QS; PC=WV+8192; WQ=PC+1024; XR=WQ+8192; STG=XR+8192; IMG=STG; LIST=STG+100352; LDS=LIST+12544
assert STG%128==0 and QT%16==0 and WV%16==0 and IMG+128<=65536 and LDS<=163840
V={}
_n=[1]
def va(name,cnt=1,al=1):
    while _n[0]%al: _n[0]+=1
    V[name]=_n[0]; _n[0]+=cnt
    return V[name]
va('lane'); va('cA'); va('cB'); va('ia'); va('a10'); va('a11'); va('a2',4); va('m',4); va('cs'); va('idx',8); va('qa'); va('Z'); va('T'); V['Pk']=V['T']
va('O',16,4); va('D',4,4); va('Bq',32,4); va('A1',24,4); va('XT01',16,4); va('XT2',8,2)
NV=_n[0]
assert NV<=128, NV
def r(name,i=0,n=1):
    b=V[name]+i
    return f'v{b}' if n==1 else f'v[{b}:{b+n-1}]'
A1=V['A1']; XT3=A1; P01=A1+8; P2=A1+12; P3=A1+14
X0=V['XT01']; TMP=V['XT2']; OO=V['O']; ID=V['idx']
L=r('lane')
DQ=X0; SQ=X0+4; AD=X0+8; RK=X0+12
EPR=ID; T16=V['D']; L16=V['D']+1; FOUR=V['D']+2
SC=A1; TGS=A1+16
XQ=A1; WF=A1+8; QD=V['D']; QAW=ID+4; QAX=ID+5; QAX2=ID+6; QAT=ID+7
GA=[X0, X0+4]; CNV=X0+8; TT=X0+9; PO2=X0+10
HOF=TMP; SOF=TMP+1; J4=TMP+2; TWO=TMP+4; PIA=TMP+5; PSO=TMP+6; PCA=TMP+7
M0_=0xC003C000
SP=49
M_=0xC0FFC000

def wfrag_addr_q():
    e(f'v_lshrrev_b32 v{TMP}, 4, {L}'); e(f'v_lshlrev_b32 v{TMP}, 10, v{TMP}')
    e(f'v_bfe_u32 v{TMP+1}, {L}, 2, 2'); e(f'v_lshl_add_u32 v{TMP}, v{TMP+1}, 7, v{TMP}')
    e(f'v_and_b32 v{TMP+1}, 3, {L}'); e(f'v_lshl_add_u32 v{TMP}, v{TMP+1}, 3, v{TMP}')
    e('s_and_b32 s3, s36, 3'); e('s_lshl_b32 s3, s3, 5')
    e(f'v_add_u32 v{TMP}, s3, v{TMP}')

_u=[0]
def dma_issue(nc, check):
    _u[0]+=1; u=_u[0]
    if check and HSK: e('s_lshl_b32 s77, s43, 1'); e('s_add_u32 s77, s77, 1')
    for k in range(nc):
        if check: e(f's_cmp_lt_u32 s43, s{45+k}'); e(f's_cbranch_scc0 D{u}_{k}')
        e(f'v_lshl_add_u32 {r("idx",2*k)}, {r("idx",2*k)}, 7, {r("cA")}')
        e(f's_add_u32 m0, s37, {k*2048}')
        e(f'v_lshl_add_u32 {r("idx",2*k+1)}, {r("idx",2*k+1)}, 7, {r("cB")}')
        e(f'buffer_load_dwordx4 {r("idx",2*k)}, s[16:19], 0 offen lds')
        if check and HSK: e(f's_cmp_lt_u32 s77, s{8+k}'); e(f's_cbranch_scc0 D{u}_{k}')
        e(f's_add_u32 m0, s37, {k*2048+1024}')
        e('s_nop 0')
        e(f'buffer_load_dwordx4 {r("idx",2*k+1)}, s[16:19], 0 offen lds')
        if check: lab(f'D{u}_{k}')
def idx_reads(nc):
    for k in range(nc):
        e(f'ds_read_u16 {r("idx",2*k)}, {r("ia")} offset:{k*4096}')
        e(f'ds_read_u16 {r("idx",2*k+1)}, {r("ia")} offset:{k*4096+16}')

def wv_reads():
    WFE=V['Bq']; a=ID
    e(f'v_lshrrev_b32 v{a}, 2, {L}'); e(f'v_lshlrev_b32 v{a}, 7, v{a}')
    e(f'v_and_b32 v{a+1}, 3, {L}'); e(f'v_lshl_add_u32 v{a}, v{a+1}, 5, v{a}')
    e(f'v_lshlrev_b32 v{a+1}, 1, {L}'); e(f'v_and_b32 v{a+1}, 16, v{a+1}'); e(f'v_or_b32 v{a}, v{a}, v{a+1}'); e(f'v_xor_b32 v{a+1}, 16, v{a}')
    for Mt in range(4):
        for ks in range(2):
            for jh in range(2):
                d=WFE+8*Mt+4*ks+2*jh
                e(f'ds_read_b64_tr_b16 v[{d}:{d+1}], v{a+(Mt>>1)} offset:{WV+(2*ks+jh)*2048+8*(Mt&1)}')

def sigmoid(nc):
    e(f'v_mul_f32 {r("Z")}, {r("D",0)}, {r("cs")}')
    for i in (1,2,3):
        e(f'v_mul_f32_dpp {r("Z")}, {r("D",i)}, {r("cs")} row_shr:{4*i} row_mask:0xf bank_mask:{1<<i:#x}')
    e(f'v_exp_f32 {r("Z")}, {r("Z")}')
    e('s_nop 0')
    e(f'v_add_f32 {r("Z")}, 1.0, {r("Z")}')
    e(f'v_rcp_f32 {r("Z")}, {r("Z")}')
    e('s_nop 1')
    e(f'v_mov_b32_dpp {r("T")}, {r("Z")} row_shl:4 row_mask:0xf bank_mask:0xf bound_ctrl:0')
    e(f'v_cvt_pk_bf16_f32 {r("Pk")}, {r("Z")}, {r("T")}')
    dsts=[P01,P01+2,P2,P3]
    for k in range(nc):
        e(f'v_and_b32 v{dsts[k]}, {r("Pk")}, {r("m",k)}')
    for k in range(nc):
        e(f'v_and_b32_dpp v{dsts[k]+1}, {r("Pk")}, {r("m",k)} row_shl:8 row_mask:0xf bank_mask:0xf bound_ctrl:0')
    e('s_nop 1')
def xt(k,f):
    return V['XT01']+4*f+2*k if k<2 else (V['XT2']+2*f if k==2 else XT3+2*f)
def a1r(k):
    return 8*k if k<3 else 0
def mf1(k, first):
    c0 = '0' if first else r("D",0,4)
    e(f'v_mfma_f32_16x16x32_bf16 {r("D",0,4)}, {r("A1",a1r(k),4)}, {r("Bq",8*k,4)}, {c0}')
    e(f'v_mfma_f32_16x16x32_bf16 {r("D",0,4)}, {r("A1",a1r(k)+4,4)}, {r("Bq",8*k+4,4)}, {r("D",0,4)}')
def a1reads(k):
    e(f'ds_read_b128 {r("A1",a1r(k),4)}, {r("a10")} offset:{k*2048}')
    e(f'ds_read_b128 {r("A1",a1r(k)+4,4)}, {r("a11")} offset:{k*2048}')
def trreads(k):
    return [f'ds_read_b64_tr_b16 v[{xt(k,f)}:{xt(k,f)+1}], {r("a2",f)} offset:{k*2048}' for f in range(4)]
def mf2pair():
    for f in range(4):
        e(f'v_mfma_f32_16x16x32_bf16 {r("O",4*f,4)}, {r("XT01",4*f,4)}, v[{P01}:{P01+3}], {r("O",4*f,4)}')
def mf2single(k):
    P=P2 if k==2 else P3
    for f in range(4):
        e(f'v_mfma_f32_16x16x16_bf16 {r("O",4*f,4)}, v[{xt(k,f)}:{xt(k,f)+1}], v[{P}:{P+1}], {r("O",4*f,4)}')

def main_loop(nc):
    t=f'M{nc}'
    e('s_cmp_eq_u32 s42, 5'); e(f's_cbranch_scc1 {t}_spec')
    e(f'v_add_u32 {r("ia")}, s3, {r("Z")}')
    idx_reads(nc)
    lab(f'{t}_spec')
    if EARLY:
        for k in range(nc): e(f's_sub_u32 s{45+k}, s{45+k}, s13')
        e('s_sub_u32 s42, s42, s13')
    e('s_min_u32 s44, s45, s46'); e('s_min_u32 s44, s44, s47')
    if nc==4: e('s_min_u32 s44, s44, s48')
    e('s_sub_u32 s43, s42, 1')
    if EARLY: e('s_cmp_lg_u32 s13, 0'); e(f's_cbranch_scc1 {t}_early')
    e('s_waitcnt lgkmcnt(0)')
    dma_issue(nc, True)
    if not EARLY: tr(11)
    lab(f'{t}_loop')
    if PRIO==2:
        th=[(3,2,1),(4,2,1),(4,3,1),(4,3,2)][PM]
        e('s_setprio 3'); e(f's_cmp_gt_u32 s42, {th[0]}'); e(f's_cbranch_scc1 {t}_pd')
        e('s_setprio 2'); e(f's_cmp_gt_u32 s42, {th[1]}'); e(f's_cbranch_scc1 {t}_pd')
        e('s_setprio 1'); e(f's_cmp_gt_u32 s42, {th[2]}'); e(f's_cbranch_scc1 {t}_pd')
        e('s_setprio 0')
        lab(f'{t}_pd')
    e(f'v_subrev_u32 {r("ia")}, 32, {r("ia")}')
    e('s_sub_u32 s42, s42, 1'); e('s_sub_u32 s43, s42, 1')
    idx_reads(nc)
    e('s_cmp_ge_u32 s42, s44'); e(f's_cbranch_scc1 {t}_ramp')
    e('s_waitcnt vmcnt(0)')
    tr('s42')
    for k in range(3): a1reads(k)
    trl=trreads(0)+trreads(1)+trreads(2)
    for x in trl[:6]: e(x)
    e('s_waitcnt lgkmcnt(10)')
    mf1(0,True)
    for x in trl[6:]: e(x)
    if nc==4:
        a1reads(3)
        e('s_waitcnt lgkmcnt(14)')
    else:
        e('s_waitcnt lgkmcnt(12)')
    mf1(1,False); mf1(2,False)
    if nc==4:
        e('s_waitcnt lgkmcnt(0)')
        mf1(3,False)
        for x in trreads(3): e(x)
    e('s_waitcnt lgkmcnt(0)')
    e('s_cmp_eq_u32 s42, 0')
    e(f's_cbranch_scc1 {t}_last')
    dma_issue(nc, False)
    lab(f'{t}_nodma')
    if TR: e('s_add_u32 s75, s42, 16'); tr('s75')
    sigmoid(nc)
    mf2pair(); mf2single(2)
    if nc==4: mf2single(3)
    e('s_cmp_lg_u32 s42, 0')
    e(f's_cbranch_scc1 {t}_loop')
    e('s_branch L_loop_done')
    lab(f'{t}_last')
    e('s_nop 4')
    e('s_cmp_lg_u32 s67, 0'); e(f's_cbranch_scc1 {t}_nodma')
    wv_reads()
    e(f's_branch {t}_nodma')
    if EARLY:
        lab(f'{t}_early')
        e('s_waitcnt vmcnt(0)')
        tr(5)
        for k in range(3): a1reads(k)
        trl=trreads(0)+trreads(1)+trreads(2)
        for x in trl[:6]: e(x)
        e('s_waitcnt lgkmcnt(10)')
        mf1(0,True)
        for x in trl[6:]: e(x)
        if nc==4:
            a1reads(3)
            e('s_waitcnt lgkmcnt(14)')
        else:
            e('s_waitcnt lgkmcnt(12)')
        mf1(1,False); mf1(2,False)
        if nc==4:
            e('s_waitcnt lgkmcnt(0)')
            mf1(3,False)
            for x in trreads(3): e(x)
        e('s_waitcnt lgkmcnt(0)')
        e('s_cmp_eq_u32 s42, 0')
        e(f's_cbranch_scc1 {t}_elast')
        dma_issue(nc, True)
        lab(f'{t}_enodma')
        tr(21)
        e('s_nop 7')
        sigmoid(nc)
        mf2pair()
        for i in range(16): e(f'v_mov_b32 {r("XT01",i)}, 0')
        mf2single(2)
        if nc==4: mf2single(3)
        e('s_cmp_lg_u32 s42, 0')
        e(f's_cbranch_scc1 {t}_loop')
        e('s_branch L_loop_done')
        lab(f'{t}_elast')
        wv_reads()
        e(f's_branch {t}_enodma')
    lab(f'{t}_ramp')
    for i in range(4): e(f'v_mov_b32 {r("D",i)}, 0')
    e('s_waitcnt vmcnt(0)')
    tr('s42')
    for k in range(3):
        e(f's_cmp_lt_u32 s42, s{45+k}'); e(f's_cbranch_scc0 {t}_r1{k}')
        a1reads(k)
        for x in trreads(k): e(x)
        lab(f'{t}_r1{k}')
    e('s_waitcnt lgkmcnt(0)')
    for k in range(3):
        e(f's_cmp_lt_u32 s42, s{45+k}'); e(f's_cbranch_scc0 {t}_r2{k}')
        mf1(k,False)
        lab(f'{t}_r2{k}')
    if nc==4:
        e(f's_cmp_lt_u32 s42, s48'); e(f's_cbranch_scc0 {t}_r23')
        a1reads(3)
        e('s_waitcnt lgkmcnt(0)')
        mf1(3,False)
        for x in trreads(3): e(x)
        e('s_waitcnt lgkmcnt(0)')
        lab(f'{t}_r23')
    e('s_cmp_eq_u32 s42, 0')
    e(f's_cbranch_scc1 {t}_rlast')
    dma_issue(nc, True)
    lab(f'{t}_rnodma')
    if TR: e('s_add_u32 s75, s42, 16'); tr('s75')
    e('s_nop 7')
    sigmoid(nc)
    mf2pair()
    e(f's_cmp_lt_u32 s42, s47'); e(f's_cbranch_scc0 {t}_r32')
    mf2single(2)
    lab(f'{t}_r32')
    if nc==4:
        e(f's_cmp_lt_u32 s42, s48'); e(f's_cbranch_scc0 {t}_r33')
        mf2single(3)
        lab(f'{t}_r33')
    e('s_cmp_lg_u32 s42, 0')
    e(f's_cbranch_scc1 {t}_loop')
    e('s_branch L_loop_done')
    lab(f'{t}_rlast')
    e('s_cmp_lg_u32 s67, 0'); e(f's_cbranch_scc1 {t}_rnodma')
    wv_reads()
    e(f's_branch {t}_rnodma')

def list_init(t):
    for i in range(4): e(f'v_mov_b32 v{t+i}, -1')
    e(f'v_lshlrev_b32 v{t+4}, 4, v0')
    e(f'v_add_u32 v{t+4}, {LIST}, v{t+4}')
    e('v_cmp_gt_u32 vcc, 784, v0')
    e('s_mov_b64 exec, vcc')
    e(f'ds_write_b128 v{t+4}, v[{t}:{t+3}]')
    e('s_mov_b64 exec, -1')
    _u[0]+=1; u=_u[0]
    e('s_cmp_lg_u32 s36, 13'); e(f's_cbranch_scc1 I{u}')
    e(f'v_lshlrev_b32 v{t+5}, 2, {L}')
    e(f'v_lshlrev_b32 v{t+6}, 8, {L}'); e(f'v_add_u32 v{t+6}, {LIST}, v{t+6}')
    e(f'v_mov_b32 v{t+4}, s40')
    e(f'v_cmp_le_u32 vcc, 56, {L}')
    e('s_nop 1')
    e(f'v_cndmask_b32 v{t+6}, v{t+6}, v{t+4}, vcc')
    e(f'ds_write_b32 v{t+5}, v{t+6} offset:{CNT}')
    lab(f'I{u}')
def stg_zero(t):
    for i in range(4): e(f'v_mov_b32 v{t+i}, 0')
    e(f'v_lshl_add_u32 v{t+4}, {L}, 4, s37')
    for i in range(6): e(f'ds_write_b128 v{t+4}, v[{t}:{t+3}] offset:{1024*i}')
    _u[0]+=1; u=_u[0]
    e('s_cmp_lg_u32 s36, 0'); e(f's_cbranch_scc1 Z{u}')
    for i in (6,7): e(f'ds_write_b128 v{t+4}, v[{t}:{t+3}] offset:{1024*i}')
    lab(f'Z{u}')

def insert_entries(groups, tr_, two):
    n=sum(len(g[1]) for g in groups)
    i=0
    for m,regs in groups:
        e(f's_mov_b64 exec, {m}')
        for x in regs:
            e(f'v_lshrrev_b32 v{tr_+i}, 22, v{x}')
            e(f'ds_add_rtn_u32 v{tr_+i}, v{tr_+i}, v{two} offset:{CNT}')
            i+=1
    i=0
    for m,regs in groups:
        e(f's_mov_b64 exec, {m}')
        for x in regs:
            e(f's_waitcnt lgkmcnt({n-1})')
            e(f'ds_write_b16 v{tr_+i}, v{x}')
            i+=1
    e('s_mov_b64 exec, -1')

def scan_quads(off, vmask):
    e(f's_mov_b64 exec, {vmask}')
    e(f'buffer_load_dwordx4 v[{DQ}:{DQ+3}], v{off}, s[20:23], 0 offen')
    e(f'buffer_load_dwordx4 v[{SQ}:{SQ+3}], v{off}, s[24:27], 0 offen')
    e(f'v_mov_b32 v{RK}, 2')
    e('s_mov_b32 s3, 0x050c0100')
    e('s_waitcnt vmcnt(0)')
    ms=['s[42:43]','s[44:45]','s[46:47]','s[64:65]']
    for i in range(4):
        e(f'v_and_b32 v{AD+i}, 0xff, v{DQ+i}')
        e(f'v_cmp_eq_u32 {ms[i]}, s2, v{AD+i}')
        e(f'v_perm_b32 v{SQ+i}, v{DQ+i}, v{SQ+i}, s3')
    insert_entries([(ms[i],[SQ+i]) for i in range(4)], AD, RK)

def pf_loads():
    if not PF: return
    e(f's_lshr_b32 s3, s{SP}, 3'); e('s_mul_i32 s3, s3, 50000')
    e('s_add_u32 s96, s4, s3'); e('s_addc_u32 s97, s5, 0'); e('s_mov_b32 s98, 50000'); e('s_mov_b32 s99, 0x20000')
    e(f'v_lshlrev_b32 v{TMP+6}, 6, v0')
    e(f'buffer_load_dword v{TMP+5}, v{TMP+6}, s[96:99], 0 offen')

def expand_bytes(p):
    e(f's_lshr_b64 s[64:65], s[{p}:{p+1}], 1'); e(f's_or_b64 s[{p}:{p+1}], s[{p}:{p+1}], s[64:65]')
    e(f's_lshr_b64 s[64:65], s[{p}:{p+1}], 2'); e(f's_or_b64 s[{p}:{p+1}], s[{p}:{p+1}], s[64:65]')
    e(f's_lshr_b64 s[64:65], s[{p}:{p+1}], 4'); e(f's_or_b64 s[{p}:{p+1}], s[{p}:{p+1}], s[64:65]')
    e(f's_and_b32 s{p}, s{p}, 0x01010101'); e(f's_and_b32 s{p+1}, s{p+1}, 0x01010101')
    e(f's_mul_i32 s{p}, s{p}, 0xff'); e(f's_mul_i32 s{p+1}, s{p+1}, 0xff')

def head_issue():
    if DELAY: e(f's_sleep {DELAY}')
    e(f'buffer_load_dwordx4 v[{GA[0]}:{GA[0]+3}], v{HOF}, s[68:71], 0 offen sc1')
    if SPEC: e(f'buffer_load_dwordx4 v[{GA[1]}:{GA[1]+3}], v{SOF}, s[68:71], 0 offen sc1')

def validate(G, p):
    for i in range(4): e(f'v_xor_b32 v{G+i}, s{50+i}, v{G+i}')
    e(f'v_or3_b32 v{TT}, v{G+1}, v{G+2}, v{G+3}')
    e(f'v_and_b32 v{TT}, s46, v{TT}')
    e(f'v_and_or_b32 v{TT}, v{G}, s47, v{TT}')
    e(f'v_cmp_ne_u32 {p}, 0, v{TT}')
    e(f's_cmp_lg_u64 {p}, 0')

def kernel():
    o.append('.p2align 8'); o.append(f'.type {K},@function'); lab(K)
    e('s_cmp_ge_u32 s2, 256'); e('s_cbranch_scc1 L_end')
    stamp(0)
    if TR: e('v_mov_b32 v27, 0'); tr(8)
    e('s_load_dwordx8 s[16:23], s[0:1], 0')
    e('s_load_dwordx8 s[8:15], s[0:1], 32')
    t0,t1,t2,t3=A1+8,A1+9,A1+10,A1+11
    e(f'v_lshrrev_b32 v{t0}, 6, v0')
    e(f'v_lshlrev_b32 v{T16}, 4, v0')
    e(f'v_readfirstlane_b32 s36, v{t0}')
    e('s_and_b32 s3, s2, 7'); e('s_add_u32 s3, s3, 56'); e('s_lshl_b32 s3, s3, 24')
    for i in range(4): e(f'v_mov_b32 v{A1+i}, s3')
    e(f'v_lshrrev_b32 v{PCA}, 2, v0'); e(f'v_lshl_add_u32 v{PIA}, v{PCA}, 7, v{T16}')
    e(f'v_and_b32 {L}, 63, v0')
    e(f's_mul_i32 s42, s2, {CHB}')
    e(f'v_add_u32 v{t1}, s42, v{T16}')
    e(f'v_mov_b32 v{t2}, 0')
    e(f's_mov_b32 s26, {EB}'); e('s_mov_b32 s27, 0x20000')
    e(f's_mov_b32 s70, 16'); e('s_mov_b32 s71, 0x20000'); e('s_mov_b32 s98, 256'); e('s_mov_b32 s99, 0x20000'); e('s_mov_b32 s58, 0'); e('s_mov_b32 s59, 0')
    e(f'v_cmp_gt_u32 vcc, {NQ}, v0'); e('s_mov_b64 s[62:63], vcc')
    e(f'v_cmp_gt_u32 vcc, {EB}, v{t1}'); e('s_and_b64 s[62:63], s[62:63], vcc')
    e(f'v_lshlrev_b32 v{A1+4}, 2, v0')
    e(f'v_cndmask_b32 v{t1}, 4.0, v{t1}, s[62:63]')
    e(f's_mov_b32 s{SP}, s2')
    e('s_and_b32 s3, s2, 7'); e('s_lshl_b32 s3, s3, 5'); e('s_lshr_b32 s2, s2, 3'); e('s_or_b32 s2, s2, s3')
    e('s_waitcnt lgkmcnt(0)')
    stamp(1)
    e('s_mov_b64 s[24:25], s[18:19]'); e('s_mov_b64 s[96:97], s[12:13]'); e('s_mov_b64 s[12:13], s[10:11]'); e('s_mov_b64 s[10:11], s[8:9]'); e('s_mov_b64 s[8:9], s[22:23]')
    e(f's_mov_b32 s22, {EB}'); e('s_mov_b32 s23, 0x20000')
    e(f's_add_u32 s68, s14, {EPO}'); e('s_addc_u32 s69, s15, 0')
    if not EPL:
        e(f'buffer_load_dwordx4 v[{EPR}:{EPR+3}], v{t2}, s[68:71], 0 offen sc1')
    if TW:
        e('s_cmp_eq_u32 s36, 13'); e('s_cbranch_scc1 L_tw')
    e(f'buffer_load_dwordx4 v[{DQ}:{DQ+3}], v{t1}, s[20:23], 0 offen')
    e(f'buffer_load_dwordx4 v[{SQ}:{SQ+3}], v{t1}, s[24:27], 0 offen')
    lab('L_twb')
    if EPL:
        e(f'buffer_load_dwordx4 v[{EPR}:{EPR+3}], v{t2}, s[68:71], 0 offen sc1')
    for i in range(3): e(f'ds_write_b128 v{PIA}, v[{A1}:{A1+3}] offset:{IMG+64*i}')
    e('s_cmp_lt_u32 s36, 4'); e('s_cbranch_scc0 L_nopc')
    e(f'ds_write_b32 v{A1+4}, v{t2} offset:{PC}')
    lab('L_nopc')
    e('s_waitcnt lgkmcnt(0)')
    e('s_barrier')
    e(f'v_lshlrev_b32 v{L16}, 4, {L}')
    e(f'v_and_b32 v{t0}, 16, {L}'); e(f'v_xor_b32 v{t0}, v{t0}, v{L16}')
    e('s_and_b32 s39, s36, 7'); e('s_lshl_b32 s39, s39, 10')
    e('s_cmp_lt_u32 s36, 8')
    e('s_cselect_b32 s28, s8, s10'); e('s_cselect_b32 s29, s9, s11'); e('s_mov_b32 s30, 8192'); e('s_mov_b32 s31, 0x20000')
    e(f's_cselect_b32 s3, {WQ-WV}, 0')
    e(f's_add_u32 s3, s3, {WV}')
    e('s_add_u32 m0, s3, s39')
    e(f's_mov_b32 s18, {XB}'); e('s_mov_b32 s19, 0x20000')
    e(f'buffer_load_dwordx4 v{t0}, s[28:31], s39 offen lds')
    e(f'v_bfe_u32 v{t0}, v0, 3, 6')
    e(f'v_lshlrev_b32 v{t0}, 15, v{t0}')
    e(f'v_lshrrev_b32 v{t3}, 3, {L}'); e(f'v_xor_b32 v{t3}, v{t3}, {L}'); e(f'v_and_b32 v{t3}, 7, v{t3}')
    e(f'v_lshl_add_u32 v{t0}, v{t3}, 4, v{t0}')
    e('s_lshl_b32 s38, s2, 7')
    e(f's_add_u32 m0, s39, {XR}')
    e(f'v_mov_b32 v{FOUR}, 4')
    e(f'buffer_load_dwordx4 v{t0}, s[16:19], s38 offen lds')
    e('s_mov_b32 s48, 0x050c0100'); e('s_mov_b32 s40, 0x30000')
    e('s_add_u32 s3, s36, 15'); e('s_and_b32 s3, s3, 15'); e('s_mul_i32 s37, s3, 6144'); e(f's_add_u32 s37, s37, {STG}')
    if not LIW: list_init(A1)
    e(f's_mul_i32 s3, s{SP}, {HSTR}'); e('s_add_u32 s28, s14, s3'); e('s_addc_u32 s29, s15, 0'); e(f's_mov_b32 s30, {2*SECD+16384}'); e('s_mov_b32 s31, 0x20000')
    e(f's_mov_b32 s54, {SECD}'); e(f's_mov_b32 s55, {2*SECD}')
    e('s_lshl_b32 s41, s36, 8'); e(f's_add_u32 s41, s41, {LIST-32}')
    e('s_mov_b32 s6, 0x00010001'); e('s_mov_b32 s7, 0x00010001')
    e(f'v_lshrrev_b32 v{t1}, 4, {L}')
    e(f'v_lshrrev_b32 v{t0}, 3, {L}'); e(f'v_and_b32 v{t0}, 6, v{t0}'); e(f'v_and_b32 v{t2}, 7, {L}')
    e(f'v_xor_b32 v{t0}, v{t0}, v{t2}'); e(f'v_lshlrev_b32 {r("cA")}, 4, v{t0}'); e(f'v_xor_b32 {r("cB")}, 16, {r("cA")}')
    e(f'v_and_b32 v{t0}, 6, {L}'); e(f'v_bfe_u32 v{t2}, {L}, 3, 1'); e(f'v_or_b32 v{t0}, v{t0}, v{t2}')
    e(f'v_lshlrev_b32 v{t2}, 1, v{t1}'); e(f'v_xor_b32 v{t0}, v{t0}, v{t2}'); e(f'v_lshlrev_b32 v{t0}, 4, v{t0}')
    e(f'v_and_b32 v{t2}, 15, {L}'); e(f'v_lshl_add_u32 v{t0}, v{t2}, 7, v{t0}')
    e(f'v_add_u32 {r("a10")}, s37, v{t0}'); e(f'v_xor_b32 {r("a11")}, 16, {r("a10")}')
    for k in range(4):
        e(f'v_cmp_eq_u32 s[64:65], {k}, v{t2}'); e('s_nop 1'); e(f'v_cndmask_b32 {r("m",k)}, 0, -1, s[64:65]')
    e(f'v_lshlrev_b32 v{t0}, 4, v{t2}'); e(f'v_add_u32 v{t0}, s36, v{t0}'); e(f's_movk_i32 s3, {QS}'); e(f'v_mul_u32_u24 v{t0}, s3, v{t0}')
    e(f'v_lshl_add_u32 {r("qa")}, v{t1}, 5, v{t0}')
    e('s_lshr_b32 s3, s36, 2'); e('s_lshl_b32 s3, s3, 4'); e(f'v_add_u32 v{t2}, s3, v{t2}')
    e(f'v_and_b32 v{t0}, 7, {L}'); e(f'v_xor_b32 v{t0}, v{t0}, v{t1}'); e(f'v_lshlrev_b32 v{t0}, 4, v{t0}')
    e(f'v_lshl_add_u32 v{QAX}, v{t2}, 7, v{t0}'); e(f'v_xor_b32 v{QAX2}, 64, v{QAX}')
    e(f's_movk_i32 s3, {QS}'); e(f'v_mul_u32_u24 v{t2}, s3, v{t2}')
    e(f'v_lshl_add_u32 v{t2}, v{t1}, 3, v{t2}')
    e('s_and_b32 s3, s36, 3'); e('s_lshl_b32 s3, s3, 5'); e(f'v_add_u32 v{QAT}, s3, v{t2}')
    e(f'v_lshlrev_b32 v{t0}, 10, v{t1}'); e(f'v_bfe_u32 v{t2}, {L}, 2, 2'); e(f'v_lshl_add_u32 v{t0}, v{t2}, 7, v{t0}')
    e(f'v_and_b32 v{t2}, 3, {L}'); e(f'v_lshl_add_u32 v{t0}, v{t2}, 3, v{t0}'); e(f'v_add_u32 v{t0}, s3, v{t0}')
    e(f'v_lshlrev_b32 v{J4}, 4, v{t2}')
    e(f'v_lshlrev_b32 v{t2}, 1, {L}'); e(f'v_and_b32 v{t2}, 16, v{t2}'); e(f'v_xor_b32 v{QAW}, v{t0}, v{t2}')
    e(f'v_lshrrev_b32 v{t0}, 2, {L}')
    e(f'v_and_b32 v{t2}, 6, v{t0}'); e(f'v_lshrrev_b32 v{t3}, 3, v{t0}'); e(f'v_or_b32 v{t2}, v{t2}, v{t3}')
    e(f'v_bfe_u32 v{t3}, {L}, 1, 1'); e(f'v_xor_b32 v{t2}, v{t2}, v{t3}'); e(f'v_lshlrev_b32 v{t2}, 4, v{t2}')
    e(f'v_lshl_add_u32 v{t2}, v{t0}, 7, v{t2}')
    e(f'v_and_b32 v{t3}, 1, {L}'); e(f'v_lshl_add_u32 v{t2}, v{t3}, 3, v{t2}')
    e(f'v_add_u32 {r("a2",0)}, s37, v{t2}')
    for f in (1,2,3): e(f'v_xor_b32 {r("a2",f)}, {32*f}, {r("a2",0)}')
    e(f'v_mov_b32 {r("cs")}, {f2u(-0.125*1.4426950408889634):#x}')
    e(f's_movk_i32 s3, {HSTR}'); e(f'v_mad_u32_u24 v{HOF}, v{PCA}, s3, v{J4}'); e('s_lshl_b32 s3, s2, 6'); e(f'v_add_u32 v{HOF}, s3, v{HOF}')
    e(f'v_add_u32 v{SOF}, {SECD}, v{HOF}')
    e(f'v_lshlrev_b32 v{PCA}, 2, v{PCA}')
    e(f'v_add_u32 v{J4}, 64, v{J4}')
    srd(68,14,15,2*SECD+256*HSTR)
    e(f'v_mov_b32 v{TWO}, 2')
    e('s_mov_b64 s[60:61], -1'); e('s_mov_b64 s[56:57], 0')
    e(f's_movk_i32 s66, {TIMEOUT}'); e('s_mov_b32 s67, 0')
    e(f's_mov_b32 s46, {M_:#x}'); e(f's_mov_b32 s47, {M0_:#x}')
    e('s_movk_i32 s44, 188'); e('s_movk_i32 s45, 252')
    def tags(w):
        e(f's_waitcnt vmcnt({w})')
        for i in range(4): e(f'v_readfirstlane_b32 s{50+i}, v{EPR+i}')
        e('s_bfe_u32 s42, s51, 0xa000e'); e('s_bfe_u32 s43, s52, 0xa000e'); e('s_bfe_u32 s3, s53, 0xa000e')
        e('s_lshl_b32 s43, s43, 10'); e('s_lshl_b32 s3, s3, 20'); e('s_or_b32 s42, s42, s43'); e('s_or_b32 s42, s42, s3')
        e('s_add_u32 s42, s42, 1')
        e(f's_and_b32 s50, s50, {M0_:#x}')
        for i,sh in ((1,0),(2,10),(3,20)):
            e(f's_and_b32 s{50+i}, s{50+i}, 0xc0000000')
            e(f's_bfe_u32 s43, s42, {0xa0000|sh:#x}'); e('s_lshl_b32 s43, s43, 14'); e(f's_or_b32 s{50+i}, s{50+i}, s43')
    if not EPL: tags(4)
    e('s_mov_b64 exec, s[62:63]')
    e(f's_waitcnt vmcnt({4 if EPL else 3})')
    stamp(2); tr(15)
    for i in range(4):
        e(f'v_lshlrev_b32_sdwa v{AD+i}, 2, v{DQ+i} dst_sel:DWORD dst_unused:UNUSED_PAD src0_sel:DWORD src1_sel:BYTE_0')
    for i in range(4):
        e(f'ds_add_rtn_u32 v{RK+i}, v{AD+i}, v{FOUR} offset:{PC}')
    e(f's_waitcnt vmcnt({3 if EPL else 2})')
    for i in range(4):
        e(f'v_perm_b32 v{SQ+i}, v{DQ+i}, v{SQ+i}, s48')
    for i in range(4):
        e(f's_waitcnt lgkmcnt(3)')
        e(f'v_min_u32 v{RK+i}, s44, v{RK+i}')
        e(f'v_mad_u32_u24 v{RK+i}, v{AD+i}, 48, v{RK+i}')
        e(f'ds_write_b32 v{RK+i}, v{SQ+i} offset:{IMG}')
    e('s_mov_b64 exec, -1')
    if EPL: tags(2)
    e('s_waitcnt lgkmcnt(0)')
    e('s_barrier')
    stamp(3); tr(43)
    C=AD
    e(f'ds_read_b32 v{C}, v{PCA} offset:{PC}')
    e(f'ds_read_b128 v[{DQ}:{DQ+3}], v{PIA} offset:{IMG}')
    e(f'ds_read_b128 v[{SQ}:{SQ+3}], v{PIA} offset:{IMG+64}')
    e('s_waitcnt lgkmcnt(2)')
    e(f'v_cmp_lt_u32 s[64:65], v{J4}, v{C}')
    e(f'v_cmp_lt_u32 vcc, 128, v{C}')
    e(f'v_min_u32 v{C+1}, s45, v{C}')
    e(f'v_lshl_or_b32 v{C+1}, v{C+1}, 16, s50')
    e('s_waitcnt lgkmcnt(1)')
    e(f'v_xor_b32 v{DQ}, v{C+1}, v{DQ}')
    for i in (1,2,3): e(f'v_xor_b32 v{DQ+i}, s{50+i}, v{DQ+i}')
    e(f'buffer_store_dwordx4 v[{DQ}:{DQ+3}], v{T16}, s[28:31], 0 offen sc1')
    e(f'v_cndmask_b32 v{C+2}, 4.0, v{T16}, s[64:65]')
    e('s_waitcnt lgkmcnt(0)')
    e(f'v_xor_b32 v{SQ}, v{C+1}, v{SQ}')
    for i in (1,2,3): e(f'v_xor_b32 v{SQ+i}, s{50+i}, v{SQ+i}')
    e(f'buffer_store_dwordx4 v[{SQ}:{SQ+3}], v{C+2}, s[28:31], s54 offen sc1')
    e('s_cbranch_vccnz L_third')
    lab('L_third_done')
    stamp(4); tr(12)
    srd(32,12,13,XB)
    if LIW: list_init(A1+16)
    tr(45)
    if TPOS==0: head_issue(); tr(46)
    for i in range(16): e(f'v_mov_b32 {r("O",i)}, 0')
    e('s_cmp_lg_u32 s59, 0'); e('s_cbranch_scc1 WB3')
    e(f's_waitcnt vmcnt({3 if TPOS==0 else 2})')
    lab('WB3')
    e(f's_waitcnt vmcnt({4 if TPOS==0 else 3})')
    tr(44)
    e('s_barrier')
    if SPIN and SPINAT==9: e('s_memrealtime s[100:101]')
    for ks in range(2):
        for jh in range(2):
            e(f'ds_read_b64_tr_b16 v[{WF+4*ks+2*jh}:{WF+4*ks+2*jh+1}], v{QAW} offset:{WQ+ks*4096+jh*512}')
    e(f'ds_read_b128 v[{XQ}:{XQ+3}], v{QAX} offset:{XR}'); e(f'ds_read_b128 v[{XQ+4}:{XQ+7}], v{QAX2} offset:{XR}')
    if TPOS==1: head_issue(); tr(46)
    e('s_waitcnt lgkmcnt(0)')
    e(f'v_mfma_f32_16x16x32_bf16 v[{QD}:{QD+3}], v[{WF}:{WF+3}], v[{XQ}:{XQ+3}], 0')
    e(f'v_mfma_f32_16x16x32_bf16 v[{QD}:{QD+3}], v[{WF+4}:{WF+7}], v[{XQ+4}:{XQ+7}], v[{QD}:{QD+3}]')
    for i in range(32): e(f'v_mov_b32 {r("Bq",i)}, 0')
    e(f'v_cvt_pk_bf16_f32 v{A1}, v{QD}, v{QD+1}'); e(f'v_cvt_pk_bf16_f32 v{A1+1}, v{QD+2}, v{QD+3}')
    e(f'ds_write_b64 v{QAT}, v[{A1}:{A1+1}] offset:{QT}')
    if TPOS==2: head_issue(); tr(46)
    e('s_waitcnt lgkmcnt(0)')
    tr(42)
    e('s_barrier')
    if TPOS==3: head_issue(); tr(46)
    for k in range(4):
        e(f's_lshl_b64 exec, s[6:7], {k}')
        e(f'ds_read_b128 {r("Bq",8*k,4)}, {r("qa")} offset:{QT}')
        e(f'ds_read_b128 {r("Bq",8*k+4,4)}, {r("qa")} offset:{QT+16}')
    e('s_mov_b64 exec, -1')
    e(f's_waitcnt vmcnt({1 if SPEC else 0})')
    tr(6)
    lab('L_hv')
    validate(GA[0], 's[60:61]')
    e('s_cbranch_scc1 L_hretry')
    lab('L_hok')
    e('s_mov_b64 exec, -1')
    stamp(5)
    tr(7)
    if TR: e('v_writelane_b32 v27, s66, 40')
    e(f'v_bfe_u32 v{CNV}, v{GA[0]}, 16, 8')
    e(f'v_cmp_lt_u32 vcc, s44, v{CNV}')
    e(f'v_cmp_lt_u32 s[62:63], v{J4}, v{CNV}')
    e('s_or_b64 s[56:57], s[56:57], vcc')
    e('s_andn2_b64 s[62:63], s[62:63], s[56:57]')
    e('s_mov_b64 s[74:75], s[62:63]')
    if not SPEC:
        e(f'v_cndmask_b32 v{PO2}, 4.0, v{SOF}, s[62:63]')
        e(f'buffer_load_dwordx4 v[{GA[1]}:{GA[1]+3}], v{PO2}, s[68:71], 0 offen sc1')
    e(f'v_and_b32 v{GA[0]}, 0x3f003fff, v{GA[0]}')
    if MSK:
        e(f'v_add_u32 v{PO2+1}, 64, v{CNV}'); e(f'v_sub_u32 v{PO2+1}, v{PO2+1}, v{J4}')
        ms=['s[42:43]','s[64:65]','s[72:73]','s[76:77]']
        e('s_andn2_b64 exec, -1, s[56:57]')
        for i in range(4): e(f'v_cmp_lt_i32 {ms[i]}, {4*i}, v{PO2+1}')
        for i in range(4):
            e(f's_mov_b64 exec, {ms[i]}')
            e(f'v_lshrrev_b32 v{A1+i}, 22, v{GA[0]+i}')
            e(f'ds_add_rtn_u32 v{A1+i}, v{A1+i}, v{TWO} offset:{CNT}')
        for i in range(4):
            e(f's_mov_b64 exec, {ms[i]}')
            e(f's_waitcnt lgkmcnt(3)')
            e(f'ds_write_b16 v{A1+i}, v{GA[0]+i}')
    else:
        e('s_andn2_b64 exec, -1, s[56:57]')
        for i in range(4):
            e(f'v_lshrrev_b32 v{A1+i}, 22, v{GA[0]+i}')
            e(f'ds_add_rtn_u32 v{A1+i}, v{A1+i}, v{TWO} offset:{CNT}')
        for i in range(4):
            e(f's_waitcnt lgkmcnt(3)')
            e(f'ds_write_b16 v{A1+i}, v{GA[0]+i}')
    e('s_mov_b32 s13, 0')
    if EARLY:
        e('s_mov_b64 exec, -1')
        e(f'v_lshrrev_b32 {r("Z")}, 3, {L}'); e(f'v_lshl_add_u32 {r("Z")}, {r("Z")}, 1, s41')
        e(f'v_add_u32 {r("ia")}, 32, {r("Z")}')
        e('s_cmp_lt_u32 s2, 212'); e('s_cselect_b32 s12, 0, 1'); e('s_or_b32 s12, s12, s36')
        e('s_mov_b32 s3, 0xffff')
        e('s_waitcnt lgkmcnt(0)')
        e('s_barrier')
        stamp(6); tr(10)
        e('s_setprio 3')
        idx_reads(4)
        e('s_cmp_eq_u32 s12, 0'); e('s_cbranch_scc1 L_e4')
        for nc in (3,4):
            if nc==4: lab('L_e4')
            e(f's_waitcnt lgkmcnt({2 if nc==3 else 0})')
            e(f'v_max3_u32 {r("T")}, {r("idx",0)}, {r("idx",1)}, {r("idx",2)}')
            e(f'v_max3_u32 {r("T")}, {r("T")}, {r("idx",3)}, {r("idx",4)}')
            if nc==3: e(f'v_max_u32 {r("T")}, {r("T")}, {r("idx",5)}')
            else:
                e(f'v_max3_u32 {r("T")}, {r("T")}, {r("idx",5)}, {r("idx",6)}'); e(f'v_max_u32 {r("T")}, {r("T")}, {r("idx",7)}')
            e(f'v_cmp_eq_u32 vcc, s3, {r("T")}')
            e('s_cbranch_vccnz L_sec')
            dma_issue(nc, False)
            tr(11)
            e('s_mov_b32 s13, 1')
            e('s_mov_b64 exec, s[62:63]')
            e('s_cbranch_execz L_secdone')
            e(f's_waitcnt vmcnt({2*nc})')
            e('s_branch L_sv')
    lab('L_sec')
    e('s_mov_b64 exec, s[62:63]')
    e('s_cbranch_execz L_secdone')
    e('s_waitcnt vmcnt(0)')
    lab('L_sv')
    validate(GA[1], 's[62:63]')
    e('s_cbranch_scc1 L_sretry')
    tr(9)
    e('s_mov_b64 exec, s[74:75]')
    e(f'v_and_b32 v{GA[1]}, 0x3f003fff, v{GA[1]}')
    for i in range(4):
        e(f'v_lshrrev_b32 v{A1+4+i}, 22, v{GA[1]+i}')
        e(f'ds_add_rtn_u32 v{A1+4+i}, v{A1+4+i}, v{TWO} offset:{CNT}')
    for i in range(4):
        e(f's_waitcnt lgkmcnt(3)')
        e(f'ds_write_b16 v{A1+4+i}, v{GA[1]+i}')
    e('s_mov_b64 exec, -1')
    e(f'v_add_u32 v{J4}, 64, v{J4}'); e(f'v_add_u32 v{SOF}, {SECD}, v{SOF}')
    e(f'v_cmp_lt_u32 s[62:63], v{J4}, v{CNV}')
    e('s_and_b64 s[62:63], s[62:63], s[74:75]')
    e('s_cbranch_scc1 L_more')
    lab('L_secdone')
    e('s_mov_b64 exec, -1')
    e('s_cmp_lg_u64 s[56:57], 0')
    e('s_cbranch_scc1 L_rescan')
    lab('L_rescan_done')
    e(f'v_lshrrev_b32 {r("Z")}, 3, {L}'); e(f'v_lshl_add_u32 {r("Z")}, {r("Z")}, 1, s41')
    e('s_waitcnt lgkmcnt(0)')
    e(f'v_lshlrev_b32 v{A1}, 2, {L}')
    e(f'v_lshlrev_b32 v{A1+1}, 8, {L}')
    e(f'v_subrev_u32 v{A1+1}, {15-LIST & 0xffffffff}, v{A1+1}')
    e(f'v_add_u32 {r("ia")}, {5*32}, {r("Z")}')
    for i in range(16): e(f'v_mov_b32 {r("XT01",i)}, 0')
    e('s_movk_i32 s3, 271')
    e('s_add_u32 s46, s36, 16'); e('s_add_u32 s47, s36, 32'); e('s_add_u32 s48, s36, 48')
    e('s_min_u32 s48, s48, 49')
    e('s_barrier')
    if not EARLY: stamp(6); tr(10)
    else: tr(48)
    lab('L_counts')
    e(f'ds_read_b32 {r("T")}, v{A1} offset:{CNT}')
    idx_reads(4)
    e('s_waitcnt lgkmcnt(8)')
    e(f'v_sub_u32 {r("T")}, {r("T")}, v{A1+1}')
    e(f'v_cmp_lt_u32 vcc, s3, {r("T")}')
    e(f'v_lshrrev_b32 {r("T")}, 4, {r("T")}')
    e('s_and_b32 vcc_hi, vcc_hi, 0xffffff')
    e(f'v_readlane_b32 s59, {r("T")}, 53')
    e('s_or_b32 s58, s58, s59')
    e('s_cmp_lg_u64 vcc, 0')
    e('s_cbranch_scc1 L_slow')
    e(f'v_readlane_b32 s8, {r("T")}, s36'); e(f'v_readlane_b32 s9, {r("T")}, s46'); e(f'v_readlane_b32 s10, {r("T")}, s47'); e(f'v_readlane_b32 s11, {r("T")}, s48')
    for k in range(4): e(f's_add_u32 s{45+k}, s{8+k}, 1'); e(f's_lshr_b32 s{45+k}, s{45+k}, 1')
    e('s_max_u32 s42, s45, s46'); e('s_max_u32 s42, s42, s47'); e('s_max_u32 s42, s42, s48')
    e('s_cmp_lg_u32 s42, 0')
    e('s_cbranch_scc0 L_r0')
    e('s_lshl_b32 s3, s42, 5')
    e('s_cmp_lg_u32 s48, 0'); e('s_cbranch_scc1 L_m4')
    main_loop(3)
    lab('L_m4')
    main_loop(4)
    lab('L_loop_done')
    e('s_cmp_lg_u32 s67, 0'); e('s_cbranch_scc1 L_slow_next')
    lab('L_epi')
    stamp(7); tr(13)
    e('s_cmp_lg_u32 s36, 0'); e('s_cbranch_scc1 L_nochk')
    e(f'v_mov_b32 {r("Z")}, 0')
    e(f'buffer_load_dword {r("T")}, {r("Z")}, s[96:99], 0 offen sc1')
    lab('L_nochk')
    WFE=V['Bq']
    e(f'v_and_b32 v{TMP+2}, 15, {L}'); e(f'v_lshlrev_b32 v{TMP+2}, 19, v{TMP+2}')
    e(f'v_lshrrev_b32 v{TMP+3}, 4, {L}'); e(f'v_lshl_add_u32 v{TMP+2}, v{TMP+3}, 5, v{TMP+2}')
    e('s_lshl_b32 s3, s36, 8'); e('s_add_u32 s3, s3, s2'); e('s_lshl_b32 s3, s3, 7')
    e(f'v_add_u32 v{TMP+2}, s3, v{TMP+2}')
    for f in range(4):
        e(f'v_cvt_pk_bf16_f32 v{A1+2*f}, {r("O",4*f)}, {r("O",4*f+1)}'); e(f'v_cvt_pk_bf16_f32 v{A1+2*f+1}, {r("O",4*f+2)}, {r("O",4*f+3)}')
    e('s_mov_b32 s64, 0x000f000f'); e('s_mov_b32 s65, 0x000f000f')
    for Mt in range(4):
        e(f's_waitcnt lgkmcnt({12-4*Mt})')
        e(f'v_mfma_f32_16x16x32_bf16 v[{X0+4*Mt}:{X0+4*Mt+3}], v[{WFE+8*Mt}:{WFE+8*Mt+3}], v[{A1}:{A1+3}], 0')
        e(f'v_mfma_f32_16x16x32_bf16 v[{X0+4*Mt}:{X0+4*Mt+3}], v[{WFE+8*Mt+4}:{WFE+8*Mt+7}], v[{A1+4}:{A1+7}], v[{X0+4*Mt}:{X0+4*Mt+3}]')
    e('s_mov_b64 exec, s[64:65]')
    e('s_nop 2')
    for Mt in range(4):
        if Mt==3: e('s_nop 3')
        e(f'v_cvt_pk_bf16_f32 v{A1+8+2*Mt}, v{X0+4*Mt}, v{X0+4*Mt+1}'); e(f'v_cvt_pk_bf16_f32 v{A1+9+2*Mt}, v{X0+4*Mt+2}, v{X0+4*Mt+3}')
        if Mt==1: e(f'buffer_store_dwordx4 v[{A1+8}:{A1+11}], v{TMP+2}, s[32:35], 0 offen{OSC}')
    e(f'buffer_store_dwordx4 v[{A1+12}:{A1+15}], v{TMP+2}, s[32:35], 0 offen offset:16{OSC}')
    e('s_mov_b64 exec, -1')
    e('s_or_b32 s3, s58, s36'); e('s_cbranch_scc1 L_noep')
    e(f's_cmp_eq_u32 s{SP}, 0'); e('s_cbranch_scc1 L_pub')
    e('s_waitcnt vmcnt(2)')
    e(f'v_readfirstlane_b32 s3, {r("T")}')
    e('s_cmp_eq_u32 s3, 0'); e('s_cbranch_scc1 L_noep')
    lab('L_pub')
    for i in range(4): e(f'v_mov_b32 v{X0+i}, s{50+i}')
    e(f'v_mov_b32 v{X0+4}, 0')
    e(f's_add_u32 s68, s14, {EPO}'); e('s_addc_u32 s69, s15, 0'); e('s_mov_b32 s70, 16'); e('s_mov_b32 s71, 0x20000')
    e('s_mov_b64 exec, 1')
    e(f'buffer_store_dwordx4 v[{X0}:{X0+3}], v{X0+4}, s[68:71], 0 offen sc1')
    e('s_mov_b64 exec, -1')
    lab('L_noep')
    stamp(8); tr(14); tr_store()
    if STAMP:
        e('s_waitcnt vmcnt(0)'); stamp(9); stamp_store(14)
    if SPIN:
        lab('L_spin')
        e('s_sleep 4'); e('s_memtime s[94:95]' if SPINCYC else 's_memrealtime s[94:95]'); e('s_waitcnt lgkmcnt(0)'); e('s_sub_u32 s94, s94, s100'); e(f's_cmp_lt_u32 s94, {SPIN}'); e('s_cbranch_scc1 L_spin')
    lab('L_end')
    e('s_endpgm')
    lab('L_r0')
    e('s_cmp_lg_u32 s67, 0'); e('s_cbranch_scc1 L_slow_next')
    lab('L_epi_ld')
    wv_reads()
    e('s_branch L_epi')
    if TW:
        lab('L_tw')
        e(f'v_mov_b32 v{DQ}, s8'); e(f'v_mov_b32 v{DQ+1}, s9')
        e(f'v_writelane_b32 v{DQ}, s10, 1'); e(f'v_writelane_b32 v{DQ+1}, s11, 1')
        e(f'v_writelane_b32 v{DQ}, s16, 2'); e(f'v_writelane_b32 v{DQ+1}, s17, 2')
        e(f'v_writelane_b32 v{DQ}, s12, 3'); e(f'v_writelane_b32 v{DQ+1}, s13, 3')
        e(f'global_load_dword v{SQ}, v[{DQ}:{DQ+1}], off')
        e(f'buffer_load_dwordx4 v[{SQ}:{SQ+3}], v{A1+9}, s[24:27], 0 offen')
        e('s_branch L_twb')
    lab('L_third')
    e(f'ds_read_b128 v[{A1}:{A1+3}], v{PIA} offset:{IMG+128}')
    e(f'v_add_u32 v{AD+3}, 64, v{J4}')
    e(f'v_cmp_lt_u32 s[64:65], v{AD+3}, v{AD}')
    e('s_waitcnt lgkmcnt(0)')
    e(f'v_xor_b32 v{A1}, v{AD+1}, v{A1}')
    e(f'v_cndmask_b32 v{AD+2}, 4.0, v{T16}, s[64:65]')
    for i in (1,2,3): e(f'v_xor_b32 v{A1+i}, s{50+i}, v{A1+i}')
    e(f'buffer_store_dwordx4 v[{A1}:{A1+3}], v{AD+2}, s[28:31], s55 offen sc1')
    e('s_mov_b32 s59, 1')
    e('s_branch L_third_done')
    lab('L_more')
    e('s_mov_b64 s[74:75], s[62:63]')
    e('s_waitcnt lgkmcnt(0)')
    e('s_mov_b64 exec, s[62:63]')
    e(f'buffer_load_dwordx4 v[{GA[1]}:{GA[1]+3}], v{SOF}, s[68:71], 0 offen sc1')
    e('s_branch L_sec')
    lab('L_hretry')
    e('s_sub_u32 s66, s66, 1')
    e('s_cbranch_scc1 L_hto')
    if SLEEP: e(f's_sleep {SLEEP}')
    e('s_mov_b64 exec, s[60:61]')
    e(f'buffer_load_dwordx4 v[{GA[0]}:{GA[0]+3}], v{HOF}, s[68:71], 0 offen sc1')
    e('s_waitcnt vmcnt(0)')
    e('s_branch L_hv')
    lab('L_hto')
    e('s_mov_b32 s66, 0')
    e('s_lshr_b64 s[64:65], s[60:61], 1'); e('s_or_b64 s[60:61], s[60:61], s[64:65]')
    e('s_lshr_b64 s[64:65], s[60:61], 2'); e('s_or_b64 s[60:61], s[60:61], s[64:65]')
    e('s_and_b32 s60, s60, 0x11111111'); e('s_and_b32 s61, s61, 0x11111111')
    e('s_mul_i32 s56, s60, 15'); e('s_mul_i32 s57, s61, 15')
    e('s_mov_b64 exec, -1')
    e(f'v_mov_b32 v{TT}, 212'); e(f'v_mov_b32 v{PO2}, 0')
    e('s_mov_b64 exec, 1')
    e(f'ds_add_u32 v{TT}, v{TWO} offset:{CNT}')
    e(f'buffer_store_dword v{TT}, v{PO2}, s[96:99], 0 offen sc1')
    e('s_branch L_hok')
    lab('L_sretry')
    e('s_sub_u32 s66, s66, 1')
    e('s_cbranch_scc1 L_force_slow')
    if SLEEP: e(f's_sleep {SLEEP}')
    e('s_mov_b64 exec, s[62:63]')
    e(f'buffer_load_dwordx4 v[{GA[1]}:{GA[1]+3}], v{SOF}, s[68:71], 0 offen sc1')
    e('s_waitcnt vmcnt(0)')
    e('s_branch L_sv')
    lab('L_force_slow')
    e('s_mov_b64 exec, -1')
    e('s_waitcnt vmcnt(0)')
    e(f'v_mov_b32 v{TT}, 0x10000'); e(f'v_mov_b32 v{X0}, 220')
    e('s_mov_b64 exec, 1')
    e(f'ds_add_u32 v{X0}, v{TT} offset:{CNT}')
    e('s_mov_b64 exec, -1')
    e('s_branch L_rescan_done')
    lab('L_rescan')
    e('s_lshl_b32 s72, s36, 4')
    lab('L_rs_next')
    e('s_cmp_eq_u64 s[56:57], 0'); e('s_cbranch_scc1 L_rescan_done')
    e('s_ff1_i32_b64 s73, s[56:57]')
    e('s_lshl_b64 s[64:65], 15, s73'); e('s_andn2_b64 s[56:57], s[56:57], s[64:65]')
    e('s_lshr_b32 s73, s73, 2'); e('s_add_u32 s73, s73, s72')
    e(f's_mul_i32 s73, s73, {CHB}')
    e('s_mov_b32 s74, 0')
    lab('L_rs_loop')
    e(f'v_add_u32 {r("Z")}, s74, {L}')
    e(f'v_lshl_add_u32 {r("T")}, {r("Z")}, 4, s73')
    e(f'v_cmp_gt_u32 vcc, {NQ}, {r("Z")}'); e('s_mov_b64 s[62:63], vcc')
    e(f'v_cmp_gt_u32 vcc, {EB}, {r("T")}'); e('s_and_b64 s[62:63], s[62:63], vcc')
    scan_quads(V['T'],'s[62:63]')
    e('s_add_u32 s74, s74, 64'); e(f's_cmp_lt_u32 s74, {NQ}'); e('s_cbranch_scc1 L_rs_loop')
    e('s_branch L_rs_next')
    lab('L_slow')
    e('s_mov_b32 s67, 1'); e('s_mov_b32 s75, 0'); e('s_mov_b32 s13, 0'); e('s_waitcnt vmcnt(0)')
    lab('L_slow_next')
    e(f's_cmp_ge_u32 s75, {EB}'); e('s_cbranch_scc1 L_epi_ld')
    e('s_barrier')
    list_init(A1)
    e('s_waitcnt lgkmcnt(0)')
    e('s_barrier')
    e(f'v_lshl_add_u32 {r("T")}, v0, 4, s75')
    e('v_cmp_gt_u32 vcc, 28, v0'); e('s_mov_b64 s[62:63], vcc')
    e(f'v_cmp_gt_u32 vcc, {EB}, {r("T")}'); e('s_and_b64 s[62:63], s[62:63], vcc')
    e('s_cbranch_scc0 L_slow_skip')
    scan_quads(V['T'],'s[62:63]')
    lab('L_slow_skip')
    e('s_add_u32 s75, s75, 448')
    e('s_branch L_rescan_done')

def kd(name, nv, ns):
    nva=(nv+3)//4*4
    return ['.p2align 6', f'.amdhsa_kernel {name}', f'  .amdhsa_next_free_vgpr {nv}', f'  .amdhsa_next_free_sgpr {ns}', f'  .amdhsa_accum_offset {nva}',
      '  .amdhsa_group_segment_fixed_size 0','  .amdhsa_kernarg_size 64','  .amdhsa_user_sgpr_count 2','  .amdhsa_user_sgpr_kernarg_segment_ptr 1','  .amdhsa_system_sgpr_workgroup_id_x 1','.end_amdhsa_kernel']
top = hdr + [f'; @launch grid=(256,1,1) block=(1024,1,1) lds={LDS}', '.amdgcn_target "amdgcn-amd-amdhsa--gfx950"','.text',f'.globl {K}']
kernel()
tail=['.section .rodata,"a"']+kd(K,NV,102)
open(OUT,'w').write('\n'.join(top+o+tail)+'\n')
print('vgprs',NV,'lds',LDS, file=sys.stderr)
```

```python
import sys, struct
args=sys.argv[1:]
STAMP = '--stamp' in args
def opt(name, dflt):
    for a in args:
        if a.startswith('--'+name+'='): return int(a.split('=')[1])
    return dflt
TIMEOUT=opt('timeout',4096); PF=opt('pf',0); PFPOS=opt('pfpos',3); SLEEP=opt('sleep',2); DELAY=opt('delay',0)
SPIN=opt('spin',0); SPINAT=opt('spinat',0); SPINCYC=opt('spincyc',0); TR=opt('trace',0); OSC=['',' sc1',' nt',' sc0 sc1'][opt('osc',2)]; MSK=opt('msk',1); EPL=opt('epl',1); TW=opt('tw',0); AUXE=opt('auxe',0); CPF=opt('cpf',0); SPF=opt('spf',0); SPOS=opt('spos',0); EARLY=opt('early',0); HSK=opt('hsk',0); PM=opt('pm',0); SPEC=opt('spec',0); LIW=opt('liw',1); TPOS=opt('tpos',3); DEC=opt('dec',1); WIN=opt('win',1); ETAB=opt('etab',1); ACK=opt('ack',0); TLB=opt('tlb',0); PRIO=opt('prio',2); PASSW=opt('passw',8)
OUT = [a for a in args if not a.startswith('--')][0]
HDR = open('gather_scatter__kernel_systems_refs_featgraph__graph.s.ref').read().split('\n')
hdr = [l for l in HDR if l.startswith(';') and '@launch' not in l and 'Override' not in l and 'grid=ceil' not in l]
K='gather_scatter__kernel_systems_refs_featgraph__graph_kernel'
N=12500; E=800000; EB=E*4; CHB=12512; NQ=782
XB=N*128
HSTR=16384+128; SECD=0x420000
ESTR=16384+128
TABO=0x410000
EPO=0xd00000
TSTR=2176
o=[]
def e(s): o.append('    '+s)
def lab(s): o.append(s+':')
def f2u(f): return struct.unpack('<I',struct.pack('<f',f))[0]
def srd(d, lo, hi, nrec):
    e(f's_mov_b32 s{d}, s{lo}'); e(f's_mov_b32 s{d+1}, s{hi}'); e(f's_mov_b32 s{d+2}, {nrec}'); e(f's_mov_b32 s{d+3}, 0x20000')
NST=10
def stamp(i):
    if STAMP: e(f's_memrealtime s[{80+2*i}:{81+2*i}]')
    if SPIN and i==SPINAT: e('s_memtime s[100:101]' if SPINCYC else 's_memrealtime s[100:101]')
def tr(lane):
    if not TR: return
    e('s_memrealtime s[78:79]'); e('s_waitcnt lgkmcnt(0)')
    if isinstance(lane,str):
        e(f's_lshl_b64 exec, 1, {lane}'); e('v_mov_b32 v27, s78'); e('s_mov_b64 exec, -1')
    else:
        e(f'v_writelane_b32 v27, s78, {lane}')
def tr_store():
    if not TR: return
    e('s_add_u32 s76, s14, 0xa000000'); e('s_addc_u32 s77, s15, 0')
    e(f's_lshl_b32 s75, s{SP}, 12')
    e('v_lshl_add_u32 v1, v0, 2, s75')
    e('global_store_dword v1, v27, s[76:77]')
def stamp_store(wsreg):
    if not STAMP: return
    e('s_waitcnt lgkmcnt(0)')
    e('v_cmp_eq_u32 vcc, 0, v0')
    e('s_and_saveexec_b64 s[78:79], vcc')
    e(f's_cbranch_execz L_nostamp')
    e(f's_add_u32 s76, s{wsreg}, 0x8000000'); e(f's_addc_u32 s77, s{wsreg+1}, 0')
    e(f's_lshl_b32 s75, s{SP}, 7')
    e('v_mov_b32 v1, s75')
    for i in range(NST):
        e(f'v_mov_b32 v2, s{80+2*i}'); e(f'v_mov_b32 v3, s{81+2*i}')
        e(f'global_store_dwordx2 v1, v[2:3], s[76:77] offset:{8*i}')
        e('s_nop 1')
    lab('L_nostamp')
    e('s_mov_b64 exec, -1')

CNT=0; QS=144; QT=256; WV=QT+64*QS; PC=WV+8192; WQ=PC+1024; XR=WQ+8192; STG=XR+8192; IMG=STG; LIST=STG+100352; LDS=LIST+12544
assert STG%128==0 and QT%16==0 and WV%16==0 and IMG+128<=65536 and LDS<=163840
V={}
_n=[1]
def va(name,cnt=1,al=1):
    while _n[0]%al: _n[0]+=1
    V[name]=_n[0]; _n[0]+=cnt
    return V[name]
va('lane'); va('cA'); va('cB'); va('ia'); va('a10'); va('a11'); va('a2',4); va('m',4); va('cs'); va('idx',8); va('qa'); va('Z'); va('T'); V['Pk']=V['T']
va('O',16,4); va('D',4,4); va('Bq',32,4); va('A1',24,4); va('XT01',16,4); va('XT2',8,2)
NV=_n[0]
assert NV<=128, NV
def r(name,i=0,n=1):
    b=V[name]+i
    return f'v{b}' if n==1 else f'v[{b}:{b+n-1}]'
A1=V['A1']; XT3=A1; P01=A1+8; P2=A1+12; P3=A1+14
X0=V['XT01']; TMP=V['XT2']; OO=V['O']; ID=V['idx']
L=r('lane')
DQ=X0; SQ=X0+4; AD=X0+8; RK=X0+12
EPR=ID; T16=V['D']; L16=V['D']+1; FOUR=V['D']+2
SC=A1; TGS=A1+16
XQ=A1; WF=A1+8; QD=V['D']; QAW=ID+4; QAX=ID+5; QAX2=ID+6; QAT=ID+7
GA=[X0, X0+4]; CNV=X0+8; TT=X0+9; PO2=X0+10
HOF=TMP; SOF=TMP+1; J4=TMP+2; TWO=TMP+4; PIA=TMP+5; PSO=TMP+6; PCA=TMP+7
M0_=0xC003C000
SP=49
M_=0xC0FFC000

def wfrag_addr_q():
    e(f'v_lshrrev_b32 v{TMP}, 4, {L}'); e(f'v_lshlrev_b32 v{TMP}, 10, v{TMP}')
    e(f'v_bfe_u32 v{TMP+1}, {L}, 2, 2'); e(f'v_lshl_add_u32 v{TMP}, v{TMP+1}, 7, v{TMP}')
    e(f'v_and_b32 v{TMP+1}, 3, {L}'); e(f'v_lshl_add_u32 v{TMP}, v{TMP+1}, 3, v{TMP}')
    e('s_and_b32 s3, s36, 3'); e('s_lshl_b32 s3, s3, 5')
    e(f'v_add_u32 v{TMP}, s3, v{TMP}')

_u=[0]
def dma_issue(nc, check):
    _u[0]+=1; u=_u[0]
    if check and HSK: e('s_lshl_b32 s77, s43, 1'); e('s_add_u32 s77, s77, 1')
    for k in range(nc):
        if check: e(f's_cmp_lt_u32 s43, s{45+k}'); e(f's_cbranch_scc0 D{u}_{k}')
        e(f'v_lshl_add_u32 {r("idx",2*k)}, {r("idx",2*k)}, 7, {r("cA")}')
        e(f's_add_u32 m0, s37, {k*2048}')
        e(f'v_lshl_add_u32 {r("idx",2*k+1)}, {r("idx",2*k+1)}, 7, {r("cB")}')
        e(f'buffer_load_dwordx4 {r("idx",2*k)}, s[16:19], 0 offen lds')
        if check and HSK: e(f's_cmp_lt_u32 s77, s{8+k}'); e(f's_cbranch_scc0 D{u}_{k}')
        e(f's_add_u32 m0, s37, {k*2048+1024}')
        e('s_nop 0')
        e(f'buffer_load_dwordx4 {r("idx",2*k+1)}, s[16:19], 0 offen lds')
        if check: lab(f'D{u}_{k}')
def idx_reads(nc):
    for k in range(nc):
        e(f'ds_read_u16 {r("idx",2*k)}, {r("ia")} offset:{k*4096}')
        e(f'ds_read_u16 {r("idx",2*k+1)}, {r("ia")} offset:{k*4096+16}')

def wv_reads():
    WFE=V['Bq']; a=ID
    e(f'v_lshrrev_b32 v{a}, 2, {L}'); e(f'v_lshlrev_b32 v{a}, 7, v{a}')
    e(f'v_and_b32 v{a+1}, 3, {L}'); e(f'v_lshl_add_u32 v{a}, v{a+1}, 5, v{a}')
    e(f'v_lshlrev_b32 v{a+1}, 1, {L}'); e(f'v_and_b32 v{a+1}, 16, v{a+1}'); e(f'v_or_b32 v{a}, v{a}, v{a+1}'); e(f'v_xor_b32 v{a+1}, 16, v{a}')
    for Mt in range(4):
        for ks in range(2):
            for jh in range(2):
                d=WFE+8*Mt+4*ks+2*jh
                e(f'ds_read_b64_tr_b16 v[{d}:{d+1}], v{a+(Mt>>1)} offset:{WV+(2*ks+jh)*2048+8*(Mt&1)}')

def sigmoid(nc):
    e(f'v_mul_f32 {r("Z")}, {r("D",0)}, {r("cs")}')
    for i in (1,2,3):
        e(f'v_mul_f32_dpp {r("Z")}, {r("D",i)}, {r("cs")} row_shr:{4*i} row_mask:0xf bank_mask:{1<<i:#x}')
    e(f'v_exp_f32 {r("Z")}, {r("Z")}')
    e('s_nop 0')
    e(f'v_add_f32 {r("Z")}, 1.0, {r("Z")}')
    e(f'v_rcp_f32 {r("Z")}, {r("Z")}')
    e('s_nop 1')
    e(f'v_mov_b32_dpp {r("T")}, {r("Z")} row_shl:4 row_mask:0xf bank_mask:0xf bound_ctrl:0')
    e(f'v_cvt_pk_bf16_f32 {r("Pk")}, {r("Z")}, {r("T")}')
    dsts=[P01,P01+2,P2,P3]
    for k in range(nc):
        e(f'v_and_b32 v{dsts[k]}, {r("Pk")}, {r("m",k)}')
    for k in range(nc):
        e(f'v_and_b32_dpp v{dsts[k]+1}, {r("Pk")}, {r("m",k)} row_shl:8 row_mask:0xf bank_mask:0xf bound_ctrl:0')
    e('s_nop 1')
def xt(k,f):
    return V['XT01']+4*f+2*k if k<2 else (V['XT2']+2*f if k==2 else XT3+2*f)
def a1r(k):
    return 8*k if k<3 else 0
def mf1(k, first):
    c0 = '0' if first else r("D",0,4)
    e(f'v_mfma_f32_16x16x32_bf16 {r("D",0,4)}, {r("A1",a1r(k),4)}, {r("Bq",8*k,4)}, {c0}')
    e(f'v_mfma_f32_16x16x32_bf16 {r("D",0,4)}, {r("A1",a1r(k)+4,4)}, {r("Bq",8*k+4,4)}, {r("D",0,4)}')
def a1reads(k):
    e(f'ds_read_b128 {r("A1",a1r(k),4)}, {r("a10")} offset:{k*2048}')
    e(f'ds_read_b128 {r("A1",a1r(k)+4,4)}, {r("a11")} offset:{k*2048}')
def trreads(k):
    return [f'ds_read_b64_tr_b16 v[{xt(k,f)}:{xt(k,f)+1}], {r("a2",f)} offset:{k*2048}' for f in range(4)]
def mf2pair():
    for f in range(4):
        e(f'v_mfma_f32_16x16x32_bf16 {r("O",4*f,4)}, {r("XT01",4*f,4)}, v[{P01}:{P01+3}], {r("O",4*f,4)}')
def mf2single(k):
    P=P2 if k==2 else P3
    for f in range(4):
        e(f'v_mfma_f32_16x16x16_bf16 {r("O",4*f,4)}, v[{xt(k,f)}:{xt(k,f)+1}], v[{P}:{P+1}], {r("O",4*f,4)}')

def main_loop(nc):
    t=f'M{nc}'
    e('s_cmp_eq_u32 s42, 5'); e(f's_cbranch_scc1 {t}_spec')
    e(f'v_add_u32 {r("ia")}, s3, {r("Z")}')
    idx_reads(nc)
    lab(f'{t}_spec')
    if EARLY:
        for k in range(nc): e(f's_sub_u32 s{45+k}, s{45+k}, s13')
        e('s_sub_u32 s42, s42, s13')
    e('s_min_u32 s44, s45, s46'); e('s_min_u32 s44, s44, s47')
    if nc==4: e('s_min_u32 s44, s44, s48')
    e('s_sub_u32 s43, s42, 1')
    if EARLY: e('s_cmp_lg_u32 s13, 0'); e(f's_cbranch_scc1 {t}_early')
    e('s_waitcnt lgkmcnt(0)')
    dma_issue(nc, True)
    if not EARLY: tr(11)
    lab(f'{t}_loop')
    if PRIO==2:
        th=[(3,2,1),(4,2,1),(4,3,1),(4,3,2)][PM]
        e('s_setprio 3'); e(f's_cmp_gt_u32 s42, {th[0]}'); e(f's_cbranch_scc1 {t}_pd')
        e('s_setprio 2'); e(f's_cmp_gt_u32 s42, {th[1]}'); e(f's_cbranch_scc1 {t}_pd')
        e('s_setprio 1'); e(f's_cmp_gt_u32 s42, {th[2]}'); e(f's_cbranch_scc1 {t}_pd')
        e('s_setprio 0')
        lab(f'{t}_pd')
    e(f'v_subrev_u32 {r("ia")}, 32, {r("ia")}')
    e('s_sub_u32 s42, s42, 1'); e('s_sub_u32 s43, s42, 1')
    idx_reads(nc)
    e('s_cmp_ge_u32 s42, s44'); e(f's_cbranch_scc1 {t}_ramp')
    e('s_waitcnt vmcnt(0)')
    tr('s42')
    for k in range(3): a1reads(k)
    trl=trreads(0)+trreads(1)+trreads(2)
    for x in trl[:6]: e(x)
    e('s_waitcnt lgkmcnt(10)')
    mf1(0,True)
    for x in trl[6:]: e(x)
    if nc==4:
        a1reads(3)
        e('s_waitcnt lgkmcnt(14)')
    else:
        e('s_waitcnt lgkmcnt(12)')
    mf1(1,False); mf1(2,False)
    if nc==4:
        e('s_waitcnt lgkmcnt(0)')
        mf1(3,False)
        for x in trreads(3): e(x)
    e('s_waitcnt lgkmcnt(0)')
    e('s_cmp_eq_u32 s42, 0')
    e(f's_cbranch_scc1 {t}_last')
    dma_issue(nc, False)
    lab(f'{t}_nodma')
    if TR: e('s_add_u32 s75, s42, 16'); tr('s75')
    sigmoid(nc)
    mf2pair(); mf2single(2)
    if nc==4: mf2single(3)
    e('s_cmp_lg_u32 s42, 0')
    e(f's_cbranch_scc1 {t}_loop')
    e('s_branch L_loop_done')
    lab(f'{t}_last')
    e('s_nop 4')
    e('s_cmp_lg_u32 s67, 0'); e(f's_cbranch_scc1 {t}_nodma')
    wv_reads()
    e(f's_branch {t}_nodma')
    if EARLY:
        lab(f'{t}_early')
        e('s_waitcnt vmcnt(0)')
        tr(5)
        for k in range(3): a1reads(k)
        trl=trreads(0)+trreads(1)+trreads(2)
        for x in trl[:6]: e(x)
        e('s_waitcnt lgkmcnt(10)')
        mf1(0,True)
        for x in trl[6:]: e(x)
        if nc==4:
            a1reads(3)
            e('s_waitcnt lgkmcnt(14)')
        else:
            e('s_waitcnt lgkmcnt(12)')
        mf1(1,False); mf1(2,False)
        if nc==4:
            e('s_waitcnt lgkmcnt(0)')
            mf1(3,False)
            for x in trreads(3): e(x)
        e('s_waitcnt lgkmcnt(0)')
        e('s_cmp_eq_u32 s42, 0')
        e(f's_cbranch_scc1 {t}_elast')
        dma_issue(nc, True)
        lab(f'{t}_enodma')
        tr(21)
        e('s_nop 7')
        sigmoid(nc)
        mf2pair()
        for i in range(16): e(f'v_mov_b32 {r("XT01",i)}, 0')
        mf2single(2)
        if nc==4: mf2single(3)
        e('s_cmp_lg_u32 s42, 0')
        e(f's_cbranch_scc1 {t}_loop')
        e('s_branch L_loop_done')
        lab(f'{t}_elast')
        wv_reads()
        e(f's_branch {t}_enodma')
    lab(f'{t}_ramp')
    for i in range(4): e(f'v_mov_b32 {r("D",i)}, 0')
    e('s_waitcnt vmcnt(0)')
    tr('s42')
    for k in range(3):
        e(f's_cmp_lt_u32 s42, s{45+k}'); e(f's_cbranch_scc0 {t}_r1{k}')
        a1reads(k)
        for x in trreads(k): e(x)
        lab(f'{t}_r1{k}')
    e('s_waitcnt lgkmcnt(0)')
    for k in range(3):
        e(f's_cmp_lt_u32 s42, s{45+k}'); e(f's_cbranch_scc0 {t}_r2{k}')
        mf1(k,False)
        lab(f'{t}_r2{k}')
    if nc==4:
        e(f's_cmp_lt_u32 s42, s48'); e(f's_cbranch_scc0 {t}_r23')
        a1reads(3)
        e('s_waitcnt lgkmcnt(0)')
        mf1(3,False)
        for x in trreads(3): e(x)
        e('s_waitcnt lgkmcnt(0)')
        lab(f'{t}_r23')
    e('s_cmp_eq_u32 s42, 0')
    e(f's_cbranch_scc1 {t}_rlast')
    dma_issue(nc, True)
    lab(f'{t}_rnodma')
    if TR: e('s_add_u32 s75, s42, 16'); tr('s75')
    e('s_nop 7')
    sigmoid(nc)
    mf2pair()
    e(f's_cmp_lt_u32 s42, s47'); e(f's_cbranch_scc0 {t}_r32')
    mf2single(2)
    lab(f'{t}_r32')
    if nc==4:
        e(f's_cmp_lt_u32 s42, s48'); e(f's_cbranch_scc0 {t}_r33')
        mf2single(3)
        lab(f'{t}_r33')
    e('s_cmp_lg_u32 s42, 0')
    e(f's_cbranch_scc1 {t}_loop')
    e('s_branch L_loop_done')
    lab(f'{t}_rlast')
    e('s_cmp_lg_u32 s67, 0'); e(f's_cbranch_scc1 {t}_rnodma')
    wv_reads()
    e(f's_branch {t}_rnodma')

def list_init(t):
    for i in range(4): e(f'v_mov_b32 v{t+i}, -1')
    e(f'v_lshlrev_b32 v{t+4}, 4, v0')
    e(f'v_add_u32 v{t+4}, {LIST}, v{t+4}')
    e('v_cmp_gt_u32 vcc, 784, v0')
    e('s_mov_b64 exec, vcc')
    e(f'ds_write_b128 v{t+4}, v[{t}:{t+3}]')
    e('s_mov_b64 exec, -1')
    _u[0]+=1; u=_u[0]
    e('s_cmp_lg_u32 s36, 13'); e(f's_cbranch_scc1 I{u}')
    e(f'v_lshlrev_b32 v{t+5}, 2, {L}')
    e(f'v_lshlrev_b32 v{t+6}, 8, {L}'); e(f'v_add_u32 v{t+6}, {LIST}, v{t+6}')
    e(f'v_mov_b32 v{t+4}, s40')
    e(f'v_cmp_le_u32 vcc, 56, {L}')
    e('s_nop 1')
    e(f'v_cndmask_b32 v{t+6}, v{t+6}, v{t+4}, vcc')
    e(f'ds_write_b32 v{t+5}, v{t+6} offset:{CNT}')
    lab(f'I{u}')
def stg_zero(t):
    for i in range(4): e(f'v_mov_b32 v{t+i}, 0')
    e(f'v_lshl_add_u32 v{t+4}, {L}, 4, s37')
    for i in range(6): e(f'ds_write_b128 v{t+4}, v[{t}:{t+3}] offset:{1024*i}')
    _u[0]+=1; u=_u[0]
    e('s_cmp_lg_u32 s36, 0'); e(f's_cbranch_scc1 Z{u}')
    for i in (6,7): e(f'ds_write_b128 v{t+4}, v[{t}:{t+3}] offset:{1024*i}')
    lab(f'Z{u}')

def insert_entries(groups, tr_, two):
    n=sum(len(g[1]) for g in groups)
    i=0
    for m,regs in groups:
        e(f's_mov_b64 exec, {m}')
        for x in regs:
            e(f'v_lshrrev_b32 v{tr_+i}, 22, v{x}')
            e(f'ds_add_rtn_u32 v{tr_+i}, v{tr_+i}, v{two} offset:{CNT}')
            i+=1
    i=0
    for m,regs in groups:
        e(f's_mov_b64 exec, {m}')
        for x in regs:
            e(f's_waitcnt lgkmcnt({n-1})')
            e(f'ds_write_b16 v{tr_+i}, v{x}')
            i+=1
    e('s_mov_b64 exec, -1')

def scan_quads(off, vmask):
    e(f's_mov_b64 exec, {vmask}')
    e(f'buffer_load_dwordx4 v[{DQ}:{DQ+3}], v{off}, s[20:23], 0 offen')
    e(f'buffer_load_dwordx4 v[{SQ}:{SQ+3}], v{off}, s[24:27], 0 offen')
    e(f'v_mov_b32 v{RK}, 2')
    e('s_mov_b32 s3, 0x050c0100')
    e('s_waitcnt vmcnt(0)')
    ms=['s[42:43]','s[44:45]','s[46:47]','s[64:65]']
    for i in range(4):
        e(f'v_and_b32 v{AD+i}, 0xff, v{DQ+i}')
        e(f'v_cmp_eq_u32 {ms[i]}, s2, v{AD+i}')
        e(f'v_perm_b32 v{SQ+i}, v{DQ+i}, v{SQ+i}, s3')
    insert_entries([(ms[i],[SQ+i]) for i in range(4)], AD, RK)

def pf_loads():
    if not PF: return
    e(f's_lshr_b32 s3, s{SP}, 3'); e('s_mul_i32 s3, s3, 50000')
    e('s_add_u32 s96, s4, s3'); e('s_addc_u32 s97, s5, 0'); e('s_mov_b32 s98, 50000'); e('s_mov_b32 s99, 0x20000')
    e(f'v_lshlrev_b32 v{TMP+6}, 6, v0')
    e(f'buffer_load_dword v{TMP+5}, v{TMP+6}, s[96:99], 0 offen')

def expand_bytes(p):
    e(f's_lshr_b64 s[64:65], s[{p}:{p+1}], 1'); e(f's_or_b64 s[{p}:{p+1}], s[{p}:{p+1}], s[64:65]')
    e(f's_lshr_b64 s[64:65], s[{p}:{p+1}], 2'); e(f's_or_b64 s[{p}:{p+1}], s[{p}:{p+1}], s[64:65]')
    e(f's_lshr_b64 s[64:65], s[{p}:{p+1}], 4'); e(f's_or_b64 s[{p}:{p+1}], s[{p}:{p+1}], s[64:65]')
    e(f's_and_b32 s{p}, s{p}, 0x01010101'); e(f's_and_b32 s{p+1}, s{p+1}, 0x01010101')
    e(f's_mul_i32 s{p}, s{p}, 0xff'); e(f's_mul_i32 s{p+1}, s{p+1}, 0xff')

def spf():
    if not SPF: return
    e(f's_lshr_b32 s3, s{SP}, 3'); e('s_mul_i32 s3, s3, 50000'); e('s_and_b32 s3, s3, -128')
    e(f's_mul_i32 s92, s36, {SPF*128}'); e('s_add_u32 s3, s3, s92')
    e('s_add_u32 s92, s16, s3'); e('s_addc_u32 s93, s17, 0')
    for i in range(SPF): e(f's_load_dword s{84+i%8}, s[92:93], {i*128}')
def head_issue():
    if DELAY: e(f's_sleep {DELAY}')
    e(f'buffer_load_dwordx4 v[{GA[0]}:{GA[0]+3}], v{HOF}, s[68:71], 0 offen sc1')
    if SPEC: e(f'buffer_load_dwordx4 v[{GA[1]}:{GA[1]+3}], v{SOF}, s[68:71], 0 offen sc1')

def validate(G, p):
    for i in range(4): e(f'v_xor_b32 v{G+i}, s{50+i}, v{G+i}')
    e(f'v_or3_b32 v{TT}, v{G+1}, v{G+2}, v{G+3}')
    e(f'v_and_b32 v{TT}, s46, v{TT}')
    e(f'v_and_or_b32 v{TT}, v{G}, s47, v{TT}')
    e(f'v_cmp_ne_u32 {p}, 0, v{TT}')
    e(f's_cmp_lg_u64 {p}, 0')

def kernel():
    o.append('.p2align 8'); o.append(f'.type {K},@function'); lab(K)
    e('s_cmp_ge_u32 s2, 256'); e('s_cbranch_scc1 L_end')
    stamp(0)
    if TR: e('v_mov_b32 v27, 0'); tr(8)
    e('s_load_dwordx8 s[16:23], s[0:1], 0')
    e('s_load_dwordx8 s[8:15], s[0:1], 32')
    t0,t1,t2,t3=A1+8,A1+9,A1+10,A1+11
    e(f'v_lshrrev_b32 v{t0}, 6, v0')
    e(f'v_lshlrev_b32 v{T16}, 4, v0')
    e(f'v_readfirstlane_b32 s36, v{t0}')
    e('s_and_b32 s3, s2, 7'); e('s_add_u32 s3, s3, 56'); e('s_lshl_b32 s3, s3, 24')
    for i in range(4): e(f'v_mov_b32 v{A1+i}, s3')
    e(f'v_lshrrev_b32 v{PCA}, 2, v0'); e(f'v_lshl_add_u32 v{PIA}, v{PCA}, 7, v{T16}')
    e(f'v_and_b32 {L}, 63, v0')
    e(f's_mul_i32 s42, s2, {CHB}')
    e(f'v_add_u32 v{t1}, s42, v{T16}')
    e(f'v_mov_b32 v{t2}, 0')
    e(f's_mov_b32 s26, {EB}'); e('s_mov_b32 s27, 0x20000')
    e(f's_mov_b32 s70, 16'); e('s_mov_b32 s71, 0x20000'); e('s_mov_b32 s98, 256'); e('s_mov_b32 s99, 0x20000'); e('s_mov_b32 s58, 0'); e('s_mov_b32 s59, 0')
    e(f'v_cmp_gt_u32 vcc, {NQ}, v0'); e('s_mov_b64 s[62:63], vcc')
    e(f'v_cmp_gt_u32 vcc, {EB}, v{t1}'); e('s_and_b64 s[62:63], s[62:63], vcc')
    e(f'v_lshlrev_b32 v{A1+4}, 2, v0')
    e(f'v_cndmask_b32 v{t1}, 4.0, v{t1}, s[62:63]')
    e(f's_mov_b32 s{SP}, s2')
    e('s_and_b32 s3, s2, 7'); e('s_lshl_b32 s3, s3, 5'); e('s_lshr_b32 s2, s2, 3'); e('s_or_b32 s2, s2, s3')
    e('s_waitcnt lgkmcnt(0)')
    stamp(1)
    e('s_mov_b64 s[24:25], s[18:19]'); e('s_mov_b64 s[96:97], s[12:13]'); e('s_mov_b64 s[12:13], s[10:11]'); e('s_mov_b64 s[10:11], s[8:9]'); e('s_mov_b64 s[8:9], s[22:23]')
    e(f's_mov_b32 s22, {EB}'); e('s_mov_b32 s23, 0x20000')
    e(f's_add_u32 s68, s14, {EPO}'); e('s_addc_u32 s69, s15, 0')
    if not EPL:
        e(f'buffer_load_dwordx4 v[{EPR}:{EPR+3}], v{t2}, s[68:71], 0 offen sc1')
    if TW:
        e('s_cmp_eq_u32 s36, 13'); e('s_cbranch_scc1 L_tw')
    e(f'buffer_load_dwordx4 v[{DQ}:{DQ+3}], v{t1}, s[20:23], 0 offen')
    e(f'buffer_load_dwordx4 v[{SQ}:{SQ+3}], v{t1}, s[24:27], 0 offen')
    lab('L_twb')
    if EPL:
        e(f'buffer_load_dwordx4 v[{EPR}:{EPR+3}], v{t2}, s[68:71], 0 offen sc1')
    for i in range(3): e(f'ds_write_b128 v{PIA}, v[{A1}:{A1+3}] offset:{IMG+64*i}')
    e('s_cmp_lt_u32 s36, 4'); e('s_cbranch_scc0 L_nopc')
    e(f'ds_write_b32 v{A1+4}, v{t2} offset:{PC}')
    lab('L_nopc')
    e('s_waitcnt lgkmcnt(0)')
    e('s_barrier')
    e(f'v_lshlrev_b32 v{L16}, 4, {L}')
    e(f'v_and_b32 v{t0}, 16, {L}'); e(f'v_xor_b32 v{t0}, v{t0}, v{L16}')
    e('s_and_b32 s39, s36, 7'); e('s_lshl_b32 s39, s39, 10')
    e('s_cmp_lt_u32 s36, 8')
    e('s_cselect_b32 s28, s8, s10'); e('s_cselect_b32 s29, s9, s11'); e('s_mov_b32 s30, 8192'); e('s_mov_b32 s31, 0x20000')
    e(f's_cselect_b32 s3, {WQ-WV}, 0')
    e(f's_add_u32 s3, s3, {WV}')
    e('s_add_u32 m0, s3, s39')
    e(f's_mov_b32 s18, {XB}'); e('s_mov_b32 s19, 0x20000')
    e(f'buffer_load_dwordx4 v{t0}, s[28:31], s39 offen lds')
    e(f'v_bfe_u32 v{t0}, v0, 3, 6')
    e(f'v_lshlrev_b32 v{t0}, 15, v{t0}')
    e(f'v_lshrrev_b32 v{t3}, 3, {L}'); e(f'v_xor_b32 v{t3}, v{t3}, {L}'); e(f'v_and_b32 v{t3}, 7, v{t3}')
    e(f'v_lshl_add_u32 v{t0}, v{t3}, 4, v{t0}')
    e('s_lshl_b32 s38, s2, 7')
    e(f's_add_u32 m0, s39, {XR}')
    e(f'v_mov_b32 v{FOUR}, 4')
    e(f'buffer_load_dwordx4 v{t0}, s[16:19], s38 offen lds')
    if CPF:
        e('s_getpc_b64 s[92:93]')
        e(f'v_and_b32 v{t0}, 127, v0'); e(f'v_lshlrev_b32 v{t0}, 7, v{t0}')
        e(f'v_mov_b32 v{t0+1}, s93'); e(f'v_add_co_u32 v{t0}, vcc, s92, v{t0}'); e('s_nop 1'); e(f'v_addc_co_u32 v{t0+1}, vcc, 0, v{t0+1}, vcc')
        e(f'v_and_b32 v{t0+2}, 127, v0'); e(f'v_cmp_gt_u32 vcc, {CPF}, v{t0+2}')
        e('s_cmp_lt_u32 s36, 14'); e('s_cbranch_scc1 L_nocpf')
        e('s_mov_b64 exec, vcc')
        e(f'global_load_dword v{TMP+3}, v[{t0}:{t0+1}], off')
        e('s_mov_b64 exec, -1')
        e('s_waitcnt vmcnt(1)')
        lab('L_nocpf')
    e('s_mov_b32 s48, 0x050c0100'); e('s_mov_b32 s40, 0x30000')
    e('s_add_u32 s3, s36, 15'); e('s_and_b32 s3, s3, 15'); e('s_mul_i32 s37, s3, 6144'); e(f's_add_u32 s37, s37, {STG}')
    if not LIW: list_init(A1)
    e(f's_mul_i32 s3, s{SP}, {HSTR}'); e('s_add_u32 s28, s14, s3'); e('s_addc_u32 s29, s15, 0'); e(f's_mov_b32 s30, {2*SECD+16384}'); e('s_mov_b32 s31, 0x20000')
    e(f's_mov_b32 s54, {SECD}'); e(f's_mov_b32 s55, {2*SECD}')
    e('s_lshl_b32 s41, s36, 8'); e(f's_add_u32 s41, s41, {LIST-32}')
    e('s_mov_b32 s6, 0x00010001'); e('s_mov_b32 s7, 0x00010001')
    e(f'v_lshrrev_b32 v{t1}, 4, {L}')
    e(f'v_lshrrev_b32 v{t0}, 3, {L}'); e(f'v_and_b32 v{t0}, 6, v{t0}'); e(f'v_and_b32 v{t2}, 7, {L}')
    e(f'v_xor_b32 v{t0}, v{t0}, v{t2}'); e(f'v_lshlrev_b32 {r("cA")}, 4, v{t0}'); e(f'v_xor_b32 {r("cB")}, 16, {r("cA")}')
    e(f'v_and_b32 v{t0}, 6, {L}'); e(f'v_bfe_u32 v{t2}, {L}, 3, 1'); e(f'v_or_b32 v{t0}, v{t0}, v{t2}')
    e(f'v_lshlrev_b32 v{t2}, 1, v{t1}'); e(f'v_xor_b32 v{t0}, v{t0}, v{t2}'); e(f'v_lshlrev_b32 v{t0}, 4, v{t0}')
    e(f'v_and_b32 v{t2}, 15, {L}'); e(f'v_lshl_add_u32 v{t0}, v{t2}, 7, v{t0}')
    e(f'v_add_u32 {r("a10")}, s37, v{t0}'); e(f'v_xor_b32 {r("a11")}, 16, {r("a10")}')
    for k in range(4):
        e(f'v_cmp_eq_u32 s[64:65], {k}, v{t2}'); e('s_nop 1'); e(f'v_cndmask_b32 {r("m",k)}, 0, -1, s[64:65]')
    e(f'v_lshlrev_b32 v{t0}, 4, v{t2}'); e(f'v_add_u32 v{t0}, s36, v{t0}'); e(f's_movk_i32 s3, {QS}'); e(f'v_mul_u32_u24 v{t0}, s3, v{t0}')
    e(f'v_lshl_add_u32 {r("qa")}, v{t1}, 5, v{t0}')
    e('s_lshr_b32 s3, s36, 2'); e('s_lshl_b32 s3, s3, 4'); e(f'v_add_u32 v{t2}, s3, v{t2}')
    e(f'v_and_b32 v{t0}, 7, {L}'); e(f'v_xor_b32 v{t0}, v{t0}, v{t1}'); e(f'v_lshlrev_b32 v{t0}, 4, v{t0}')
    e(f'v_lshl_add_u32 v{QAX}, v{t2}, 7, v{t0}'); e(f'v_xor_b32 v{QAX2}, 64, v{QAX}')
    e(f's_movk_i32 s3, {QS}'); e(f'v_mul_u32_u24 v{t2}, s3, v{t2}')
    e(f'v_lshl_add_u32 v{t2}, v{t1}, 3, v{t2}')
    e('s_and_b32 s3, s36, 3'); e('s_lshl_b32 s3, s3, 5'); e(f'v_add_u32 v{QAT}, s3, v{t2}')
    e(f'v_lshlrev_b32 v{t0}, 10, v{t1}'); e(f'v_bfe_u32 v{t2}, {L}, 2, 2'); e(f'v_lshl_add_u32 v{t0}, v{t2}, 7, v{t0}')
    e(f'v_and_b32 v{t2}, 3, {L}'); e(f'v_lshl_add_u32 v{t0}, v{t2}, 3, v{t0}'); e(f'v_add_u32 v{t0}, s3, v{t0}')
    e(f'v_lshlrev_b32 v{J4}, 4, v{t2}')
    e(f'v_lshlrev_b32 v{t2}, 1, {L}'); e(f'v_and_b32 v{t2}, 16, v{t2}'); e(f'v_xor_b32 v{QAW}, v{t0}, v{t2}')
    e(f'v_lshrrev_b32 v{t0}, 2, {L}')
    e(f'v_and_b32 v{t2}, 6, v{t0}'); e(f'v_lshrrev_b32 v{t3}, 3, v{t0}'); e(f'v_or_b32 v{t2}, v{t2}, v{t3}')
    e(f'v_bfe_u32 v{t3}, {L}, 1, 1'); e(f'v_xor_b32 v{t2}, v{t2}, v{t3}'); e(f'v_lshlrev_b32 v{t2}, 4, v{t2}')
    e(f'v_lshl_add_u32 v{t2}, v{t0}, 7, v{t2}')
    e(f'v_and_b32 v{t3}, 1, {L}'); e(f'v_lshl_add_u32 v{t2}, v{t3}, 3, v{t2}')
    e(f'v_add_u32 {r("a2",0)}, s37, v{t2}')
    for f in (1,2,3): e(f'v_xor_b32 {r("a2",f)}, {32*f}, {r("a2",0)}')
    e(f'v_mov_b32 {r("cs")}, {f2u(-0.125*1.4426950408889634):#x}')
    e(f's_movk_i32 s3, {HSTR}'); e(f'v_mad_u32_u24 v{HOF}, v{PCA}, s3, v{J4}'); e('s_lshl_b32 s3, s2, 6'); e(f'v_add_u32 v{HOF}, s3, v{HOF}')
    e(f'v_add_u32 v{SOF}, {SECD}, v{HOF}')
    e(f'v_lshlrev_b32 v{PCA}, 2, v{PCA}')
    e(f'v_add_u32 v{J4}, 64, v{J4}')
    srd(68,14,15,2*SECD+256*HSTR)
    e(f'v_mov_b32 v{TWO}, 2')
    e('s_mov_b64 s[60:61], -1'); e('s_mov_b64 s[56:57], 0')
    e(f's_movk_i32 s66, {TIMEOUT}'); e('s_mov_b32 s67, 0')
    e(f's_mov_b32 s46, {M_:#x}'); e(f's_mov_b32 s47, {M0_:#x}')
    e('s_movk_i32 s44, 188'); e('s_movk_i32 s45, 252')
    def tags(w):
        e(f's_waitcnt vmcnt({w})')
        for i in range(4): e(f'v_readfirstlane_b32 s{50+i}, v{EPR+i}')
        e('s_bfe_u32 s42, s51, 0xa000e'); e('s_bfe_u32 s43, s52, 0xa000e'); e('s_bfe_u32 s3, s53, 0xa000e')
        e('s_lshl_b32 s43, s43, 10'); e('s_lshl_b32 s3, s3, 20'); e('s_or_b32 s42, s42, s43'); e('s_or_b32 s42, s42, s3')
        e('s_add_u32 s42, s42, 1')
        e(f's_and_b32 s50, s50, {M0_:#x}')
        for i,sh in ((1,0),(2,10),(3,20)):
            e(f's_and_b32 s{50+i}, s{50+i}, 0xc0000000')
            e(f's_bfe_u32 s43, s42, {0xa0000|sh:#x}'); e('s_lshl_b32 s43, s43, 14'); e(f's_or_b32 s{50+i}, s{50+i}, s43')
    if not EPL: tags(4)
    e('s_mov_b64 exec, s[62:63]')
    e(f's_waitcnt vmcnt({4 if EPL else 3})')
    stamp(2); tr(15)
    for i in range(4):
        e(f'v_lshlrev_b32_sdwa v{AD+i}, 2, v{DQ+i} dst_sel:DWORD dst_unused:UNUSED_PAD src0_sel:DWORD src1_sel:BYTE_0')
    for i in range(4):
        e(f'ds_add_rtn_u32 v{RK+i}, v{AD+i}, v{FOUR} offset:{PC}')
    e(f's_waitcnt vmcnt({3 if EPL else 2})')
    for i in range(4):
        e(f'v_perm_b32 v{SQ+i}, v{DQ+i}, v{SQ+i}, s48')
    for i in range(4):
        e(f's_waitcnt lgkmcnt(3)')
        e(f'v_min_u32 v{RK+i}, s44, v{RK+i}')
        e(f'v_mad_u32_u24 v{RK+i}, v{AD+i}, 48, v{RK+i}')
        e(f'ds_write_b32 v{RK+i}, v{SQ+i} offset:{IMG}')
    e('s_mov_b64 exec, -1')
    if EPL: tags(2)
    e('s_waitcnt lgkmcnt(0)')
    e('s_barrier')
    stamp(3); tr(43)
    C=AD
    e(f'ds_read_b32 v{C}, v{PCA} offset:{PC}')
    e(f'ds_read_b128 v[{DQ}:{DQ+3}], v{PIA} offset:{IMG}')
    e(f'ds_read_b128 v[{SQ}:{SQ+3}], v{PIA} offset:{IMG+64}')
    e('s_waitcnt lgkmcnt(2)')
    e(f'v_cmp_lt_u32 s[64:65], v{J4}, v{C}')
    e(f'v_cmp_lt_u32 vcc, 128, v{C}')
    e(f'v_min_u32 v{C+1}, s45, v{C}')
    e(f'v_lshl_or_b32 v{C+1}, v{C+1}, 16, s50')
    e('s_waitcnt lgkmcnt(1)')
    e(f'v_xor_b32 v{DQ}, v{C+1}, v{DQ}')
    for i in (1,2,3): e(f'v_xor_b32 v{DQ+i}, s{50+i}, v{DQ+i}')
    e(f'buffer_store_dwordx4 v[{DQ}:{DQ+3}], v{T16}, s[28:31], 0 offen sc1')
    e(f'v_cndmask_b32 v{C+2}, 4.0, v{T16}, s[64:65]')
    e('s_waitcnt lgkmcnt(0)')
    e(f'v_xor_b32 v{SQ}, v{C+1}, v{SQ}')
    for i in (1,2,3): e(f'v_xor_b32 v{SQ+i}, s{50+i}, v{SQ+i}')
    e(f'buffer_store_dwordx4 v[{SQ}:{SQ+3}], v{C+2}, s[28:31], s54 offen sc1')
    e('s_cbranch_vccnz L_third')
    lab('L_third_done')
    stamp(4); tr(12)
    srd(32,12,13,XB)
    if LIW: list_init(A1+16)
    tr(45)
    if SPOS==0: spf()
    if TPOS==0: head_issue(); tr(46)
    for i in range(16): e(f'v_mov_b32 {r("O",i)}, 0')
    e('s_cmp_lg_u32 s59, 0'); e('s_cbranch_scc1 WB3')
    e(f's_waitcnt vmcnt({3 if TPOS==0 else 2})')
    lab('WB3')
    e(f's_waitcnt vmcnt({4 if TPOS==0 else 3})')
    tr(44)
    e('s_barrier')
    if SPIN and SPINAT==9: e('s_memrealtime s[100:101]')
    if TPOS==4: head_issue(); tr(46)
    for ks in range(2):
        for jh in range(2):
            e(f'ds_read_b64_tr_b16 v[{WF+4*ks+2*jh}:{WF+4*ks+2*jh+1}], v{QAW} offset:{WQ+ks*4096+jh*512}')
    e(f'ds_read_b128 v[{XQ}:{XQ+3}], v{QAX} offset:{XR}'); e(f'ds_read_b128 v[{XQ+4}:{XQ+7}], v{QAX2} offset:{XR}')
    if TPOS==1: head_issue(); tr(46)
    e('s_waitcnt lgkmcnt(0)')
    e(f'v_mfma_f32_16x16x32_bf16 v[{QD}:{QD+3}], v[{WF}:{WF+3}], v[{XQ}:{XQ+3}], 0')
    e(f'v_mfma_f32_16x16x32_bf16 v[{QD}:{QD+3}], v[{WF+4}:{WF+7}], v[{XQ+4}:{XQ+7}], v[{QD}:{QD+3}]')
    for i in range(32): e(f'v_mov_b32 {r("Bq",i)}, 0')
    e(f'v_cvt_pk_bf16_f32 v{A1}, v{QD}, v{QD+1}'); e(f'v_cvt_pk_bf16_f32 v{A1+1}, v{QD+2}, v{QD+3}')
    e(f'ds_write_b64 v{QAT}, v[{A1}:{A1+1}] offset:{QT}')
    if TPOS==2: head_issue(); tr(46)
    e('s_waitcnt lgkmcnt(0)')
    tr(42)
    e('s_barrier')
    if TPOS==3: head_issue(); tr(46)
    if SPOS==1: spf()
    for k in range(4):
        e(f's_lshl_b64 exec, s[6:7], {k}')
        e(f'ds_read_b128 {r("Bq",8*k,4)}, {r("qa")} offset:{QT}')
        e(f'ds_read_b128 {r("Bq",8*k+4,4)}, {r("qa")} offset:{QT+16}')
    e('s_mov_b64 exec, -1')
    e(f's_waitcnt vmcnt({1 if SPEC else 0})')
    tr(6)
    lab('L_hv')
    validate(GA[0], 's[60:61]')
    e('s_cbranch_scc1 L_hretry')
    lab('L_hok')
    e('s_mov_b64 exec, -1')
    stamp(5)
    tr(7)
    if TR: e('v_writelane_b32 v27, s66, 40')
    e(f'v_bfe_u32 v{CNV}, v{GA[0]}, 16, 8')
    e(f'v_cmp_lt_u32 vcc, s44, v{CNV}')
    e(f'v_cmp_lt_u32 s[62:63], v{J4}, v{CNV}')
    e('s_or_b64 s[56:57], s[56:57], vcc')
    e('s_andn2_b64 s[62:63], s[62:63], s[56:57]')
    e('s_mov_b64 s[74:75], s[62:63]')
    if not SPEC:
        e(f'v_cndmask_b32 v{PO2}, 4.0, v{SOF}, s[62:63]')
        e(f'buffer_load_dwordx4 v[{GA[1]}:{GA[1]+3}], v{PO2}, s[68:71], 0 offen sc1')
    e(f'v_and_b32 v{GA[0]}, 0x3f003fff, v{GA[0]}')
    if MSK:
        e(f'v_add_u32 v{PO2+1}, 64, v{CNV}'); e(f'v_sub_u32 v{PO2+1}, v{PO2+1}, v{J4}')
        ms=['s[42:43]','s[64:65]','s[72:73]','s[76:77]']
        e('s_andn2_b64 exec, -1, s[56:57]')
        for i in range(4): e(f'v_cmp_lt_i32 {ms[i]}, {4*i}, v{PO2+1}')
        for i in range(4):
            e(f's_mov_b64 exec, {ms[i]}')
            e(f'v_lshrrev_b32 v{A1+i}, 22, v{GA[0]+i}')
            e(f'ds_add_rtn_u32 v{A1+i}, v{A1+i}, v{TWO} offset:{CNT}')
        for i in range(4):
            e(f's_mov_b64 exec, {ms[i]}')
            e(f's_waitcnt lgkmcnt(3)')
            e(f'ds_write_b16 v{A1+i}, v{GA[0]+i}')
    else:
        e('s_andn2_b64 exec, -1, s[56:57]')
        for i in range(4):
            e(f'v_lshrrev_b32 v{A1+i}, 22, v{GA[0]+i}')
            e(f'ds_add_rtn_u32 v{A1+i}, v{A1+i}, v{TWO} offset:{CNT}')
        for i in range(4):
            e(f's_waitcnt lgkmcnt(3)')
            e(f'ds_write_b16 v{A1+i}, v{GA[0]+i}')
    e('s_mov_b32 s13, 0')
    if EARLY:
        e('s_mov_b64 exec, -1')
        e(f'v_lshrrev_b32 {r("Z")}, 3, {L}'); e(f'v_lshl_add_u32 {r("Z")}, {r("Z")}, 1, s41')
        e(f'v_add_u32 {r("ia")}, 32, {r("Z")}')
        e('s_cmp_lt_u32 s2, 212'); e('s_cselect_b32 s12, 0, 1'); e('s_or_b32 s12, s12, s36')
        e('s_mov_b32 s3, 0xffff')
        e('s_waitcnt lgkmcnt(0)')
        e('s_barrier')
        stamp(6); tr(10)
        e('s_setprio 3')
        idx_reads(4)
        e('s_cmp_eq_u32 s12, 0'); e('s_cbranch_scc1 L_e4')
        for nc in (3,4):
            if nc==4: lab('L_e4')
            e(f's_waitcnt lgkmcnt({2 if nc==3 else 0})')
            e(f'v_max3_u32 {r("T")}, {r("idx",0)}, {r("idx",1)}, {r("idx",2)}')
            e(f'v_max3_u32 {r("T")}, {r("T")}, {r("idx",3)}, {r("idx",4)}')
            if nc==3: e(f'v_max_u32 {r("T")}, {r("T")}, {r("idx",5)}')
            else:
                e(f'v_max3_u32 {r("T")}, {r("T")}, {r("idx",5)}, {r("idx",6)}'); e(f'v_max_u32 {r("T")}, {r("T")}, {r("idx",7)}')
            e(f'v_cmp_eq_u32 vcc, s3, {r("T")}')
            e('s_cbranch_vccnz L_sec')
            dma_issue(nc, False)
            tr(11)
            e('s_mov_b32 s13, 1')
            e('s_mov_b64 exec, s[62:63]')
            e('s_cbranch_execz L_secdone')
            e(f's_waitcnt vmcnt({2*nc})')
            e('s_branch L_sv')
    lab('L_sec')
    e('s_mov_b64 exec, s[62:63]')
    e('s_cbranch_execz L_secdone')
    e('s_waitcnt vmcnt(0)')
    lab('L_sv')
    validate(GA[1], 's[62:63]')
    e('s_cbranch_scc1 L_sretry')
    tr(9)
    e('s_mov_b64 exec, s[74:75]')
    e(f'v_and_b32 v{GA[1]}, 0x3f003fff, v{GA[1]}')
    for i in range(4):
        e(f'v_lshrrev_b32 v{A1+4+i}, 22, v{GA[1]+i}')
        e(f'ds_add_rtn_u32 v{A1+4+i}, v{A1+4+i}, v{TWO} offset:{CNT}')
    for i in range(4):
        e(f's_waitcnt lgkmcnt(3)')
        e(f'ds_write_b16 v{A1+4+i}, v{GA[1]+i}')
    e('s_mov_b64 exec, -1')
    e(f'v_add_u32 v{J4}, 64, v{J4}'); e(f'v_add_u32 v{SOF}, {SECD}, v{SOF}')
    e(f'v_cmp_lt_u32 s[62:63], v{J4}, v{CNV}')
    e('s_and_b64 s[62:63], s[62:63], s[74:75]')
    e('s_cbranch_scc1 L_more')
    lab('L_secdone')
    e('s_mov_b64 exec, -1')
    e('s_cmp_lg_u64 s[56:57], 0')
    e('s_cbranch_scc1 L_rescan')
    lab('L_rescan_done')
    e(f'v_lshrrev_b32 {r("Z")}, 3, {L}'); e(f'v_lshl_add_u32 {r("Z")}, {r("Z")}, 1, s41')
    e('s_waitcnt lgkmcnt(0)')
    e(f'v_lshlrev_b32 v{A1}, 2, {L}')
    e(f'v_lshlrev_b32 v{A1+1}, 8, {L}')
    e(f'v_subrev_u32 v{A1+1}, {15-LIST & 0xffffffff}, v{A1+1}')
    e(f'v_add_u32 {r("ia")}, {5*32}, {r("Z")}')
    for i in range(16): e(f'v_mov_b32 {r("XT01",i)}, 0')
    e('s_movk_i32 s3, 271')
    e('s_add_u32 s46, s36, 16'); e('s_add_u32 s47, s36, 32'); e('s_add_u32 s48, s36, 48')
    e('s_min_u32 s48, s48, 49')
    e('s_barrier')
    if not EARLY: stamp(6); tr(10)
    else: tr(48)
    lab('L_counts')
    e(f'ds_read_b32 {r("T")}, v{A1} offset:{CNT}')
    idx_reads(4)
    e('s_waitcnt lgkmcnt(8)')
    e(f'v_sub_u32 {r("T")}, {r("T")}, v{A1+1}')
    e(f'v_cmp_lt_u32 vcc, s3, {r("T")}')
    e(f'v_lshrrev_b32 {r("T")}, 4, {r("T")}')
    e('s_and_b32 vcc_hi, vcc_hi, 0xffffff')
    e(f'v_readlane_b32 s59, {r("T")}, 53')
    e('s_or_b32 s58, s58, s59')
    e('s_cmp_lg_u64 vcc, 0')
    e('s_cbranch_scc1 L_slow')
    e(f'v_readlane_b32 s8, {r("T")}, s36'); e(f'v_readlane_b32 s9, {r("T")}, s46'); e(f'v_readlane_b32 s10, {r("T")}, s47'); e(f'v_readlane_b32 s11, {r("T")}, s48')
    for k in range(4): e(f's_add_u32 s{45+k}, s{8+k}, 1'); e(f's_lshr_b32 s{45+k}, s{45+k}, 1')
    e('s_max_u32 s42, s45, s46'); e('s_max_u32 s42, s42, s47'); e('s_max_u32 s42, s42, s48')
    e('s_cmp_lg_u32 s42, 0')
    e('s_cbranch_scc0 L_r0')
    e('s_lshl_b32 s3, s42, 5')
    e('s_cmp_lg_u32 s48, 0'); e('s_cbranch_scc1 L_m4')
    main_loop(3)
    lab('L_m4')
    main_loop(4)
    lab('L_loop_done')
    e('s_cmp_lg_u32 s67, 0'); e('s_cbranch_scc1 L_slow_next')
    lab('L_epi')
    stamp(7); tr(13)
    e('s_cmp_lg_u32 s36, 0'); e('s_cbranch_scc1 L_nochk')
    e(f'v_mov_b32 {r("Z")}, 0')
    e(f'buffer_load_dword {r("T")}, {r("Z")}, s[96:99], 0 offen sc1')
    lab('L_nochk')
    WFE=V['Bq']
    e(f'v_and_b32 v{TMP+2}, 15, {L}'); e(f'v_lshlrev_b32 v{TMP+2}, 19, v{TMP+2}')
    e(f'v_lshrrev_b32 v{TMP+3}, 4, {L}'); e(f'v_lshl_add_u32 v{TMP+2}, v{TMP+3}, 5, v{TMP+2}')
    e('s_lshl_b32 s3, s36, 8'); e('s_add_u32 s3, s3, s2'); e('s_lshl_b32 s3, s3, 7')
    e(f'v_add_u32 v{TMP+2}, s3, v{TMP+2}')
    for f in range(4):
        e(f'v_cvt_pk_bf16_f32 v{A1+2*f}, {r("O",4*f)}, {r("O",4*f+1)}'); e(f'v_cvt_pk_bf16_f32 v{A1+2*f+1}, {r("O",4*f+2)}, {r("O",4*f+3)}')
    e('s_mov_b32 s64, 0x000f000f'); e('s_mov_b32 s65, 0x000f000f')
    for Mt in range(4):
        e(f's_waitcnt lgkmcnt({12-4*Mt})')
        e(f'v_mfma_f32_16x16x32_bf16 v[{X0+4*Mt}:{X0+4*Mt+3}], v[{WFE+8*Mt}:{WFE+8*Mt+3}], v[{A1}:{A1+3}], 0')
        e(f'v_mfma_f32_16x16x32_bf16 v[{X0+4*Mt}:{X0+4*Mt+3}], v[{WFE+8*Mt+4}:{WFE+8*Mt+7}], v[{A1+4}:{A1+7}], v[{X0+4*Mt}:{X0+4*Mt+3}]')
    e('s_mov_b64 exec, s[64:65]')
    e('s_nop 2')
    for Mt in range(4):
        if Mt==3: e('s_nop 3')
        e(f'v_cvt_pk_bf16_f32 v{A1+8+2*Mt}, v{X0+4*Mt}, v{X0+4*Mt+1}'); e(f'v_cvt_pk_bf16_f32 v{A1+9+2*Mt}, v{X0+4*Mt+2}, v{X0+4*Mt+3}')
        if Mt==1: e(f'buffer_store_dwordx4 v[{A1+8}:{A1+11}], v{TMP+2}, s[32:35], 0 offen{OSC}')
    e(f'buffer_store_dwordx4 v[{A1+12}:{A1+15}], v{TMP+2}, s[32:35], 0 offen offset:16{OSC}')
    e('s_mov_b64 exec, -1')
    e('s_or_b32 s3, s58, s36'); e('s_cbranch_scc1 L_noep')
    e(f's_cmp_eq_u32 s{SP}, 0'); e('s_cbranch_scc1 L_pub')
    e('s_waitcnt vmcnt(2)')
    e(f'v_readfirstlane_b32 s3, {r("T")}')
    e('s_cmp_eq_u32 s3, 0'); e('s_cbranch_scc1 L_noep')
    lab('L_pub')
    for i in range(4): e(f'v_mov_b32 v{X0+i}, s{50+i}')
    e(f'v_mov_b32 v{X0+4}, 0')
    e(f's_add_u32 s68, s14, {EPO}'); e('s_addc_u32 s69, s15, 0'); e('s_mov_b32 s70, 16'); e('s_mov_b32 s71, 0x20000')
    e('s_mov_b64 exec, 1')
    e(f'buffer_store_dwordx4 v[{X0}:{X0+3}], v{X0+4}, s[68:71], 0 offen sc1')
    e('s_mov_b64 exec, -1')
    lab('L_noep')
    stamp(8); tr(14); tr_store()
    if STAMP:
        e('s_waitcnt vmcnt(0)'); stamp(9); stamp_store(14)
    if SPIN:
        lab('L_spin')
        e('s_sleep 4'); e('s_memtime s[94:95]' if SPINCYC else 's_memrealtime s[94:95]'); e('s_waitcnt lgkmcnt(0)'); e('s_sub_u32 s94, s94, s100'); e(f's_cmp_lt_u32 s94, {SPIN}'); e('s_cbranch_scc1 L_spin')
    lab('L_end')
    e('s_endpgm')
    lab('L_r0')
    e('s_cmp_lg_u32 s67, 0'); e('s_cbranch_scc1 L_slow_next')
    lab('L_epi_ld')
    wv_reads()
    e('s_branch L_epi')
    if TW:
        lab('L_tw')
        e(f'v_mov_b32 v{DQ}, s8'); e(f'v_mov_b32 v{DQ+1}, s9')
        e(f'v_writelane_b32 v{DQ}, s10, 1'); e(f'v_writelane_b32 v{DQ+1}, s11, 1')
        e(f'v_writelane_b32 v{DQ}, s16, 2'); e(f'v_writelane_b32 v{DQ+1}, s17, 2')
        e(f'v_writelane_b32 v{DQ}, s12, 3'); e(f'v_writelane_b32 v{DQ+1}, s13, 3')
        e(f'global_load_dword v{SQ}, v[{DQ}:{DQ+1}], off')
        e(f'buffer_load_dwordx4 v[{SQ}:{SQ+3}], v{A1+9}, s[24:27], 0 offen')
        e('s_branch L_twb')
    lab('L_third')
    e(f'ds_read_b128 v[{A1}:{A1+3}], v{PIA} offset:{IMG+128}')
    e(f'v_add_u32 v{AD+3}, 64, v{J4}')
    e(f'v_cmp_lt_u32 s[64:65], v{AD+3}, v{AD}')
    e('s_waitcnt lgkmcnt(0)')
    e(f'v_xor_b32 v{A1}, v{AD+1}, v{A1}')
    e(f'v_cndmask_b32 v{AD+2}, 4.0, v{T16}, s[64:65]')
    for i in (1,2,3): e(f'v_xor_b32 v{A1+i}, s{50+i}, v{A1+i}')
    e(f'buffer_store_dwordx4 v[{A1}:{A1+3}], v{AD+2}, s[28:31], s55 offen sc1')
    e('s_mov_b32 s59, 1')
    e('s_branch L_third_done')
    lab('L_more')
    e('s_mov_b64 s[74:75], s[62:63]')
    e('s_waitcnt lgkmcnt(0)')
    e('s_mov_b64 exec, s[62:63]')
    e(f'buffer_load_dwordx4 v[{GA[1]}:{GA[1]+3}], v{SOF}, s[68:71], 0 offen sc1')
    e('s_branch L_sec')
    lab('L_hretry')
    e('s_sub_u32 s66, s66, 1')
    e('s_cbranch_scc1 L_hto')
    if SLEEP: e(f's_sleep {SLEEP}')
    e('s_mov_b64 exec, s[60:61]')
    e(f'buffer_load_dwordx4 v[{GA[0]}:{GA[0]+3}], v{HOF}, s[68:71], 0 offen sc1')
    e('s_waitcnt vmcnt(0)')
    e('s_branch L_hv')
    lab('L_hto')
    e('s_mov_b32 s66, 0')
    e('s_lshr_b64 s[64:65], s[60:61], 1'); e('s_or_b64 s[60:61], s[60:61], s[64:65]')
    e('s_lshr_b64 s[64:65], s[60:61], 2'); e('s_or_b64 s[60:61], s[60:61], s[64:65]')
    e('s_and_b32 s60, s60, 0x11111111'); e('s_and_b32 s61, s61, 0x11111111')
    e('s_mul_i32 s56, s60, 15'); e('s_mul_i32 s57, s61, 15')
    e('s_mov_b64 exec, -1')
    e(f'v_mov_b32 v{TT}, 212'); e(f'v_mov_b32 v{PO2}, 0')
    e('s_mov_b64 exec, 1')
    e(f'ds_add_u32 v{TT}, v{TWO} offset:{CNT}')
    e(f'buffer_store_dword v{TT}, v{PO2}, s[96:99], 0 offen sc1')
    e('s_branch L_hok')
    lab('L_sretry')
    e('s_sub_u32 s66, s66, 1')
    e('s_cbranch_scc1 L_force_slow')
    if SLEEP: e(f's_sleep {SLEEP}')
    e('s_mov_b64 exec, s[62:63]')
    e(f'buffer_load_dwordx4 v[{GA[1]}:{GA[1]+3}], v{SOF}, s[68:71], 0 offen sc1')
    e('s_waitcnt vmcnt(0)')
    e('s_branch L_sv')
    lab('L_force_slow')
    e('s_mov_b64 exec, -1')
    e('s_waitcnt vmcnt(0)')
    e(f'v_mov_b32 v{TT}, 0x10000'); e(f'v_mov_b32 v{X0}, 220')
    e('s_mov_b64 exec, 1')
    e(f'ds_add_u32 v{X0}, v{TT} offset:{CNT}')
    e('s_mov_b64 exec, -1')
    e('s_branch L_rescan_done')
    lab('L_rescan')
    e('s_lshl_b32 s72, s36, 4')
    lab('L_rs_next')
    e('s_cmp_eq_u64 s[56:57], 0'); e('s_cbranch_scc1 L_rescan_done')
    e('s_ff1_i32_b64 s73, s[56:57]')
    e('s_lshl_b64 s[64:65], 15, s73'); e('s_andn2_b64 s[56:57], s[56:57], s[64:65]')
    e('s_lshr_b32 s73, s73, 2'); e('s_add_u32 s73, s73, s72')
    e(f's_mul_i32 s73, s73, {CHB}')
    e('s_mov_b32 s74, 0')
    lab('L_rs_loop')
    e(f'v_add_u32 {r("Z")}, s74, {L}')
    e(f'v_lshl_add_u32 {r("T")}, {r("Z")}, 4, s73')
    e(f'v_cmp_gt_u32 vcc, {NQ}, {r("Z")}'); e('s_mov_b64 s[62:63], vcc')
    e(f'v_cmp_gt_u32 vcc, {EB}, {r("T")}'); e('s_and_b64 s[62:63], s[62:63], vcc')
    scan_quads(V['T'],'s[62:63]')
    e('s_add_u32 s74, s74, 64'); e(f's_cmp_lt_u32 s74, {NQ}'); e('s_cbranch_scc1 L_rs_loop')
    e('s_branch L_rs_next')
    lab('L_slow')
    e('s_mov_b32 s67, 1'); e('s_mov_b32 s75, 0'); e('s_mov_b32 s13, 0'); e('s_waitcnt vmcnt(0)')
    lab('L_slow_next')
    e(f's_cmp_ge_u32 s75, {EB}'); e('s_cbranch_scc1 L_epi_ld')
    e('s_barrier')
    list_init(A1)
    e('s_waitcnt lgkmcnt(0)')
    e('s_barrier')
    e(f'v_lshl_add_u32 {r("T")}, v0, 4, s75')
    e('v_cmp_gt_u32 vcc, 28, v0'); e('s_mov_b64 s[62:63], vcc')
    e(f'v_cmp_gt_u32 vcc, {EB}, {r("T")}'); e('s_and_b64 s[62:63], s[62:63], vcc')
    e('s_cbranch_scc0 L_slow_skip')
    scan_quads(V['T'],'s[62:63]')
    lab('L_slow_skip')
    e('s_add_u32 s75, s75, 448')
    e('s_branch L_rescan_done')

def kd(name, nv, ns):
    nva=(nv+3)//4*4
    return ['.p2align 6', f'.amdhsa_kernel {name}', f'  .amdhsa_next_free_vgpr {nv}', f'  .amdhsa_next_free_sgpr {ns}', f'  .amdhsa_accum_offset {nva}',
      '  .amdhsa_group_segment_fixed_size 0','  .amdhsa_kernarg_size 64','  .amdhsa_user_sgpr_count 2','  .amdhsa_user_sgpr_kernarg_segment_ptr 1','  .amdhsa_system_sgpr_workgroup_id_x 1','.end_amdhsa_kernel']
top = hdr + [f'; @launch grid=(256,1,1) block=(1024,1,1) lds={LDS}', '.amdgcn_target "amdgcn-amd-amdhsa--gfx950"','.text',f'.globl {K}']
kernel()
tail=['.section .rodata,"a"']+kd(K,NV,102)
open(OUT,'w').write('\n'.join(top+o+tail)+'\n')
print('vgprs',NV,'lds',LDS, file=sys.stderr)
```

```python
import sys, struct
args=sys.argv[1:]
STAMP = '--stamp' in args
def opt(name, dflt):
    for a in args:
        if a.startswith('--'+name+'='): return int(a.split('=')[1])
    return dflt
TIMEOUT=opt('timeout',4096); PF=opt('pf',0); PFPOS=opt('pfpos',3); SLEEP=opt('sleep',2); DELAY=opt('delay',0)
SPIN=opt('spin',0); SPINAT=opt('spinat',0); SPINCYC=opt('spincyc',0); TR=opt('trace',0); OSC=['',' sc1',' nt',' sc0 sc1'][opt('osc',2)]; MSK=opt('msk',1); EPL=opt('epl',1); TW=opt('tw',0); AUXE=opt('auxe',0); CPF=opt('cpf',64); CSTR=opt('cstr',7); EARLY=opt('early',0); HSK=opt('hsk',0); PM=opt('pm',0); SPEC=opt('spec',0); LIW=opt('liw',1); TPOS=opt('tpos',3); DEC=opt('dec',1); WIN=opt('win',1); ETAB=opt('etab',1); ACK=opt('ack',0); TLB=opt('tlb',0); PRIO=opt('prio',2); PASSW=opt('passw',8)
OUT = [a for a in args if not a.startswith('--')][0]
HDR = open('gather_scatter__kernel_systems_refs_featgraph__graph.s.ref').read().split('\n')
hdr = [l for l in HDR if l.startswith(';') and '@launch' not in l and 'Override' not in l and 'grid=ceil' not in l]
K='gather_scatter__kernel_systems_refs_featgraph__graph_kernel'
N=12500; E=800000; EB=E*4; CHB=12512; NQ=782
XB=N*128
HSTR=16384+128; SECD=0x420000
ESTR=16384+128
TABO=0x410000
EPO=0xd00000
TSTR=2176
o=[]
def e(s): o.append('    '+s)
def lab(s): o.append(s+':')
def f2u(f): return struct.unpack('<I',struct.pack('<f',f))[0]
def srd(d, lo, hi, nrec):
    e(f's_mov_b32 s{d}, s{lo}'); e(f's_mov_b32 s{d+1}, s{hi}'); e(f's_mov_b32 s{d+2}, {nrec}'); e(f's_mov_b32 s{d+3}, 0x20000')
NST=10
def stamp(i):
    if STAMP: e(f's_memrealtime s[{80+2*i}:{81+2*i}]')
    if SPIN and i==SPINAT: e('s_memtime s[100:101]' if SPINCYC else 's_memrealtime s[100:101]')
def tr(lane):
    if not TR: return
    e('s_memrealtime s[78:79]'); e('s_waitcnt lgkmcnt(0)')
    if isinstance(lane,str):
        e(f's_lshl_b64 exec, 1, {lane}'); e('v_mov_b32 v27, s78'); e('s_mov_b64 exec, -1')
    else:
        e(f'v_writelane_b32 v27, s78, {lane}')
def tr_store():
    if not TR: return
    e('s_add_u32 s76, s14, 0xa000000'); e('s_addc_u32 s77, s15, 0')
    e(f's_lshl_b32 s75, s{SP}, 12')
    e('v_lshl_add_u32 v1, v0, 2, s75')
    e('global_store_dword v1, v27, s[76:77]')
def stamp_store(wsreg):
    if not STAMP: return
    e('s_waitcnt lgkmcnt(0)')
    e('v_cmp_eq_u32 vcc, 0, v0')
    e('s_and_saveexec_b64 s[78:79], vcc')
    e(f's_cbranch_execz L_nostamp')
    e(f's_add_u32 s76, s{wsreg}, 0x8000000'); e(f's_addc_u32 s77, s{wsreg+1}, 0')
    e(f's_lshl_b32 s75, s{SP}, 7')
    e('v_mov_b32 v1, s75')
    for i in range(NST):
        e(f'v_mov_b32 v2, s{80+2*i}'); e(f'v_mov_b32 v3, s{81+2*i}')
        e(f'global_store_dwordx2 v1, v[2:3], s[76:77] offset:{8*i}')
        e('s_nop 1')
    lab('L_nostamp')
    e('s_mov_b64 exec, -1')

CNT=0; QS=144; QT=256; WV=QT+64*QS; PC=WV+8192; WQ=PC+1024; XR=WQ+8192; STG=XR+8192; IMG=STG; LIST=STG+100352; LDS=LIST+12544
assert STG%128==0 and QT%16==0 and WV%16==0 and IMG+128<=65536 and LDS<=163840
V={}
_n=[1]
def va(name,cnt=1,al=1):
    while _n[0]%al: _n[0]+=1
    V[name]=_n[0]; _n[0]+=cnt
    return V[name]
va('lane'); va('cA'); va('cB'); va('ia'); va('a10'); va('a11'); va('a2',4); va('m',4); va('cs'); va('idx',8); va('qa'); va('Z'); va('T'); V['Pk']=V['T']
va('O',16,4); va('D',4,4); va('Bq',32,4); va('A1',24,4); va('XT01',16,4); va('XT2',8,2)
NV=_n[0]
assert NV<=128, NV
def r(name,i=0,n=1):
    b=V[name]+i
    return f'v{b}' if n==1 else f'v[{b}:{b+n-1}]'
A1=V['A1']; XT3=A1; P01=A1+8; P2=A1+12; P3=A1+14
X0=V['XT01']; TMP=V['XT2']; OO=V['O']; ID=V['idx']
L=r('lane')
DQ=X0; SQ=X0+4; AD=X0+8; RK=X0+12
EPR=ID; T16=V['D']; L16=V['D']+1; FOUR=V['D']+2
SC=A1; TGS=A1+16
XQ=A1; WF=A1+8; QD=V['D']; QAW=ID+4; QAX=ID+5; QAX2=ID+6; QAT=ID+7
GA=[X0, X0+4]; CNV=X0+8; TT=X0+9; PO2=X0+10
HOF=TMP; SOF=TMP+1; J4=TMP+2; TWO=TMP+4; PIA=TMP+5; PSO=TMP+6; PCA=TMP+7
M0_=0xC003C000
SP=49
M_=0xC0FFC000

def wfrag_addr_q():
    e(f'v_lshrrev_b32 v{TMP}, 4, {L}'); e(f'v_lshlrev_b32 v{TMP}, 10, v{TMP}')
    e(f'v_bfe_u32 v{TMP+1}, {L}, 2, 2'); e(f'v_lshl_add_u32 v{TMP}, v{TMP+1}, 7, v{TMP}')
    e(f'v_and_b32 v{TMP+1}, 3, {L}'); e(f'v_lshl_add_u32 v{TMP}, v{TMP+1}, 3, v{TMP}')
    e('s_and_b32 s3, s36, 3'); e('s_lshl_b32 s3, s3, 5')
    e(f'v_add_u32 v{TMP}, s3, v{TMP}')

_u=[0]
def dma_issue(nc, check):
    _u[0]+=1; u=_u[0]
    if check and HSK: e('s_lshl_b32 s77, s43, 1'); e('s_add_u32 s77, s77, 1')
    for k in range(nc):
        if check: e(f's_cmp_lt_u32 s43, s{45+k}'); e(f's_cbranch_scc0 D{u}_{k}')
        e(f'v_lshl_add_u32 {r("idx",2*k)}, {r("idx",2*k)}, 7, {r("cA")}')
        e(f's_add_u32 m0, s37, {k*2048}')
        e(f'v_lshl_add_u32 {r("idx",2*k+1)}, {r("idx",2*k+1)}, 7, {r("cB")}')
        e(f'buffer_load_dwordx4 {r("idx",2*k)}, s[16:19], 0 offen lds')
        if check and HSK: e(f's_cmp_lt_u32 s77, s{8+k}'); e(f's_cbranch_scc0 D{u}_{k}')
        e(f's_add_u32 m0, s37, {k*2048+1024}')
        e('s_nop 0')
        e(f'buffer_load_dwordx4 {r("idx",2*k+1)}, s[16:19], 0 offen lds')
        if check: lab(f'D{u}_{k}')
def idx_reads(nc):
    for k in range(nc):
        e(f'ds_read_u16 {r("idx",2*k)}, {r("ia")} offset:{k*4096}')
        e(f'ds_read_u16 {r("idx",2*k+1)}, {r("ia")} offset:{k*4096+16}')

def wv_reads():
    WFE=V['Bq']; a=ID
    e(f'v_lshrrev_b32 v{a}, 2, {L}'); e(f'v_lshlrev_b32 v{a}, 7, v{a}')
    e(f'v_and_b32 v{a+1}, 3, {L}'); e(f'v_lshl_add_u32 v{a}, v{a+1}, 5, v{a}')
    e(f'v_lshlrev_b32 v{a+1}, 1, {L}'); e(f'v_and_b32 v{a+1}, 16, v{a+1}'); e(f'v_or_b32 v{a}, v{a}, v{a+1}'); e(f'v_xor_b32 v{a+1}, 16, v{a}')
    for Mt in range(4):
        for ks in range(2):
            for jh in range(2):
                d=WFE+8*Mt+4*ks+2*jh
                e(f'ds_read_b64_tr_b16 v[{d}:{d+1}], v{a+(Mt>>1)} offset:{WV+(2*ks+jh)*2048+8*(Mt&1)}')

def sigmoid(nc):
    e(f'v_mul_f32 {r("Z")}, {r("D",0)}, {r("cs")}')
    for i in (1,2,3):
        e(f'v_mul_f32_dpp {r("Z")}, {r("D",i)}, {r("cs")} row_shr:{4*i} row_mask:0xf bank_mask:{1<<i:#x}')
    e(f'v_exp_f32 {r("Z")}, {r("Z")}')
    e('s_nop 0')
    e(f'v_add_f32 {r("Z")}, 1.0, {r("Z")}')
    e(f'v_rcp_f32 {r("Z")}, {r("Z")}')
    e('s_nop 1')
    e(f'v_mov_b32_dpp {r("T")}, {r("Z")} row_shl:4 row_mask:0xf bank_mask:0xf bound_ctrl:0')
    e(f'v_cvt_pk_bf16_f32 {r("Pk")}, {r("Z")}, {r("T")}')
    dsts=[P01,P01+2,P2,P3]
    for k in range(nc):
        e(f'v_and_b32 v{dsts[k]}, {r("Pk")}, {r("m",k)}')
    for k in range(nc):
        e(f'v_and_b32_dpp v{dsts[k]+1}, {r("Pk")}, {r("m",k)} row_shl:8 row_mask:0xf bank_mask:0xf bound_ctrl:0')
    e('s_nop 1')
def xt(k,f):
    return V['XT01']+4*f+2*k if k<2 else (V['XT2']+2*f if k==2 else XT3+2*f)
def a1r(k):
    return 8*k if k<3 else 0
def mf1(k, first):
    c0 = '0' if first else r("D",0,4)
    e(f'v_mfma_f32_16x16x32_bf16 {r("D",0,4)}, {r("A1",a1r(k),4)}, {r("Bq",8*k,4)}, {c0}')
    e(f'v_mfma_f32_16x16x32_bf16 {r("D",0,4)}, {r("A1",a1r(k)+4,4)}, {r("Bq",8*k+4,4)}, {r("D",0,4)}')
def a1reads(k):
    e(f'ds_read_b128 {r("A1",a1r(k),4)}, {r("a10")} offset:{k*2048}')
    e(f'ds_read_b128 {r("A1",a1r(k)+4,4)}, {r("a11")} offset:{k*2048}')
def trreads(k):
    return [f'ds_read_b64_tr_b16 v[{xt(k,f)}:{xt(k,f)+1}], {r("a2",f)} offset:{k*2048}' for f in range(4)]
def mf2pair():
    for f in range(4):
        e(f'v_mfma_f32_16x16x32_bf16 {r("O",4*f,4)}, {r("XT01",4*f,4)}, v[{P01}:{P01+3}], {r("O",4*f,4)}')
def mf2single(k):
    P=P2 if k==2 else P3
    for f in range(4):
        e(f'v_mfma_f32_16x16x16_bf16 {r("O",4*f,4)}, v[{xt(k,f)}:{xt(k,f)+1}], v[{P}:{P+1}], {r("O",4*f,4)}')

def main_loop(nc):
    t=f'M{nc}'
    e('s_cmp_eq_u32 s42, 5'); e(f's_cbranch_scc1 {t}_spec')
    e(f'v_add_u32 {r("ia")}, s3, {r("Z")}')
    idx_reads(nc)
    lab(f'{t}_spec')
    if EARLY:
        for k in range(nc): e(f's_sub_u32 s{45+k}, s{45+k}, s13')
        e('s_sub_u32 s42, s42, s13')
    e('s_min_u32 s44, s45, s46'); e('s_min_u32 s44, s44, s47')
    if nc==4: e('s_min_u32 s44, s44, s48')
    e('s_sub_u32 s43, s42, 1')
    if EARLY: e('s_cmp_lg_u32 s13, 0'); e(f's_cbranch_scc1 {t}_early')
    e('s_waitcnt lgkmcnt(0)')
    dma_issue(nc, True)
    if not EARLY: tr(11)
    lab(f'{t}_loop')
    if PRIO==2:
        th=[(3,2,1),(4,2,1),(4,3,1),(4,3,2)][PM]
        e('s_setprio 3'); e(f's_cmp_gt_u32 s42, {th[0]}'); e(f's_cbranch_scc1 {t}_pd')
        e('s_setprio 2'); e(f's_cmp_gt_u32 s42, {th[1]}'); e(f's_cbranch_scc1 {t}_pd')
        e('s_setprio 1'); e(f's_cmp_gt_u32 s42, {th[2]}'); e(f's_cbranch_scc1 {t}_pd')
        e('s_setprio 0')
        lab(f'{t}_pd')
    e(f'v_subrev_u32 {r("ia")}, 32, {r("ia")}')
    e('s_sub_u32 s42, s42, 1'); e('s_sub_u32 s43, s42, 1')
    idx_reads(nc)
    e('s_cmp_ge_u32 s42, s44'); e(f's_cbranch_scc1 {t}_ramp')
    e('s_waitcnt vmcnt(0)')
    tr('s42')
    for k in range(3): a1reads(k)
    trl=trreads(0)+trreads(1)+trreads(2)
    for x in trl[:6]: e(x)
    e('s_waitcnt lgkmcnt(10)')
    mf1(0,True)
    for x in trl[6:]: e(x)
    if nc==4:
        a1reads(3)
        e('s_waitcnt lgkmcnt(14)')
    else:
        e('s_waitcnt lgkmcnt(12)')
    mf1(1,False); mf1(2,False)
    if nc==4:
        e('s_waitcnt lgkmcnt(0)')
        mf1(3,False)
        for x in trreads(3): e(x)
    e('s_waitcnt lgkmcnt(0)')
    e('s_cmp_eq_u32 s42, 0')
    e(f's_cbranch_scc1 {t}_last')
    dma_issue(nc, False)
    lab(f'{t}_nodma')
    if TR: e('s_add_u32 s75, s42, 16'); tr('s75')
    sigmoid(nc)
    mf2pair(); mf2single(2)
    if nc==4: mf2single(3)
    e('s_cmp_lg_u32 s42, 0')
    e(f's_cbranch_scc1 {t}_loop')
    e('s_branch L_loop_done')
    lab(f'{t}_last')
    e('s_nop 4')
    e('s_cmp_lg_u32 s67, 0'); e(f's_cbranch_scc1 {t}_nodma')
    wv_reads()
    e(f's_branch {t}_nodma')
    if EARLY:
        lab(f'{t}_early')
        e('s_waitcnt vmcnt(0)')
        tr(5)
        for k in range(3): a1reads(k)
        trl=trreads(0)+trreads(1)+trreads(2)
        for x in trl[:6]: e(x)
        e('s_waitcnt lgkmcnt(10)')
        mf1(0,True)
        for x in trl[6:]: e(x)
        if nc==4:
            a1reads(3)
            e('s_waitcnt lgkmcnt(14)')
        else:
            e('s_waitcnt lgkmcnt(12)')
        mf1(1,False); mf1(2,False)
        if nc==4:
            e('s_waitcnt lgkmcnt(0)')
            mf1(3,False)
            for x in trreads(3): e(x)
        e('s_waitcnt lgkmcnt(0)')
        e('s_cmp_eq_u32 s42, 0')
        e(f's_cbranch_scc1 {t}_elast')
        dma_issue(nc, True)
        lab(f'{t}_enodma')
        tr(21)
        e('s_nop 7')
        sigmoid(nc)
        mf2pair()
        for i in range(16): e(f'v_mov_b32 {r("XT01",i)}, 0')
        mf2single(2)
        if nc==4: mf2single(3)
        e('s_cmp_lg_u32 s42, 0')
        e(f's_cbranch_scc1 {t}_loop')
        e('s_branch L_loop_done')
        lab(f'{t}_elast')
        wv_reads()
        e(f's_branch {t}_enodma')
    lab(f'{t}_ramp')
    for i in range(4): e(f'v_mov_b32 {r("D",i)}, 0')
    e('s_waitcnt vmcnt(0)')
    tr('s42')
    for k in range(3):
        e(f's_cmp_lt_u32 s42, s{45+k}'); e(f's_cbranch_scc0 {t}_r1{k}')
        a1reads(k)
        for x in trreads(k): e(x)
        lab(f'{t}_r1{k}')
    e('s_waitcnt lgkmcnt(0)')
    for k in range(3):
        e(f's_cmp_lt_u32 s42, s{45+k}'); e(f's_cbranch_scc0 {t}_r2{k}')
        mf1(k,False)
        lab(f'{t}_r2{k}')
    if nc==4:
        e(f's_cmp_lt_u32 s42, s48'); e(f's_cbranch_scc0 {t}_r23')
        a1reads(3)
        e('s_waitcnt lgkmcnt(0)')
        mf1(3,False)
        for x in trreads(3): e(x)
        e('s_waitcnt lgkmcnt(0)')
        lab(f'{t}_r23')
    e('s_cmp_eq_u32 s42, 0')
    e(f's_cbranch_scc1 {t}_rlast')
    dma_issue(nc, True)
    lab(f'{t}_rnodma')
    if TR: e('s_add_u32 s75, s42, 16'); tr('s75')
    e('s_nop 7')
    sigmoid(nc)
    mf2pair()
    e(f's_cmp_lt_u32 s42, s47'); e(f's_cbranch_scc0 {t}_r32')
    mf2single(2)
    lab(f'{t}_r32')
    if nc==4:
        e(f's_cmp_lt_u32 s42, s48'); e(f's_cbranch_scc0 {t}_r33')
        mf2single(3)
        lab(f'{t}_r33')
    e('s_cmp_lg_u32 s42, 0')
    e(f's_cbranch_scc1 {t}_loop')
    e('s_branch L_loop_done')
    lab(f'{t}_rlast')
    e('s_cmp_lg_u32 s67, 0'); e(f's_cbranch_scc1 {t}_rnodma')
    wv_reads()
    e(f's_branch {t}_rnodma')

def list_init(t):
    for i in range(4): e(f'v_mov_b32 v{t+i}, -1')
    e(f'v_lshlrev_b32 v{t+4}, 4, v0')
    e(f'v_add_u32 v{t+4}, {LIST}, v{t+4}')
    e('v_cmp_gt_u32 vcc, 784, v0')
    e('s_mov_b64 exec, vcc')
    e(f'ds_write_b128 v{t+4}, v[{t}:{t+3}]')
    e('s_mov_b64 exec, -1')
    _u[0]+=1; u=_u[0]
    e('s_cmp_lg_u32 s36, 13'); e(f's_cbranch_scc1 I{u}')
    e(f'v_lshlrev_b32 v{t+5}, 2, {L}')
    e(f'v_lshlrev_b32 v{t+6}, 8, {L}'); e(f'v_add_u32 v{t+6}, {LIST}, v{t+6}')
    e(f'v_mov_b32 v{t+4}, s40')
    e(f'v_cmp_le_u32 vcc, 56, {L}')
    e('s_nop 1')
    e(f'v_cndmask_b32 v{t+6}, v{t+6}, v{t+4}, vcc')
    e(f'ds_write_b32 v{t+5}, v{t+6} offset:{CNT}')
    lab(f'I{u}')
def stg_zero(t):
    for i in range(4): e(f'v_mov_b32 v{t+i}, 0')
    e(f'v_lshl_add_u32 v{t+4}, {L}, 4, s37')
    for i in range(6): e(f'ds_write_b128 v{t+4}, v[{t}:{t+3}] offset:{1024*i}')
    _u[0]+=1; u=_u[0]
    e('s_cmp_lg_u32 s36, 0'); e(f's_cbranch_scc1 Z{u}')
    for i in (6,7): e(f'ds_write_b128 v{t+4}, v[{t}:{t+3}] offset:{1024*i}')
    lab(f'Z{u}')

def insert_entries(groups, tr_, two):
    n=sum(len(g[1]) for g in groups)
    i=0
    for m,regs in groups:
        e(f's_mov_b64 exec, {m}')
        for x in regs:
            e(f'v_lshrrev_b32 v{tr_+i}, 22, v{x}')
            e(f'ds_add_rtn_u32 v{tr_+i}, v{tr_+i}, v{two} offset:{CNT}')
            i+=1
    i=0
    for m,regs in groups:
        e(f's_mov_b64 exec, {m}')
        for x in regs:
            e(f's_waitcnt lgkmcnt({n-1})')
            e(f'ds_write_b16 v{tr_+i}, v{x}')
            i+=1
    e('s_mov_b64 exec, -1')

def scan_quads(off, vmask):
    e(f's_mov_b64 exec, {vmask}')
    e(f'buffer_load_dwordx4 v[{DQ}:{DQ+3}], v{off}, s[20:23], 0 offen')
    e(f'buffer_load_dwordx4 v[{SQ}:{SQ+3}], v{off}, s[24:27], 0 offen')
    e(f'v_mov_b32 v{RK}, 2')
    e('s_mov_b32 s3, 0x050c0100')
    e('s_waitcnt vmcnt(0)')
    ms=['s[42:43]','s[44:45]','s[46:47]','s[64:65]']
    for i in range(4):
        e(f'v_and_b32 v{AD+i}, 0xff, v{DQ+i}')
        e(f'v_cmp_eq_u32 {ms[i]}, s2, v{AD+i}')
        e(f'v_perm_b32 v{SQ+i}, v{DQ+i}, v{SQ+i}, s3')
    insert_entries([(ms[i],[SQ+i]) for i in range(4)], AD, RK)

def pf_loads():
    if not PF: return
    e(f's_lshr_b32 s3, s{SP}, 3'); e('s_mul_i32 s3, s3, 50000')
    e('s_add_u32 s96, s4, s3'); e('s_addc_u32 s97, s5, 0'); e('s_mov_b32 s98, 50000'); e('s_mov_b32 s99, 0x20000')
    e(f'v_lshlrev_b32 v{TMP+6}, 6, v0')
    e(f'buffer_load_dword v{TMP+5}, v{TMP+6}, s[96:99], 0 offen')

def expand_bytes(p):
    e(f's_lshr_b64 s[64:65], s[{p}:{p+1}], 1'); e(f's_or_b64 s[{p}:{p+1}], s[{p}:{p+1}], s[64:65]')
    e(f's_lshr_b64 s[64:65], s[{p}:{p+1}], 2'); e(f's_or_b64 s[{p}:{p+1}], s[{p}:{p+1}], s[64:65]')
    e(f's_lshr_b64 s[64:65], s[{p}:{p+1}], 4'); e(f's_or_b64 s[{p}:{p+1}], s[{p}:{p+1}], s[64:65]')
    e(f's_and_b32 s{p}, s{p}, 0x01010101'); e(f's_and_b32 s{p+1}, s{p+1}, 0x01010101')
    e(f's_mul_i32 s{p}, s{p}, 0xff'); e(f's_mul_i32 s{p+1}, s{p+1}, 0xff')

def head_issue():
    if DELAY: e(f's_sleep {DELAY}')
    e(f'buffer_load_dwordx4 v[{GA[0]}:{GA[0]+3}], v{HOF}, s[68:71], 0 offen sc1')
    if SPEC: e(f'buffer_load_dwordx4 v[{GA[1]}:{GA[1]+3}], v{SOF}, s[68:71], 0 offen sc1')

def validate(G, p):
    for i in range(4): e(f'v_xor_b32 v{G+i}, s{50+i}, v{G+i}')
    e(f'v_or3_b32 v{TT}, v{G+1}, v{G+2}, v{G+3}')
    e(f'v_and_b32 v{TT}, s46, v{TT}')
    e(f'v_and_or_b32 v{TT}, v{G}, s47, v{TT}')
    e(f'v_cmp_ne_u32 {p}, 0, v{TT}')
    e(f's_cmp_lg_u64 {p}, 0')

def kernel():
    o.append('.p2align 8'); o.append(f'.type {K},@function'); lab(K)
    e('s_cmp_ge_u32 s2, 256'); e('s_cbranch_scc1 L_end')
    stamp(0)
    if TR: e('v_mov_b32 v27, 0'); tr(8)
    e('s_load_dwordx8 s[16:23], s[0:1], 0')
    e('s_load_dwordx8 s[8:15], s[0:1], 32')
    t0,t1,t2,t3=A1+8,A1+9,A1+10,A1+11
    if CPF:
        e('s_getpc_b64 s[92:93]')
        e(f'v_lshlrev_b32 v{t0}, {CSTR}, v0')
        e(f'v_mov_b32 v{t0+1}, s93'); e(f'v_add_co_u32 v{t0}, vcc, s92, v{t0}'); e('s_nop 1'); e(f'v_addc_co_u32 v{t0+1}, vcc, 0, v{t0+1}, vcc')
        e(f'v_cmp_gt_u32 vcc, {CPF}, v0')
        e('s_and_saveexec_b64 s[92:93], vcc')
        e('s_cbranch_execz L_nocpf')
        e(f'global_load_dword v{TMP+3}, v[{t0}:{t0+1}], off offset:128')
        lab('L_nocpf')
        e('s_mov_b64 exec, -1')
    e(f'v_lshrrev_b32 v{t0}, 6, v0')
    e(f'v_lshlrev_b32 v{T16}, 4, v0')
    e(f'v_readfirstlane_b32 s36, v{t0}')
    e('s_and_b32 s3, s2, 7'); e('s_add_u32 s3, s3, 56'); e('s_lshl_b32 s3, s3, 24')
    for i in range(4): e(f'v_mov_b32 v{A1+i}, s3')
    e(f'v_lshrrev_b32 v{PCA}, 2, v0'); e(f'v_lshl_add_u32 v{PIA}, v{PCA}, 7, v{T16}')
    e(f'v_and_b32 {L}, 63, v0')
    e(f's_mul_i32 s42, s2, {CHB}')
    e(f'v_add_u32 v{t1}, s42, v{T16}')
    e(f'v_mov_b32 v{t2}, 0')
    e(f's_mov_b32 s26, {EB}'); e('s_mov_b32 s27, 0x20000')
    e(f's_mov_b32 s70, 16'); e('s_mov_b32 s71, 0x20000'); e('s_mov_b32 s98, 256'); e('s_mov_b32 s99, 0x20000'); e('s_mov_b32 s58, 0'); e('s_mov_b32 s59, 0')
    e(f'v_cmp_gt_u32 vcc, {NQ}, v0'); e('s_mov_b64 s[62:63], vcc')
    e(f'v_cmp_gt_u32 vcc, {EB}, v{t1}'); e('s_and_b64 s[62:63], s[62:63], vcc')
    e(f'v_lshlrev_b32 v{A1+4}, 2, v0')
    e(f'v_cndmask_b32 v{t1}, 4.0, v{t1}, s[62:63]')
    e(f's_mov_b32 s{SP}, s2')
    e('s_and_b32 s3, s2, 7'); e('s_lshl_b32 s3, s3, 5'); e('s_lshr_b32 s2, s2, 3'); e('s_or_b32 s2, s2, s3')
    e('s_waitcnt lgkmcnt(0)')
    stamp(1)
    e('s_mov_b64 s[24:25], s[18:19]'); e('s_mov_b64 s[96:97], s[12:13]'); e('s_mov_b64 s[12:13], s[10:11]'); e('s_mov_b64 s[10:11], s[8:9]'); e('s_mov_b64 s[8:9], s[22:23]')
    e(f's_mov_b32 s22, {EB}'); e('s_mov_b32 s23, 0x20000')
    e(f's_add_u32 s68, s14, {EPO}'); e('s_addc_u32 s69, s15, 0')
    if not EPL:
        e(f'buffer_load_dwordx4 v[{EPR}:{EPR+3}], v{t2}, s[68:71], 0 offen sc1')
    if TW:
        e('s_cmp_eq_u32 s36, 13'); e('s_cbranch_scc1 L_tw')
    e(f'buffer_load_dwordx4 v[{DQ}:{DQ+3}], v{t1}, s[20:23], 0 offen')
    e(f'buffer_load_dwordx4 v[{SQ}:{SQ+3}], v{t1}, s[24:27], 0 offen')
    lab('L_twb')
    if EPL:
        e(f'buffer_load_dwordx4 v[{EPR}:{EPR+3}], v{t2}, s[68:71], 0 offen sc1')
    for i in range(3): e(f'ds_write_b128 v{PIA}, v[{A1}:{A1+3}] offset:{IMG+64*i}')
    e('s_cmp_lt_u32 s36, 4'); e('s_cbranch_scc0 L_nopc')
    e(f'ds_write_b32 v{A1+4}, v{t2} offset:{PC}')
    lab('L_nopc')
    e('s_waitcnt lgkmcnt(0)')
    e('s_barrier')
    e(f'v_lshlrev_b32 v{L16}, 4, {L}')
    e(f'v_and_b32 v{t0}, 16, {L}'); e(f'v_xor_b32 v{t0}, v{t0}, v{L16}')
    e('s_and_b32 s39, s36, 7'); e('s_lshl_b32 s39, s39, 10')
    e('s_cmp_lt_u32 s36, 8')
    e('s_cselect_b32 s28, s8, s10'); e('s_cselect_b32 s29, s9, s11'); e('s_mov_b32 s30, 8192'); e('s_mov_b32 s31, 0x20000')
    e(f's_cselect_b32 s3, {WQ-WV}, 0')
    e(f's_add_u32 s3, s3, {WV}')
    e('s_add_u32 m0, s3, s39')
    e(f's_mov_b32 s18, {XB}'); e('s_mov_b32 s19, 0x20000')
    e(f'buffer_load_dwordx4 v{t0}, s[28:31], s39 offen lds')
    e(f'v_bfe_u32 v{t0}, v0, 3, 6')
    e(f'v_lshlrev_b32 v{t0}, 15, v{t0}')
    e(f'v_lshrrev_b32 v{t3}, 3, {L}'); e(f'v_xor_b32 v{t3}, v{t3}, {L}'); e(f'v_and_b32 v{t3}, 7, v{t3}')
    e(f'v_lshl_add_u32 v{t0}, v{t3}, 4, v{t0}')
    e('s_lshl_b32 s38, s2, 7')
    e(f's_add_u32 m0, s39, {XR}')
    e(f'v_mov_b32 v{FOUR}, 4')
    e(f'buffer_load_dwordx4 v{t0}, s[16:19], s38 offen lds')
    e('s_mov_b32 s48, 0x050c0100'); e('s_mov_b32 s40, 0x30000')
    e('s_add_u32 s3, s36, 15'); e('s_and_b32 s3, s3, 15'); e('s_mul_i32 s37, s3, 6144'); e(f's_add_u32 s37, s37, {STG}')
    if not LIW: list_init(A1)
    e(f's_mul_i32 s3, s{SP}, {HSTR}'); e('s_add_u32 s28, s14, s3'); e('s_addc_u32 s29, s15, 0'); e(f's_mov_b32 s30, {2*SECD+16384}'); e('s_mov_b32 s31, 0x20000')
    e(f's_mov_b32 s54, {SECD}'); e(f's_mov_b32 s55, {2*SECD}')
    e('s_lshl_b32 s41, s36, 8'); e(f's_add_u32 s41, s41, {LIST-32}')
    e('s_mov_b32 s6, 0x00010001'); e('s_mov_b32 s7, 0x00010001')
    e(f'v_lshrrev_b32 v{t1}, 4, {L}')
    e(f'v_lshrrev_b32 v{t0}, 3, {L}'); e(f'v_and_b32 v{t0}, 6, v{t0}'); e(f'v_and_b32 v{t2}, 7, {L}')
    e(f'v_xor_b32 v{t0}, v{t0}, v{t2}'); e(f'v_lshlrev_b32 {r("cA")}, 4, v{t0}'); e(f'v_xor_b32 {r("cB")}, 16, {r("cA")}')
    e(f'v_and_b32 v{t0}, 6, {L}'); e(f'v_bfe_u32 v{t2}, {L}, 3, 1'); e(f'v_or_b32 v{t0}, v{t0}, v{t2}')
    e(f'v_lshlrev_b32 v{t2}, 1, v{t1}'); e(f'v_xor_b32 v{t0}, v{t0}, v{t2}'); e(f'v_lshlrev_b32 v{t0}, 4, v{t0}')
    e(f'v_and_b32 v{t2}, 15, {L}'); e(f'v_lshl_add_u32 v{t0}, v{t2}, 7, v{t0}')
    e(f'v_add_u32 {r("a10")}, s37, v{t0}'); e(f'v_xor_b32 {r("a11")}, 16, {r("a10")}')
    for k in range(4):
        e(f'v_cmp_eq_u32 s[64:65], {k}, v{t2}'); e('s_nop 1'); e(f'v_cndmask_b32 {r("m",k)}, 0, -1, s[64:65]')
    e(f'v_lshlrev_b32 v{t0}, 4, v{t2}'); e(f'v_add_u32 v{t0}, s36, v{t0}'); e(f's_movk_i32 s3, {QS}'); e(f'v_mul_u32_u24 v{t0}, s3, v{t0}')
    e(f'v_lshl_add_u32 {r("qa")}, v{t1}, 5, v{t0}')
    e('s_lshr_b32 s3, s36, 2'); e('s_lshl_b32 s3, s3, 4'); e(f'v_add_u32 v{t2}, s3, v{t2}')
    e(f'v_and_b32 v{t0}, 7, {L}'); e(f'v_xor_b32 v{t0}, v{t0}, v{t1}'); e(f'v_lshlrev_b32 v{t0}, 4, v{t0}')
    e(f'v_lshl_add_u32 v{QAX}, v{t2}, 7, v{t0}'); e(f'v_xor_b32 v{QAX2}, 64, v{QAX}')
    e(f's_movk_i32 s3, {QS}'); e(f'v_mul_u32_u24 v{t2}, s3, v{t2}')
    e(f'v_lshl_add_u32 v{t2}, v{t1}, 3, v{t2}')
    e('s_and_b32 s3, s36, 3'); e('s_lshl_b32 s3, s3, 5'); e(f'v_add_u32 v{QAT}, s3, v{t2}')
    e(f'v_lshlrev_b32 v{t0}, 10, v{t1}'); e(f'v_bfe_u32 v{t2}, {L}, 2, 2'); e(f'v_lshl_add_u32 v{t0}, v{t2}, 7, v{t0}')
    e(f'v_and_b32 v{t2}, 3, {L}'); e(f'v_lshl_add_u32 v{t0}, v{t2}, 3, v{t0}'); e(f'v_add_u32 v{t0}, s3, v{t0}')
    e(f'v_lshlrev_b32 v{J4}, 4, v{t2}')
    e(f'v_lshlrev_b32 v{t2}, 1, {L}'); e(f'v_and_b32 v{t2}, 16, v{t2}'); e(f'v_xor_b32 v{QAW}, v{t0}, v{t2}')
    e(f'v_lshrrev_b32 v{t0}, 2, {L}')
    e(f'v_and_b32 v{t2}, 6, v{t0}'); e(f'v_lshrrev_b32 v{t3}, 3, v{t0}'); e(f'v_or_b32 v{t2}, v{t2}, v{t3}')
    e(f'v_bfe_u32 v{t3}, {L}, 1, 1'); e(f'v_xor_b32 v{t2}, v{t2}, v{t3}'); e(f'v_lshlrev_b32 v{t2}, 4, v{t2}')
    e(f'v_lshl_add_u32 v{t2}, v{t0}, 7, v{t2}')
    e(f'v_and_b32 v{t3}, 1, {L}'); e(f'v_lshl_add_u32 v{t2}, v{t3}, 3, v{t2}')
    e(f'v_add_u32 {r("a2",0)}, s37, v{t2}')
    for f in (1,2,3): e(f'v_xor_b32 {r("a2",f)}, {32*f}, {r("a2",0)}')
    e(f'v_mov_b32 {r("cs")}, {f2u(-0.125*1.4426950408889634):#x}')
    e(f's_movk_i32 s3, {HSTR}'); e(f'v_mad_u32_u24 v{HOF}, v{PCA}, s3, v{J4}'); e('s_lshl_b32 s3, s2, 6'); e(f'v_add_u32 v{HOF}, s3, v{HOF}')
    e(f'v_add_u32 v{SOF}, {SECD}, v{HOF}')
    e(f'v_lshlrev_b32 v{PCA}, 2, v{PCA}')
    e(f'v_add_u32 v{J4}, 64, v{J4}')
    srd(68,14,15,2*SECD+256*HSTR)
    e(f'v_mov_b32 v{TWO}, 2')
    e('s_mov_b64 s[60:61], -1'); e('s_mov_b64 s[56:57], 0')
    e(f's_movk_i32 s66, {TIMEOUT}'); e('s_mov_b32 s67, 0')
    e(f's_mov_b32 s46, {M_:#x}'); e(f's_mov_b32 s47, {M0_:#x}')
    e('s_movk_i32 s44, 188'); e('s_movk_i32 s45, 252')
    def tags(w):
        e(f's_waitcnt vmcnt({w})')
        for i in range(4): e(f'v_readfirstlane_b32 s{50+i}, v{EPR+i}')
        e('s_bfe_u32 s42, s51, 0xa000e'); e('s_bfe_u32 s43, s52, 0xa000e'); e('s_bfe_u32 s3, s53, 0xa000e')
        e('s_lshl_b32 s43, s43, 10'); e('s_lshl_b32 s3, s3, 20'); e('s_or_b32 s42, s42, s43'); e('s_or_b32 s42, s42, s3')
        e('s_add_u32 s42, s42, 1')
        e(f's_and_b32 s50, s50, {M0_:#x}')
        for i,sh in ((1,0),(2,10),(3,20)):
            e(f's_and_b32 s{50+i}, s{50+i}, 0xc0000000')
            e(f's_bfe_u32 s43, s42, {0xa0000|sh:#x}'); e('s_lshl_b32 s43, s43, 14'); e(f's_or_b32 s{50+i}, s{50+i}, s43')
    if not EPL: tags(4)
    e('s_mov_b64 exec, s[62:63]')
    e(f's_waitcnt vmcnt({4 if EPL else 3})')
    stamp(2); tr(15)
    for i in range(4):
        e(f'v_lshlrev_b32_sdwa v{AD+i}, 2, v{DQ+i} dst_sel:DWORD dst_unused:UNUSED_PAD src0_sel:DWORD src1_sel:BYTE_0')
    for i in range(4):
        e(f'ds_add_rtn_u32 v{RK+i}, v{AD+i}, v{FOUR} offset:{PC}')
    e(f's_waitcnt vmcnt({3 if EPL else 2})')
    for i in range(4):
        e(f'v_perm_b32 v{SQ+i}, v{DQ+i}, v{SQ+i}, s48')
    for i in range(4):
        e(f's_waitcnt lgkmcnt(3)')
        e(f'v_min_u32 v{RK+i}, s44, v{RK+i}')
        e(f'v_mad_u32_u24 v{RK+i}, v{AD+i}, 48, v{RK+i}')
        e(f'ds_write_b32 v{RK+i}, v{SQ+i} offset:{IMG}')
    e('s_mov_b64 exec, -1')
    if EPL: tags(2)
    e('s_waitcnt lgkmcnt(0)')
    e('s_barrier')
    stamp(3); tr(43)
    C=AD
    e(f'ds_read_b32 v{C}, v{PCA} offset:{PC}')
    e(f'ds_read_b128 v[{DQ}:{DQ+3}], v{PIA} offset:{IMG}')
    e(f'ds_read_b128 v[{SQ}:{SQ+3}], v{PIA} offset:{IMG+64}')
    e('s_waitcnt lgkmcnt(2)')
    e(f'v_cmp_lt_u32 s[64:65], v{J4}, v{C}')
    e(f'v_cmp_lt_u32 vcc, 128, v{C}')
    e(f'v_min_u32 v{C+1}, s45, v{C}')
    e(f'v_lshl_or_b32 v{C+1}, v{C+1}, 16, s50')
    e('s_waitcnt lgkmcnt(1)')
    e(f'v_xor_b32 v{DQ}, v{C+1}, v{DQ}')
    for i in (1,2,3): e(f'v_xor_b32 v{DQ+i}, s{50+i}, v{DQ+i}')
    e(f'buffer_store_dwordx4 v[{DQ}:{DQ+3}], v{T16}, s[28:31], 0 offen sc1')
    e(f'v_cndmask_b32 v{C+2}, 4.0, v{T16}, s[64:65]')
    e('s_waitcnt lgkmcnt(0)')
    e(f'v_xor_b32 v{SQ}, v{C+1}, v{SQ}')
    for i in (1,2,3): e(f'v_xor_b32 v{SQ+i}, s{50+i}, v{SQ+i}')
    e(f'buffer_store_dwordx4 v[{SQ}:{SQ+3}], v{C+2}, s[28:31], s54 offen sc1')
    e('s_cbranch_vccnz L_third')
    lab('L_third_done')
    stamp(4); tr(12)
    srd(32,12,13,XB)
    if LIW: list_init(A1+16)
    tr(45)
    if TPOS==0: head_issue(); tr(46)
    for i in range(16): e(f'v_mov_b32 {r("O",i)}, 0')
    e('s_cmp_lg_u32 s59, 0'); e('s_cbranch_scc1 WB3')
    e(f's_waitcnt vmcnt({3 if TPOS==0 else 2})')
    lab('WB3')
    e(f's_waitcnt vmcnt({4 if TPOS==0 else 3})')
    tr(44)
    e('s_barrier')
    if SPIN and SPINAT==9: e('s_memrealtime s[100:101]')
    for ks in range(2):
        for jh in range(2):
            e(f'ds_read_b64_tr_b16 v[{WF+4*ks+2*jh}:{WF+4*ks+2*jh+1}], v{QAW} offset:{WQ+ks*4096+jh*512}')
    e(f'ds_read_b128 v[{XQ}:{XQ+3}], v{QAX} offset:{XR}'); e(f'ds_read_b128 v[{XQ+4}:{XQ+7}], v{QAX2} offset:{XR}')
    if TPOS==1: head_issue(); tr(46)
    e('s_waitcnt lgkmcnt(0)')
    e(f'v_mfma_f32_16x16x32_bf16 v[{QD}:{QD+3}], v[{WF}:{WF+3}], v[{XQ}:{XQ+3}], 0')
    e(f'v_mfma_f32_16x16x32_bf16 v[{QD}:{QD+3}], v[{WF+4}:{WF+7}], v[{XQ+4}:{XQ+7}], v[{QD}:{QD+3}]')
    for i in range(32): e(f'v_mov_b32 {r("Bq",i)}, 0')
    e(f'v_cvt_pk_bf16_f32 v{A1}, v{QD}, v{QD+1}'); e(f'v_cvt_pk_bf16_f32 v{A1+1}, v{QD+2}, v{QD+3}')
    e(f'ds_write_b64 v{QAT}, v[{A1}:{A1+1}] offset:{QT}')
    if TPOS==2: head_issue(); tr(46)
    e('s_waitcnt lgkmcnt(0)')
    tr(42)
    e('s_barrier')
    if TPOS==3: head_issue(); tr(46)
    for k in range(4):
        e(f's_lshl_b64 exec, s[6:7], {k}')
        e(f'ds_read_b128 {r("Bq",8*k,4)}, {r("qa")} offset:{QT}')
        e(f'ds_read_b128 {r("Bq",8*k+4,4)}, {r("qa")} offset:{QT+16}')
    e('s_mov_b64 exec, -1')
    e(f's_waitcnt vmcnt({1 if SPEC else 0})')
    tr(6)
    lab('L_hv')
    validate(GA[0], 's[60:61]')
    e('s_cbranch_scc1 L_hretry')
    lab('L_hok')
    e('s_mov_b64 exec, -1')
    stamp(5)
    tr(7)
    if TR: e('v_writelane_b32 v27, s66, 40')
    e(f'v_bfe_u32 v{CNV}, v{GA[0]}, 16, 8')
    e(f'v_cmp_lt_u32 vcc, s44, v{CNV}')
    e(f'v_cmp_lt_u32 s[62:63], v{J4}, v{CNV}')
    e('s_or_b64 s[56:57], s[56:57], vcc')
    e('s_andn2_b64 s[62:63], s[62:63], s[56:57]')
    e('s_mov_b64 s[74:75], s[62:63]')
    if not SPEC:
        e(f'v_cndmask_b32 v{PO2}, 4.0, v{SOF}, s[62:63]')
        e(f'buffer_load_dwordx4 v[{GA[1]}:{GA[1]+3}], v{PO2}, s[68:71], 0 offen sc1')
    e(f'v_and_b32 v{GA[0]}, 0x3f003fff, v{GA[0]}')
    if MSK:
        e(f'v_add_u32 v{PO2+1}, 64, v{CNV}'); e(f'v_sub_u32 v{PO2+1}, v{PO2+1}, v{J4}')
        ms=['s[42:43]','s[64:65]','s[72:73]','s[76:77]']
        e('s_andn2_b64 exec, -1, s[56:57]')
        for i in range(4): e(f'v_cmp_lt_i32 {ms[i]}, {4*i}, v{PO2+1}')
        for i in range(4):
            e(f's_mov_b64 exec, {ms[i]}')
            e(f'v_lshrrev_b32 v{A1+i}, 22, v{GA[0]+i}')
            e(f'ds_add_rtn_u32 v{A1+i}, v{A1+i}, v{TWO} offset:{CNT}')
        for i in range(4):
            e(f's_mov_b64 exec, {ms[i]}')
            e(f's_waitcnt lgkmcnt(3)')
            e(f'ds_write_b16 v{A1+i}, v{GA[0]+i}')
    else:
        e('s_andn2_b64 exec, -1, s[56:57]')
        for i in range(4):
            e(f'v_lshrrev_b32 v{A1+i}, 22, v{GA[0]+i}')
            e(f'ds_add_rtn_u32 v{A1+i}, v{A1+i}, v{TWO} offset:{CNT}')
        for i in range(4):
            e(f's_waitcnt lgkmcnt(3)')
            e(f'ds_write_b16 v{A1+i}, v{GA[0]+i}')
    e('s_mov_b32 s13, 0')
    if EARLY:
        e('s_mov_b64 exec, -1')
        e(f'v_lshrrev_b32 {r("Z")}, 3, {L}'); e(f'v_lshl_add_u32 {r("Z")}, {r("Z")}, 1, s41')
        e(f'v_add_u32 {r("ia")}, 32, {r("Z")}')
        e('s_cmp_lt_u32 s2, 212'); e('s_cselect_b32 s12, 0, 1'); e('s_or_b32 s12, s12, s36')
        e('s_mov_b32 s3, 0xffff')
        e('s_waitcnt lgkmcnt(0)')
        e('s_barrier')
        stamp(6); tr(10)
        e('s_setprio 3')
        idx_reads(4)
        e('s_cmp_eq_u32 s12, 0'); e('s_cbranch_scc1 L_e4')
        for nc in (3,4):
            if nc==4: lab('L_e4')
            e(f's_waitcnt lgkmcnt({2 if nc==3 else 0})')
            e(f'v_max3_u32 {r("T")}, {r("idx",0)}, {r("idx",1)}, {r("idx",2)}')
            e(f'v_max3_u32 {r("T")}, {r("T")}, {r("idx",3)}, {r("idx",4)}')
            if nc==3: e(f'v_max_u32 {r("T")}, {r("T")}, {r("idx",5)}')
            else:
                e(f'v_max3_u32 {r("T")}, {r("T")}, {r("idx",5)}, {r("idx",6)}'); e(f'v_max_u32 {r("T")}, {r("T")}, {r("idx",7)}')
            e(f'v_cmp_eq_u32 vcc, s3, {r("T")}')
            e('s_cbranch_vccnz L_sec')
            dma_issue(nc, False)
            tr(11)
            e('s_mov_b32 s13, 1')
            e('s_mov_b64 exec, s[62:63]')
            e('s_cbranch_execz L_secdone')
            e(f's_waitcnt vmcnt({2*nc})')
            e('s_branch L_sv')
    lab('L_sec')
    e('s_mov_b64 exec, s[62:63]')
    e('s_cbranch_execz L_secdone')
    e('s_waitcnt vmcnt(0)')
    lab('L_sv')
    validate(GA[1], 's[62:63]')
    e('s_cbranch_scc1 L_sretry')
    tr(9)
    e('s_mov_b64 exec, s[74:75]')
    e(f'v_and_b32 v{GA[1]}, 0x3f003fff, v{GA[1]}')
    for i in range(4):
        e(f'v_lshrrev_b32 v{A1+4+i}, 22, v{GA[1]+i}')
        e(f'ds_add_rtn_u32 v{A1+4+i}, v{A1+4+i}, v{TWO} offset:{CNT}')
    for i in range(4):
        e(f's_waitcnt lgkmcnt(3)')
        e(f'ds_write_b16 v{A1+4+i}, v{GA[1]+i}')
    e('s_mov_b64 exec, -1')
    e(f'v_add_u32 v{J4}, 64, v{J4}'); e(f'v_add_u32 v{SOF}, {SECD}, v{SOF}')
    e(f'v_cmp_lt_u32 s[62:63], v{J4}, v{CNV}')
    e('s_and_b64 s[62:63], s[62:63], s[74:75]')
    e('s_cbranch_scc1 L_more')
    lab('L_secdone')
    e('s_mov_b64 exec, -1')
    e('s_cmp_lg_u64 s[56:57], 0')
    e('s_cbranch_scc1 L_rescan')
    lab('L_rescan_done')
    e(f'v_lshrrev_b32 {r("Z")}, 3, {L}'); e(f'v_lshl_add_u32 {r("Z")}, {r("Z")}, 1, s41')
    e('s_waitcnt lgkmcnt(0)')
    e(f'v_lshlrev_b32 v{A1}, 2, {L}')
    e(f'v_lshlrev_b32 v{A1+1}, 8, {L}')
    e(f'v_subrev_u32 v{A1+1}, {15-LIST & 0xffffffff}, v{A1+1}')
    e(f'v_add_u32 {r("ia")}, {5*32}, {r("Z")}')
    for i in range(16): e(f'v_mov_b32 {r("XT01",i)}, 0')
    e('s_movk_i32 s3, 271')
    e('s_add_u32 s46, s36, 16'); e('s_add_u32 s47, s36, 32'); e('s_add_u32 s48, s36, 48')
    e('s_min_u32 s48, s48, 49')
    e('s_barrier')
    if not EARLY: stamp(6); tr(10)
    else: tr(48)
    lab('L_counts')
    e(f'ds_read_b32 {r("T")}, v{A1} offset:{CNT}')
    idx_reads(4)
    e('s_waitcnt lgkmcnt(8)')
    e(f'v_sub_u32 {r("T")}, {r("T")}, v{A1+1}')
    e(f'v_cmp_lt_u32 vcc, s3, {r("T")}')
    e(f'v_lshrrev_b32 {r("T")}, 4, {r("T")}')
    e('s_and_b32 vcc_hi, vcc_hi, 0xffffff')
    e(f'v_readlane_b32 s59, {r("T")}, 53')
    e('s_or_b32 s58, s58, s59')
    e('s_cmp_lg_u64 vcc, 0')
    e('s_cbranch_scc1 L_slow')
    e(f'v_readlane_b32 s8, {r("T")}, s36'); e(f'v_readlane_b32 s9, {r("T")}, s46'); e(f'v_readlane_b32 s10, {r("T")}, s47'); e(f'v_readlane_b32 s11, {r("T")}, s48')
    for k in range(4): e(f's_add_u32 s{45+k}, s{8+k}, 1'); e(f's_lshr_b32 s{45+k}, s{45+k}, 1')
    e('s_max_u32 s42, s45, s46'); e('s_max_u32 s42, s42, s47'); e('s_max_u32 s42, s42, s48')
    e('s_cmp_lg_u32 s42, 0')
    e('s_cbranch_scc0 L_r0')
    e('s_lshl_b32 s3, s42, 5')
    e('s_cmp_lg_u32 s48, 0'); e('s_cbranch_scc1 L_m4')
    main_loop(3)
    lab('L_m4')
    main_loop(4)
    lab('L_loop_done')
    e('s_cmp_lg_u32 s67, 0'); e('s_cbranch_scc1 L_slow_next')
    lab('L_epi')
    stamp(7); tr(13)
    e('s_cmp_lg_u32 s36, 0'); e('s_cbranch_scc1 L_nochk')
    e(f'v_mov_b32 {r("Z")}, 0')
    e(f'buffer_load_dword {r("T")}, {r("Z")}, s[96:99], 0 offen sc1')
    lab('L_nochk')
    WFE=V['Bq']
    e(f'v_and_b32 v{TMP+2}, 15, {L}'); e(f'v_lshlrev_b32 v{TMP+2}, 19, v{TMP+2}')
    e(f'v_lshrrev_b32 v{TMP+3}, 4, {L}'); e(f'v_lshl_add_u32 v{TMP+2}, v{TMP+3}, 5, v{TMP+2}')
    e('s_lshl_b32 s3, s36, 8'); e('s_add_u32 s3, s3, s2'); e('s_lshl_b32 s3, s3, 7')
    e(f'v_add_u32 v{TMP+2}, s3, v{TMP+2}')
    for f in range(4):
        e(f'v_cvt_pk_bf16_f32 v{A1+2*f}, {r("O",4*f)}, {r("O",4*f+1)}'); e(f'v_cvt_pk_bf16_f32 v{A1+2*f+1}, {r("O",4*f+2)}, {r("O",4*f+3)}')
    e('s_mov_b32 s64, 0x000f000f'); e('s_mov_b32 s65, 0x000f000f')
    for Mt in range(4):
        e(f's_waitcnt lgkmcnt({12-4*Mt})')
        e(f'v_mfma_f32_16x16x32_bf16 v[{X0+4*Mt}:{X0+4*Mt+3}], v[{WFE+8*Mt}:{WFE+8*Mt+3}], v[{A1}:{A1+3}], 0')
        e(f'v_mfma_f32_16x16x32_bf16 v[{X0+4*Mt}:{X0+4*Mt+3}], v[{WFE+8*Mt+4}:{WFE+8*Mt+7}], v[{A1+4}:{A1+7}], v[{X0+4*Mt}:{X0+4*Mt+3}]')
    e('s_mov_b64 exec, s[64:65]')
    e('s_nop 2')
    for Mt in range(4):
        if Mt==3: e('s_nop 3')
        e(f'v_cvt_pk_bf16_f32 v{A1+8+2*Mt}, v{X0+4*Mt}, v{X0+4*Mt+1}'); e(f'v_cvt_pk_bf16_f32 v{A1+9+2*Mt}, v{X0+4*Mt+2}, v{X0+4*Mt+3}')
        if Mt==1: e(f'buffer_store_dwordx4 v[{A1+8}:{A1+11}], v{TMP+2}, s[32:35], 0 offen{OSC}')
    e(f'buffer_store_dwordx4 v[{A1+12}:{A1+15}], v{TMP+2}, s[32:35], 0 offen offset:16{OSC}')
    e('s_mov_b64 exec, -1')
    e('s_or_b32 s3, s58, s36'); e('s_cbranch_scc1 L_noep')
    e(f's_cmp_eq_u32 s{SP}, 0'); e('s_cbranch_scc1 L_pub')
    e('s_waitcnt vmcnt(2)')
    e(f'v_readfirstlane_b32 s3, {r("T")}')
    e('s_cmp_eq_u32 s3, 0'); e('s_cbranch_scc1 L_noep')
    lab('L_pub')
    for i in range(4): e(f'v_mov_b32 v{X0+i}, s{50+i}')
    e(f'v_mov_b32 v{X0+4}, 0')
    e(f's_add_u32 s68, s14, {EPO}'); e('s_addc_u32 s69, s15, 0'); e('s_mov_b32 s70, 16'); e('s_mov_b32 s71, 0x20000')
    e('s_mov_b64 exec, 1')
    e(f'buffer_store_dwordx4 v[{X0}:{X0+3}], v{X0+4}, s[68:71], 0 offen sc1')
    e('s_mov_b64 exec, -1')
    lab('L_noep')
    stamp(8); tr(14); tr_store()
    if STAMP:
        e('s_waitcnt vmcnt(0)'); stamp(9); stamp_store(14)
    if SPIN:
        lab('L_spin')
        e('s_sleep 4'); e('s_memtime s[94:95]' if SPINCYC else 's_memrealtime s[94:95]'); e('s_waitcnt lgkmcnt(0)'); e('s_sub_u32 s94, s94, s100'); e(f's_cmp_lt_u32 s94, {SPIN}'); e('s_cbranch_scc1 L_spin')
    lab('L_end')
    e('s_endpgm')
    lab('L_r0')
    e('s_cmp_lg_u32 s67, 0'); e('s_cbranch_scc1 L_slow_next')
    lab('L_epi_ld')
    wv_reads()
    e('s_branch L_epi')
    if TW:
        lab('L_tw')
        e(f'v_mov_b32 v{DQ}, s8'); e(f'v_mov_b32 v{DQ+1}, s9')
        e(f'v_writelane_b32 v{DQ}, s10, 1'); e(f'v_writelane_b32 v{DQ+1}, s11, 1')
        e(f'v_writelane_b32 v{DQ}, s16, 2'); e(f'v_writelane_b32 v{DQ+1}, s17, 2')
        e(f'v_writelane_b32 v{DQ}, s12, 3'); e(f'v_writelane_b32 v{DQ+1}, s13, 3')
        e(f'global_load_dword v{SQ}, v[{DQ}:{DQ+1}], off')
        srd(92,14,15,2*SECD)
        e(f'v_and_b32 v{DQ+2}, 7, v0'); e(f's_mov_b32 s3, {64*HSTR}'); e(f'v_mul_u32_u24 v{DQ+2}, s3, v{DQ+2}'); e(f'v_add_u32 v{DQ+2}, {20*HSTR+16384}, v{DQ+2}')
        e(f'buffer_load_dword v{SQ+1}, v{DQ+2}, s[92:95], 0 offen')
        e('s_branch L_twb')
    lab('L_third')
    e(f'ds_read_b128 v[{A1}:{A1+3}], v{PIA} offset:{IMG+128}')
    e(f'v_add_u32 v{AD+3}, 64, v{J4}')
    e(f'v_cmp_lt_u32 s[64:65], v{AD+3}, v{AD}')
    e('s_waitcnt lgkmcnt(0)')
    e(f'v_xor_b32 v{A1}, v{AD+1}, v{A1}')
    e(f'v_cndmask_b32 v{AD+2}, 4.0, v{T16}, s[64:65]')
    for i in (1,2,3): e(f'v_xor_b32 v{A1+i}, s{50+i}, v{A1+i}')
    e(f'buffer_store_dwordx4 v[{A1}:{A1+3}], v{AD+2}, s[28:31], s55 offen sc1')
    e('s_mov_b32 s59, 1')
    e('s_branch L_third_done')
    lab('L_more')
    e('s_mov_b64 s[74:75], s[62:63]')
    e('s_waitcnt lgkmcnt(0)')
    e('s_mov_b64 exec, s[62:63]')
    e(f'buffer_load_dwordx4 v[{GA[1]}:{GA[1]+3}], v{SOF}, s[68:71], 0 offen sc1')
    e('s_branch L_sec')
    lab('L_hretry')
    e('s_sub_u32 s66, s66, 1')
    e('s_cbranch_scc1 L_hto')
    if SLEEP: e(f's_sleep {SLEEP}')
    e('s_mov_b64 exec, s[60:61]')
    e(f'buffer_load_dwordx4 v[{GA[0]}:{GA[0]+3}], v{HOF}, s[68:71], 0 offen sc1')
    e('s_waitcnt vmcnt(0)')
    e('s_branch L_hv')
    lab('L_hto')
    e('s_mov_b32 s66, 0')
    e('s_lshr_b64 s[64:65], s[60:61], 1'); e('s_or_b64 s[60:61], s[60:61], s[64:65]')
    e('s_lshr_b64 s[64:65], s[60:61], 2'); e('s_or_b64 s[60:61], s[60:61], s[64:65]')
    e('s_and_b32 s60, s60, 0x11111111'); e('s_and_b32 s61, s61, 0x11111111')
    e('s_mul_i32 s56, s60, 15'); e('s_mul_i32 s57, s61, 15')
    e('s_mov_b64 exec, -1')
    e(f'v_mov_b32 v{TT}, 212'); e(f'v_mov_b32 v{PO2}, 0')
    e('s_mov_b64 exec, 1')
    e(f'ds_add_u32 v{TT}, v{TWO} offset:{CNT}')
    e(f'buffer_store_dword v{TT}, v{PO2}, s[96:99], 0 offen sc1')
    e('s_branch L_hok')
    lab('L_sretry')
    e('s_sub_u32 s66, s66, 1')
    e('s_cbranch_scc1 L_force_slow')
    if SLEEP: e(f's_sleep {SLEEP}')
    e('s_mov_b64 exec, s[62:63]')
    e(f'buffer_load_dwordx4 v[{GA[1]}:{GA[1]+3}], v{SOF}, s[68:71], 0 offen sc1')
    e('s_waitcnt vmcnt(0)')
    e('s_branch L_sv')
    lab('L_force_slow')
    e('s_mov_b64 exec, -1')
    e('s_waitcnt vmcnt(0)')
    e(f'v_mov_b32 v{TT}, 0x10000'); e(f'v_mov_b32 v{X0}, 220')
    e('s_mov_b64 exec, 1')
    e(f'ds_add_u32 v{X0}, v{TT} offset:{CNT}')
    e('s_mov_b64 exec, -1')
    e('s_branch L_rescan_done')
    lab('L_rescan')
    e('s_lshl_b32 s72, s36, 4')
    lab('L_rs_next')
    e('s_cmp_eq_u64 s[56:57], 0'); e('s_cbranch_scc1 L_rescan_done')
    e('s_ff1_i32_b64 s73, s[56:57]')
    e('s_lshl_b64 s[64:65], 15, s73'); e('s_andn2_b64 s[56:57], s[56:57], s[64:65]')
    e('s_lshr_b32 s73, s73, 2'); e('s_add_u32 s73, s73, s72')
    e(f's_mul_i32 s73, s73, {CHB}')
    e('s_mov_b32 s74, 0')
    lab('L_rs_loop')
    e(f'v_add_u32 {r("Z")}, s74, {L}')
    e(f'v_lshl_add_u32 {r("T")}, {r("Z")}, 4, s73')
    e(f'v_cmp_gt_u32 vcc, {NQ}, {r("Z")}'); e('s_mov_b64 s[62:63], vcc')
    e(f'v_cmp_gt_u32 vcc, {EB}, {r("T")}'); e('s_and_b64 s[62:63], s[62:63], vcc')
    scan_quads(V['T'],'s[62:63]')
    e('s_add_u32 s74, s74, 64'); e(f's_cmp_lt_u32 s74, {NQ}'); e('s_cbranch_scc1 L_rs_loop')
    e('s_branch L_rs_next')
    lab('L_slow')
    e('s_mov_b32 s67, 1'); e('s_mov_b32 s75, 0'); e('s_mov_b32 s13, 0'); e('s_waitcnt vmcnt(0)')
    lab('L_slow_next')
    e(f's_cmp_ge_u32 s75, {EB}'); e('s_cbranch_scc1 L_epi_ld')
    e('s_barrier')
    list_init(A1)
    e('s_waitcnt lgkmcnt(0)')
    e('s_barrier')
    e(f'v_lshl_add_u32 {r("T")}, v0, 4, s75')
    e('v_cmp_gt_u32 vcc, 28, v0'); e('s_mov_b64 s[62:63], vcc')
    e(f'v_cmp_gt_u32 vcc, {EB}, {r("T")}'); e('s_and_b64 s[62:63], s[62:63], vcc')
    e('s_cbranch_scc0 L_slow_skip')
    scan_quads(V['T'],'s[62:63]')
    lab('L_slow_skip')
    e('s_add_u32 s75, s75, 448')
    e('s_branch L_rescan_done')

def kd(name, nv, ns):
    nva=(nv+3)//4*4
    return ['.p2align 6', f'.amdhsa_kernel {name}', f'  .amdhsa_next_free_vgpr {nv}', f'  .amdhsa_next_free_sgpr {ns}', f'  .amdhsa_accum_offset {nva}',
      '  .amdhsa_group_segment_fixed_size 0','  .amdhsa_kernarg_size 64','  .amdhsa_user_sgpr_count 2','  .amdhsa_user_sgpr_kernarg_segment_ptr 1','  .amdhsa_system_sgpr_workgroup_id_x 1','.end_amdhsa_kernel']
top = hdr + [f'; @launch grid=(256,1,1) block=(1024,1,1) lds={LDS}', '.amdgcn_target "amdgcn-amd-amdhsa--gfx950"','.text',f'.globl {K}']
kernel()
tail=['.section .rodata,"a"']+kd(K,NV,102)
open(OUT,'w').write('\n'.join(top+o+tail)+'\n')
print('vgprs',NV,'lds',LDS, file=sys.stderr)
```

```python
import sys, struct
args=sys.argv[1:]
STAMP = '--stamp' in args
def opt(name, dflt):
    for a in args:
        if a.startswith('--'+name+'='): return int(a.split('=')[1])
    return dflt
TIMEOUT=opt('timeout',4096); PF=opt('pf',0); PFPOS=opt('pfpos',3); SLEEP=opt('sleep',2); DELAY=opt('delay',0)
SPIN=opt('spin',0); SPINAT=opt('spinat',0); SPINCYC=opt('spincyc',0); TR=opt('trace',0); OSC=['',' sc1',' nt',' sc0 sc1'][opt('osc',2)]; MSK=opt('msk',1); EPL=opt('epl',1); TW=opt('tw',0); AUXE=opt('auxe',0); NOB=opt('nob',0); CPF=opt('cpf',64); CSTR=opt('cstr',7); EARLY=opt('early',0); HSK=opt('hsk',0); PM=opt('pm',0); SPEC=opt('spec',0); LIW=opt('liw',1); TPOS=opt('tpos',3); DEC=opt('dec',1); WIN=opt('win',1); ETAB=opt('etab',1); ACK=opt('ack',0); TLB=opt('tlb',0); PRIO=opt('prio',2); PASSW=opt('passw',8)
OUT = [a for a in args if not a.startswith('--')][0]
HDR = open('gather_scatter__kernel_systems_refs_featgraph__graph.s.ref').read().split('\n')
hdr = [l for l in HDR if l.startswith(';') and '@launch' not in l and 'Override' not in l and 'grid=ceil' not in l]
K='gather_scatter__kernel_systems_refs_featgraph__graph_kernel'
N=12500; E=800000; EB=E*4; CHB=12512; NQ=782
XB=N*128
HSTR=16384+128; SECD=0x420000
ESTR=16384+128
TABO=0x410000
EPO=0xd00000
TSTR=2176
DOC = """
; out[d] = (sum_{e: dst_e = d} sigmoid(x[src_e] . (x[d] Wq) / 8) * x[src_e]) Wv      (one fused launch, 256 WGs x 16 waves)
; Every WG is producer of edge chunk `wg` and consumer of bucket b (nodes n with (n & 255) == b, local id n >> 8).
;  1. producer: bin the chunk's edges by bucket in LDS (cells of 16+16+16 entries), publish them in d_ws with
;     write-through stores; every 16-byte piece carries a launch tag (epoch record in d_ws + 1) and the cell count.
;  2. consumer: read the heads (+ overflow pieces) of its bucket from all producers, validate tags (re-poll while
;     stale; after a bounded number of polls, or on cell overflow, re-derive the entries from src/dst directly),
;     build per-node source lists in LDS; lists that do not fit fall back to windows over the raw edge list.
;  3. per wave (3-4 nodes): LDS-DMA gather of 16-row tiles, logits and weighted sums by MFMA, final 64x64 GEMM.
; The epoch record is advanced by a WG that saw this launch's pieces of all 256 producers (WG 0, or any such WG
; when d_debug[0] says some WG gave up polling).
""".strip().split('\n')
o=[]
def e(s): o.append('    '+s)
def lab(s): o.append(s+':')
def f2u(f): return struct.unpack('<I',struct.pack('<f',f))[0]
def srd(d, lo, hi, nrec):
    e(f's_mov_b32 s{d}, s{lo}'); e(f's_mov_b32 s{d+1}, s{hi}'); e(f's_mov_b32 s{d+2}, {nrec}'); e(f's_mov_b32 s{d+3}, 0x20000')
NST=10
def stamp(i):
    if STAMP: e(f's_memrealtime s[{80+2*i}:{81+2*i}]')
    if SPIN and i==SPINAT: e('s_memtime s[100:101]' if SPINCYC else 's_memrealtime s[100:101]')
def tr(lane):
    if not TR: return
    e('s_memrealtime s[78:79]'); e('s_waitcnt lgkmcnt(0)')
    if isinstance(lane,str):
        e(f's_lshl_b64 exec, 1, {lane}'); e('v_mov_b32 v27, s78'); e('s_mov_b64 exec, -1')
    else:
        e(f'v_writelane_b32 v27, s78, {lane}')
def tr_store():
    if not TR: return
    e('s_add_u32 s76, s14, 0xa000000'); e('s_addc_u32 s77, s15, 0')
    e(f's_lshl_b32 s75, s{SP}, 12')
    e('v_lshl_add_u32 v1, v0, 2, s75')
    e('global_store_dword v1, v27, s[76:77]')
def stamp_store(wsreg):
    if not STAMP: return
    e('s_waitcnt lgkmcnt(0)')
    e('v_cmp_eq_u32 vcc, 0, v0')
    e('s_and_saveexec_b64 s[78:79], vcc')
    e(f's_cbranch_execz L_nostamp')
    e(f's_add_u32 s76, s{wsreg}, 0x8000000'); e(f's_addc_u32 s77, s{wsreg+1}, 0')
    e(f's_lshl_b32 s75, s{SP}, 7')
    e('v_mov_b32 v1, s75')
    for i in range(NST):
        e(f'v_mov_b32 v2, s{80+2*i}'); e(f'v_mov_b32 v3, s{81+2*i}')
        e(f'global_store_dwordx2 v1, v[2:3], s[76:77] offset:{8*i}')
        e('s_nop 1')
    lab('L_nostamp')
    e('s_mov_b64 exec, -1')

CNT=0; QS=144; QT=256; WV=QT+64*QS; PC=WV+8192; WQ=PC+1024; XR=WQ+8192; STG=XR+8192; IMG=STG; LIST=STG+100352; LDS=LIST+12544
assert STG%128==0 and QT%16==0 and WV%16==0 and IMG+128<=65536 and LDS<=163840
V={}
_n=[1]
def va(name,cnt=1,al=1):
    while _n[0]%al: _n[0]+=1
    V[name]=_n[0]; _n[0]+=cnt
    return V[name]
va('lane'); va('cA'); va('cB'); va('ia'); va('a10'); va('a11'); va('a2',4); va('m',4); va('cs'); va('idx',8); va('qa'); va('Z'); va('T'); V['Pk']=V['T']
va('O',16,4); va('D',4,4); va('Bq',32,4); va('A1',24,4); va('XT01',16,4); va('XT2',8,2)
NV=_n[0]
assert NV<=128, NV
def r(name,i=0,n=1):
    b=V[name]+i
    return f'v{b}' if n==1 else f'v[{b}:{b+n-1}]'
A1=V['A1']; XT3=A1; P01=A1+8; P2=A1+12; P3=A1+14
X0=V['XT01']; TMP=V['XT2']; OO=V['O']; ID=V['idx']
L=r('lane')
DQ=X0; SQ=X0+4; AD=X0+8; RK=X0+12
EPR=ID; T16=V['D']; L16=V['D']+1; FOUR=V['D']+2
SC=A1; TGS=A1+16
XQ=A1; WF=A1+8; QD=V['D']; QAW=ID+4; QAX=ID+5; QAX2=ID+6; QAT=ID+7
GA=[X0, X0+4]; CNV=X0+8; TT=X0+9; PO2=X0+10
HOF=TMP; SOF=TMP+1; J4=TMP+2; TWO=TMP+4; PIA=TMP+5; PSO=TMP+6; PCA=TMP+7
M0_=0xC003C000
SP=49
M_=0xC0FFC000

def wfrag_addr_q():
    e(f'v_lshrrev_b32 v{TMP}, 4, {L}'); e(f'v_lshlrev_b32 v{TMP}, 10, v{TMP}')
    e(f'v_bfe_u32 v{TMP+1}, {L}, 2, 2'); e(f'v_lshl_add_u32 v{TMP}, v{TMP+1}, 7, v{TMP}')
    e(f'v_and_b32 v{TMP+1}, 3, {L}'); e(f'v_lshl_add_u32 v{TMP}, v{TMP+1}, 3, v{TMP}')
    e('s_and_b32 s3, s36, 3'); e('s_lshl_b32 s3, s3, 5')
    e(f'v_add_u32 v{TMP}, s3, v{TMP}')

_u=[0]
def dma_issue(nc, check):
    _u[0]+=1; u=_u[0]
    if check and HSK: e('s_lshl_b32 s77, s43, 1'); e('s_add_u32 s77, s77, 1')
    for k in range(nc):
        if check: e(f's_cmp_lt_u32 s43, s{45+k}'); e(f's_cbranch_scc0 D{u}_{k}')
        e(f'v_lshl_add_u32 {r("idx",2*k)}, {r("idx",2*k)}, 7, {r("cA")}')
        e(f's_add_u32 m0, s37, {k*2048}')
        e(f'v_lshl_add_u32 {r("idx",2*k+1)}, {r("idx",2*k+1)}, 7, {r("cB")}')
        e(f'buffer_load_dwordx4 {r("idx",2*k)}, s[16:19], 0 offen lds')
        if check and HSK: e(f's_cmp_lt_u32 s77, s{8+k}'); e(f's_cbranch_scc0 D{u}_{k}')
        e(f's_add_u32 m0, s37, {k*2048+1024}')
        e('s_nop 0')
        e(f'buffer_load_dwordx4 {r("idx",2*k+1)}, s[16:19], 0 offen lds')
        if check: lab(f'D{u}_{k}')
def idx_reads(nc):
    for k in range(nc):
        e(f'ds_read_u16 {r("idx",2*k)}, {r("ia")} offset:{k*4096}')
        e(f'ds_read_u16 {r("idx",2*k+1)}, {r("ia")} offset:{k*4096+16}')

def wv_reads():
    WFE=V['Bq']; a=ID
    e(f'v_lshrrev_b32 v{a}, 2, {L}'); e(f'v_lshlrev_b32 v{a}, 7, v{a}')
    e(f'v_and_b32 v{a+1}, 3, {L}'); e(f'v_lshl_add_u32 v{a}, v{a+1}, 5, v{a}')
    e(f'v_lshlrev_b32 v{a+1}, 1, {L}'); e(f'v_and_b32 v{a+1}, 16, v{a+1}'); e(f'v_or_b32 v{a}, v{a}, v{a+1}'); e(f'v_xor_b32 v{a+1}, 16, v{a}')
    for Mt in range(4):
        for ks in range(2):
            for jh in range(2):
                d=WFE+8*Mt+4*ks+2*jh
                e(f'ds_read_b64_tr_b16 v[{d}:{d+1}], v{a+(Mt>>1)} offset:{WV+(2*ks+jh)*2048+8*(Mt&1)}')

def sigmoid(nc):
    e(f'v_mul_f32 {r("Z")}, {r("D",0)}, {r("cs")}')
    for i in (1,2,3):
        e(f'v_mul_f32_dpp {r("Z")}, {r("D",i)}, {r("cs")} row_shr:{4*i} row_mask:0xf bank_mask:{1<<i:#x}')
    e(f'v_exp_f32 {r("Z")}, {r("Z")}')
    e('s_nop 0')
    e(f'v_add_f32 {r("Z")}, 1.0, {r("Z")}')
    e(f'v_rcp_f32 {r("Z")}, {r("Z")}')
    e('s_nop 1')
    e(f'v_mov_b32_dpp {r("T")}, {r("Z")} row_shl:4 row_mask:0xf bank_mask:0xf bound_ctrl:0')
    e(f'v_cvt_pk_bf16_f32 {r("Pk")}, {r("Z")}, {r("T")}')
    dsts=[P01,P01+2,P2,P3]
    for k in range(nc):
        e(f'v_and_b32 v{dsts[k]}, {r("Pk")}, {r("m",k)}')
    for k in range(nc):
        e(f'v_and_b32_dpp v{dsts[k]+1}, {r("Pk")}, {r("m",k)} row_shl:8 row_mask:0xf bank_mask:0xf bound_ctrl:0')
    e('s_nop 1')
def xt(k,f):
    return V['XT01']+4*f+2*k if k<2 else (V['XT2']+2*f if k==2 else XT3+2*f)
def a1r(k):
    return 8*k if k<3 else 0
def mf1(k, first):
    c0 = '0' if first else r("D",0,4)
    e(f'v_mfma_f32_16x16x32_bf16 {r("D",0,4)}, {r("A1",a1r(k),4)}, {r("Bq",8*k,4)}, {c0}')
    e(f'v_mfma_f32_16x16x32_bf16 {r("D",0,4)}, {r("A1",a1r(k)+4,4)}, {r("Bq",8*k+4,4)}, {r("D",0,4)}')
def a1reads(k):
    e(f'ds_read_b128 {r("A1",a1r(k),4)}, {r("a10")} offset:{k*2048}')
    e(f'ds_read_b128 {r("A1",a1r(k)+4,4)}, {r("a11")} offset:{k*2048}')
def trreads(k):
    return [f'ds_read_b64_tr_b16 v[{xt(k,f)}:{xt(k,f)+1}], {r("a2",f)} offset:{k*2048}' for f in range(4)]
def mf2pair():
    for f in range(4):
        e(f'v_mfma_f32_16x16x32_bf16 {r("O",4*f,4)}, {r("XT01",4*f,4)}, v[{P01}:{P01+3}], {r("O",4*f,4)}')
def mf2single(k):
    P=P2 if k==2 else P3
    for f in range(4):
        e(f'v_mfma_f32_16x16x16_bf16 {r("O",4*f,4)}, v[{xt(k,f)}:{xt(k,f)+1}], v[{P}:{P+1}], {r("O",4*f,4)}')

def main_loop(nc):
    t=f'M{nc}'
    e('s_cmp_eq_u32 s42, 5'); e(f's_cbranch_scc1 {t}_spec')
    e(f'v_add_u32 {r("ia")}, s3, {r("Z")}')
    idx_reads(nc)
    lab(f'{t}_spec')
    if EARLY:
        for k in range(nc): e(f's_sub_u32 s{45+k}, s{45+k}, s13')
        e('s_sub_u32 s42, s42, s13')
    e('s_min_u32 s44, s45, s46'); e('s_min_u32 s44, s44, s47')
    if nc==4: e('s_min_u32 s44, s44, s48')
    e('s_sub_u32 s43, s42, 1')
    if EARLY: e('s_cmp_lg_u32 s13, 0'); e(f's_cbranch_scc1 {t}_early')
    e('s_waitcnt lgkmcnt(0)')
    dma_issue(nc, True)
    if not EARLY: tr(11)
    lab(f'{t}_loop')
    if PRIO==2:
        th=[(3,2,1),(4,2,1),(4,3,1),(4,3,2)][PM]
        e('s_setprio 3'); e(f's_cmp_gt_u32 s42, {th[0]}'); e(f's_cbranch_scc1 {t}_pd')
        e('s_setprio 2'); e(f's_cmp_gt_u32 s42, {th[1]}'); e(f's_cbranch_scc1 {t}_pd')
        e('s_setprio 1'); e(f's_cmp_gt_u32 s42, {th[2]}'); e(f's_cbranch_scc1 {t}_pd')
        e('s_setprio 0')
        lab(f'{t}_pd')
    e(f'v_subrev_u32 {r("ia")}, 32, {r("ia")}')
    e('s_sub_u32 s42, s42, 1'); e('s_sub_u32 s43, s42, 1')
    idx_reads(nc)
    e('s_cmp_ge_u32 s42, s44'); e(f's_cbranch_scc1 {t}_ramp')
    e('s_waitcnt vmcnt(0)')
    tr('s42')
    for k in range(3): a1reads(k)
    trl=trreads(0)+trreads(1)+trreads(2)
    for x in trl[:6]: e(x)
    e('s_waitcnt lgkmcnt(10)')
    mf1(0,True)
    for x in trl[6:]: e(x)
    if nc==4:
        a1reads(3)
        e('s_waitcnt lgkmcnt(14)')
    else:
        e('s_waitcnt lgkmcnt(12)')
    mf1(1,False); mf1(2,False)
    if nc==4:
        e('s_waitcnt lgkmcnt(0)')
        mf1(3,False)
        for x in trreads(3): e(x)
    e('s_waitcnt lgkmcnt(0)')
    e('s_cmp_eq_u32 s42, 0')
    e(f's_cbranch_scc1 {t}_last')
    dma_issue(nc, False)
    lab(f'{t}_nodma')
    if TR: e('s_add_u32 s75, s42, 16'); tr('s75')
    sigmoid(nc)
    mf2pair(); mf2single(2)
    if nc==4: mf2single(3)
    e('s_cmp_lg_u32 s42, 0')
    e(f's_cbranch_scc1 {t}_loop')
    e('s_branch L_loop_done')
    lab(f'{t}_last')
    e('s_nop 4')
    e('s_cmp_lg_u32 s67, 0'); e(f's_cbranch_scc1 {t}_nodma')
    wv_reads()
    e(f's_branch {t}_nodma')
    if EARLY:
        lab(f'{t}_early')
        e('s_waitcnt vmcnt(0)')
        tr(5)
        for k in range(3): a1reads(k)
        trl=trreads(0)+trreads(1)+trreads(2)
        for x in trl[:6]: e(x)
        e('s_waitcnt lgkmcnt(10)')
        mf1(0,True)
        for x in trl[6:]: e(x)
        if nc==4:
            a1reads(3)
            e('s_waitcnt lgkmcnt(14)')
        else:
            e('s_waitcnt lgkmcnt(12)')
        mf1(1,False); mf1(2,False)
        if nc==4:
            e('s_waitcnt lgkmcnt(0)')
            mf1(3,False)
            for x in trreads(3): e(x)
        e('s_waitcnt lgkmcnt(0)')
        e('s_cmp_eq_u32 s42, 0')
        e(f's_cbranch_scc1 {t}_elast')
        dma_issue(nc, True)
        lab(f'{t}_enodma')
        tr(21)
        e('s_nop 7')
        sigmoid(nc)
        mf2pair()
        for i in range(16): e(f'v_mov_b32 {r("XT01",i)}, 0')
        mf2single(2)
        if nc==4: mf2single(3)
        e('s_cmp_lg_u32 s42, 0')
        e(f's_cbranch_scc1 {t}_loop')
        e('s_branch L_loop_done')
        lab(f'{t}_elast')
        wv_reads()
        e(f's_branch {t}_enodma')
    lab(f'{t}_ramp')
    for i in range(4): e(f'v_mov_b32 {r("D",i)}, 0')
    e('s_waitcnt vmcnt(0)')
    tr('s42')
    for k in range(3):
        e(f's_cmp_lt_u32 s42, s{45+k}'); e(f's_cbranch_scc0 {t}_r1{k}')
        a1reads(k)
        for x in trreads(k): e(x)
        lab(f'{t}_r1{k}')
    e('s_waitcnt lgkmcnt(0)')
    for k in range(3):
        e(f's_cmp_lt_u32 s42, s{45+k}'); e(f's_cbranch_scc0 {t}_r2{k}')
        mf1(k,False)
        lab(f'{t}_r2{k}')
    if nc==4:
        e(f's_cmp_lt_u32 s42, s48'); e(f's_cbranch_scc0 {t}_r23')
        a1reads(3)
        e('s_waitcnt lgkmcnt(0)')
        mf1(3,False)
        for x in trreads(3): e(x)
        e('s_waitcnt lgkmcnt(0)')
        lab(f'{t}_r23')
    e('s_cmp_eq_u32 s42, 0')
    e(f's_cbranch_scc1 {t}_rlast')
    dma_issue(nc, True)
    lab(f'{t}_rnodma')
    if TR: e('s_add_u32 s75, s42, 16'); tr('s75')
    e('s_nop 7')
    sigmoid(nc)
    mf2pair()
    e(f's_cmp_lt_u32 s42, s47'); e(f's_cbranch_scc0 {t}_r32')
    mf2single(2)
    lab(f'{t}_r32')
    if nc==4:
        e(f's_cmp_lt_u32 s42, s48'); e(f's_cbranch_scc0 {t}_r33')
        mf2single(3)
        lab(f'{t}_r33')
    e('s_cmp_lg_u32 s42, 0')
    e(f's_cbranch_scc1 {t}_loop')
    e('s_branch L_loop_done')
    lab(f'{t}_rlast')
    e('s_cmp_lg_u32 s67, 0'); e(f's_cbranch_scc1 {t}_rnodma')
    wv_reads()
    e(f's_branch {t}_rnodma')

def list_init(t):
    for i in range(4): e(f'v_mov_b32 v{t+i}, -1')
    e(f'v_lshlrev_b32 v{t+4}, 4, v0')
    e(f'v_add_u32 v{t+4}, {LIST}, v{t+4}')
    e('v_cmp_gt_u32 vcc, 784, v0')
    e('s_mov_b64 exec, vcc')
    e(f'ds_write_b128 v{t+4}, v[{t}:{t+3}]')
    e('s_mov_b64 exec, -1')
    _u[0]+=1; u=_u[0]
    e('s_cmp_lg_u32 s36, 13'); e(f's_cbranch_scc1 I{u}')
    e(f'v_lshlrev_b32 v{t+5}, 2, {L}')
    e(f'v_lshlrev_b32 v{t+6}, 8, {L}'); e(f'v_add_u32 v{t+6}, {LIST}, v{t+6}')
    e(f'v_mov_b32 v{t+4}, s40')
    e(f'v_cmp_le_u32 vcc, 56, {L}')
    e('s_nop 1')
    e(f'v_cndmask_b32 v{t+6}, v{t+6}, v{t+4}, vcc')
    e(f'ds_write_b32 v{t+5}, v{t+6} offset:{CNT}')
    lab(f'I{u}')
def stg_zero(t):
    for i in range(4): e(f'v_mov_b32 v{t+i}, 0')
    e(f'v_lshl_add_u32 v{t+4}, {L}, 4, s37')
    for i in range(6): e(f'ds_write_b128 v{t+4}, v[{t}:{t+3}] offset:{1024*i}')
    _u[0]+=1; u=_u[0]
    e('s_cmp_lg_u32 s36, 0'); e(f's_cbranch_scc1 Z{u}')
    for i in (6,7): e(f'ds_write_b128 v{t+4}, v[{t}:{t+3}] offset:{1024*i}')
    lab(f'Z{u}')

def insert_entries(groups, tr_, two):
    n=sum(len(g[1]) for g in groups)
    i=0
    for m,regs in groups:
        e(f's_mov_b64 exec, {m}')
        for x in regs:
            e(f'v_lshrrev_b32 v{tr_+i}, 22, v{x}')
            e(f'ds_add_rtn_u32 v{tr_+i}, v{tr_+i}, v{two} offset:{CNT}')
            i+=1
    i=0
    for m,regs in groups:
        e(f's_mov_b64 exec, {m}')
        for x in regs:
            e(f's_waitcnt lgkmcnt({n-1})')
            e(f'ds_write_b16 v{tr_+i}, v{x}')
            i+=1
    e('s_mov_b64 exec, -1')

def scan_quads(off, vmask):
    e(f's_mov_b64 exec, {vmask}')
    e(f'buffer_load_dwordx4 v[{DQ}:{DQ+3}], v{off}, s[20:23], 0 offen')
    e(f'buffer_load_dwordx4 v[{SQ}:{SQ+3}], v{off}, s[24:27], 0 offen')
    e(f'v_mov_b32 v{RK}, 2')
    e('s_mov_b32 s3, 0x050c0100')
    e('s_waitcnt vmcnt(0)')
    ms=['s[42:43]','s[44:45]','s[46:47]','s[64:65]']
    for i in range(4):
        e(f'v_and_b32 v{AD+i}, 0xff, v{DQ+i}')
        e(f'v_cmp_eq_u32 {ms[i]}, s2, v{AD+i}')
        e(f'v_perm_b32 v{SQ+i}, v{DQ+i}, v{SQ+i}, s3')
    insert_entries([(ms[i],[SQ+i]) for i in range(4)], AD, RK)

def pf_loads():
    if not PF: return
    e(f's_lshr_b32 s3, s{SP}, 3'); e('s_mul_i32 s3, s3, 50000')
    e('s_add_u32 s96, s4, s3'); e('s_addc_u32 s97, s5, 0'); e('s_mov_b32 s98, 50000'); e('s_mov_b32 s99, 0x20000')
    e(f'v_lshlrev_b32 v{TMP+6}, 6, v0')
    e(f'buffer_load_dword v{TMP+5}, v{TMP+6}, s[96:99], 0 offen')

def expand_bytes(p):
    e(f's_lshr_b64 s[64:65], s[{p}:{p+1}], 1'); e(f's_or_b64 s[{p}:{p+1}], s[{p}:{p+1}], s[64:65]')
    e(f's_lshr_b64 s[64:65], s[{p}:{p+1}], 2'); e(f's_or_b64 s[{p}:{p+1}], s[{p}:{p+1}], s[64:65]')
    e(f's_lshr_b64 s[64:65], s[{p}:{p+1}], 4'); e(f's_or_b64 s[{p}:{p+1}], s[{p}:{p+1}], s[64:65]')
    e(f's_and_b32 s{p}, s{p}, 0x01010101'); e(f's_and_b32 s{p+1}, s{p+1}, 0x01010101')
    e(f's_mul_i32 s{p}, s{p}, 0xff'); e(f's_mul_i32 s{p+1}, s{p+1}, 0xff')

def head_issue():
    if DELAY: e(f's_sleep {DELAY}')
    e(f'buffer_load_dwordx4 v[{GA[0]}:{GA[0]+3}], v{HOF}, s[68:71], 0 offen sc1')
    if SPEC: e(f'buffer_load_dwordx4 v[{GA[1]}:{GA[1]+3}], v{SOF}, s[68:71], 0 offen sc1')

def validate(G, p):
    for i in range(4): e(f'v_xor_b32 v{G+i}, s{50+i}, v{G+i}')
    e(f'v_or3_b32 v{TT}, v{G+1}, v{G+2}, v{G+3}')
    e(f'v_and_b32 v{TT}, s46, v{TT}')
    e(f'v_and_or_b32 v{TT}, v{G}, s47, v{TT}')
    e(f'v_cmp_ne_u32 {p}, 0, v{TT}')
    e(f's_cmp_lg_u64 {p}, 0')

def kernel():
    o.append('.p2align 8'); o.append(f'.type {K},@function'); lab(K)
    e('s_cmp_ge_u32 s2, 256'); e('s_cbranch_scc1 L_end')
    stamp(0)
    if TR: e('v_mov_b32 v27, 0'); tr(8)
    e('s_load_dwordx8 s[16:23], s[0:1], 0')
    e('s_load_dwordx8 s[8:15], s[0:1], 32')
    t0,t1,t2,t3=A1+8,A1+9,A1+10,A1+11
    if CPF:
        e('s_getpc_b64 s[92:93]')
        e(f'v_lshlrev_b32 v{t0}, {CSTR}, v0')
        e(f'v_mov_b32 v{t0+1}, s93'); e(f'v_add_co_u32 v{t0}, vcc, s92, v{t0}'); e('s_nop 1'); e(f'v_addc_co_u32 v{t0+1}, vcc, 0, v{t0+1}, vcc')
        e(f'v_cmp_gt_u32 vcc, {CPF}, v0')
        e('s_and_saveexec_b64 s[92:93], vcc')
        e('s_cbranch_execz L_nocpf')
        e(f'global_load_dword v{TMP+3}, v[{t0}:{t0+1}], off offset:128')
        lab('L_nocpf')
        e('s_mov_b64 exec, -1')
    e(f'v_lshrrev_b32 v{t0}, 6, v0')
    e(f'v_lshlrev_b32 v{T16}, 4, v0')
    e(f'v_readfirstlane_b32 s36, v{t0}')
    e('s_and_b32 s3, s2, 7'); e('s_add_u32 s3, s3, 56'); e('s_lshl_b32 s3, s3, 24')
    for i in range(4): e(f'v_mov_b32 v{A1+i}, s3')
    e(f'v_lshrrev_b32 v{PCA}, 2, v0'); e(f'v_lshl_add_u32 v{PIA}, v{PCA}, 7, v{T16}')
    e(f'v_and_b32 {L}, 63, v0')
    e(f's_mul_i32 s42, s2, {CHB}')
    e(f'v_add_u32 v{t1}, s42, v{T16}')
    e(f'v_mov_b32 v{t2}, 0')
    e(f's_mov_b32 s26, {EB}'); e('s_mov_b32 s27, 0x20000')
    e(f's_mov_b32 s70, 16'); e('s_mov_b32 s71, 0x20000'); e('s_mov_b32 s98, 256'); e('s_mov_b32 s99, 0x20000'); e('s_mov_b32 s58, 0'); e('s_mov_b32 s59, 0')
    e(f'v_cmp_gt_u32 vcc, {NQ}, v0'); e('s_mov_b64 s[62:63], vcc')
    e(f'v_cmp_gt_u32 vcc, {EB}, v{t1}'); e('s_and_b64 s[62:63], s[62:63], vcc')
    e(f'v_lshlrev_b32 v{A1+4}, 2, v0')
    e(f'v_cndmask_b32 v{t1}, 4.0, v{t1}, s[62:63]')
    e(f's_mov_b32 s{SP}, s2')
    if not NOB: e('s_and_b32 s3, s2, 7'); e('s_lshl_b32 s3, s3, 5'); e('s_lshr_b32 s2, s2, 3'); e('s_or_b32 s2, s2, s3')
    e('s_waitcnt lgkmcnt(0)')
    stamp(1)
    e('s_mov_b64 s[24:25], s[18:19]'); e('s_mov_b64 s[96:97], s[12:13]'); e('s_mov_b64 s[12:13], s[10:11]'); e('s_mov_b64 s[10:11], s[8:9]'); e('s_mov_b64 s[8:9], s[22:23]')
    e(f's_mov_b32 s22, {EB}'); e('s_mov_b32 s23, 0x20000')
    e(f's_add_u32 s68, s14, {EPO}'); e('s_addc_u32 s69, s15, 0')
    if not EPL:
        e(f'buffer_load_dwordx4 v[{EPR}:{EPR+3}], v{t2}, s[68:71], 0 offen sc1')
    if TW:
        e('s_cmp_eq_u32 s36, 13'); e('s_cbranch_scc1 L_tw')
    e(f'buffer_load_dwordx4 v[{DQ}:{DQ+3}], v{t1}, s[20:23], 0 offen')
    e(f'buffer_load_dwordx4 v[{SQ}:{SQ+3}], v{t1}, s[24:27], 0 offen')
    lab('L_twb')
    if EPL:
        e(f'buffer_load_dwordx4 v[{EPR}:{EPR+3}], v{t2}, s[68:71], 0 offen sc1')
    for i in range(3): e(f'ds_write_b128 v{PIA}, v[{A1}:{A1+3}] offset:{IMG+64*i}')
    e('s_cmp_lt_u32 s36, 4'); e('s_cbranch_scc0 L_nopc')
    e(f'ds_write_b32 v{A1+4}, v{t2} offset:{PC}')
    lab('L_nopc')
    e('s_waitcnt lgkmcnt(0)')
    e('s_barrier')
    e(f'v_lshlrev_b32 v{L16}, 4, {L}')
    e(f'v_and_b32 v{t0}, 16, {L}'); e(f'v_xor_b32 v{t0}, v{t0}, v{L16}')
    e('s_and_b32 s39, s36, 7'); e('s_lshl_b32 s39, s39, 10')
    e('s_cmp_lt_u32 s36, 8')
    e('s_cselect_b32 s28, s8, s10'); e('s_cselect_b32 s29, s9, s11'); e('s_mov_b32 s30, 8192'); e('s_mov_b32 s31, 0x20000')
    e(f's_cselect_b32 s3, {WQ-WV}, 0')
    e(f's_add_u32 s3, s3, {WV}')
    e('s_add_u32 m0, s3, s39')
    e(f's_mov_b32 s18, {XB}'); e('s_mov_b32 s19, 0x20000')
    e(f'buffer_load_dwordx4 v{t0}, s[28:31], s39 offen lds')
    e(f'v_bfe_u32 v{t0}, v0, 3, 6')
    e(f'v_lshlrev_b32 v{t0}, 15, v{t0}')
    e(f'v_lshrrev_b32 v{t3}, 3, {L}'); e(f'v_xor_b32 v{t3}, v{t3}, {L}'); e(f'v_and_b32 v{t3}, 7, v{t3}')
    e(f'v_lshl_add_u32 v{t0}, v{t3}, 4, v{t0}')
    e('s_lshl_b32 s38, s2, 7')
    e(f's_add_u32 m0, s39, {XR}')
    e(f'v_mov_b32 v{FOUR}, 4')
    e(f'buffer_load_dwordx4 v{t0}, s[16:19], s38 offen lds')
    e('s_mov_b32 s48, 0x050c0100'); e('s_mov_b32 s40, 0x30000')
    e('s_add_u32 s3, s36, 15'); e('s_and_b32 s3, s3, 15'); e('s_mul_i32 s37, s3, 6144'); e(f's_add_u32 s37, s37, {STG}')
    if not LIW: list_init(A1)
    e(f's_mul_i32 s3, s{SP}, {HSTR}'); e('s_add_u32 s28, s14, s3'); e('s_addc_u32 s29, s15, 0'); e(f's_mov_b32 s30, {2*SECD+16384}'); e('s_mov_b32 s31, 0x20000')
    e(f's_mov_b32 s54, {SECD}'); e(f's_mov_b32 s55, {2*SECD}')
    e('s_lshl_b32 s41, s36, 8'); e(f's_add_u32 s41, s41, {LIST-32}')
    e('s_mov_b32 s6, 0x00010001'); e('s_mov_b32 s7, 0x00010001')
    e(f'v_lshrrev_b32 v{t1}, 4, {L}')
    e(f'v_lshrrev_b32 v{t0}, 3, {L}'); e(f'v_and_b32 v{t0}, 6, v{t0}'); e(f'v_and_b32 v{t2}, 7, {L}')
    e(f'v_xor_b32 v{t0}, v{t0}, v{t2}'); e(f'v_lshlrev_b32 {r("cA")}, 4, v{t0}'); e(f'v_xor_b32 {r("cB")}, 16, {r("cA")}')
    e(f'v_and_b32 v{t0}, 6, {L}'); e(f'v_bfe_u32 v{t2}, {L}, 3, 1'); e(f'v_or_b32 v{t0}, v{t0}, v{t2}')
    e(f'v_lshlrev_b32 v{t2}, 1, v{t1}'); e(f'v_xor_b32 v{t0}, v{t0}, v{t2}'); e(f'v_lshlrev_b32 v{t0}, 4, v{t0}')
    e(f'v_and_b32 v{t2}, 15, {L}'); e(f'v_lshl_add_u32 v{t0}, v{t2}, 7, v{t0}')
    e(f'v_add_u32 {r("a10")}, s37, v{t0}'); e(f'v_xor_b32 {r("a11")}, 16, {r("a10")}')
    for k in range(4):
        e(f'v_cmp_eq_u32 s[64:65], {k}, v{t2}'); e('s_nop 1'); e(f'v_cndmask_b32 {r("m",k)}, 0, -1, s[64:65]')
    e(f'v_lshlrev_b32 v{t0}, 4, v{t2}'); e(f'v_add_u32 v{t0}, s36, v{t0}'); e(f's_movk_i32 s3, {QS}'); e(f'v_mul_u32_u24 v{t0}, s3, v{t0}')
    e(f'v_lshl_add_u32 {r("qa")}, v{t1}, 5, v{t0}')
    e('s_lshr_b32 s3, s36, 2'); e('s_lshl_b32 s3, s3, 4'); e(f'v_add_u32 v{t2}, s3, v{t2}')
    e(f'v_and_b32 v{t0}, 7, {L}'); e(f'v_xor_b32 v{t0}, v{t0}, v{t1}'); e(f'v_lshlrev_b32 v{t0}, 4, v{t0}')
    e(f'v_lshl_add_u32 v{QAX}, v{t2}, 7, v{t0}'); e(f'v_xor_b32 v{QAX2}, 64, v{QAX}')
    e(f's_movk_i32 s3, {QS}'); e(f'v_mul_u32_u24 v{t2}, s3, v{t2}')
    e(f'v_lshl_add_u32 v{t2}, v{t1}, 3, v{t2}')
    e('s_and_b32 s3, s36, 3'); e('s_lshl_b32 s3, s3, 5'); e(f'v_add_u32 v{QAT}, s3, v{t2}')
    e(f'v_lshlrev_b32 v{t0}, 10, v{t1}'); e(f'v_bfe_u32 v{t2}, {L}, 2, 2'); e(f'v_lshl_add_u32 v{t0}, v{t2}, 7, v{t0}')
    e(f'v_and_b32 v{t2}, 3, {L}'); e(f'v_lshl_add_u32 v{t0}, v{t2}, 3, v{t0}'); e(f'v_add_u32 v{t0}, s3, v{t0}')
    e(f'v_lshlrev_b32 v{J4}, 4, v{t2}')
    e(f'v_lshlrev_b32 v{t2}, 1, {L}'); e(f'v_and_b32 v{t2}, 16, v{t2}'); e(f'v_xor_b32 v{QAW}, v{t0}, v{t2}')
    e(f'v_lshrrev_b32 v{t0}, 2, {L}')
    e(f'v_and_b32 v{t2}, 6, v{t0}'); e(f'v_lshrrev_b32 v{t3}, 3, v{t0}'); e(f'v_or_b32 v{t2}, v{t2}, v{t3}')
    e(f'v_bfe_u32 v{t3}, {L}, 1, 1'); e(f'v_xor_b32 v{t2}, v{t2}, v{t3}'); e(f'v_lshlrev_b32 v{t2}, 4, v{t2}')
    e(f'v_lshl_add_u32 v{t2}, v{t0}, 7, v{t2}')
    e(f'v_and_b32 v{t3}, 1, {L}'); e(f'v_lshl_add_u32 v{t2}, v{t3}, 3, v{t2}')
    e(f'v_add_u32 {r("a2",0)}, s37, v{t2}')
    for f in (1,2,3): e(f'v_xor_b32 {r("a2",f)}, {32*f}, {r("a2",0)}')
    e(f'v_mov_b32 {r("cs")}, {f2u(-0.125*1.4426950408889634):#x}')
    e(f's_movk_i32 s3, {HSTR}'); e(f'v_mad_u32_u24 v{HOF}, v{PCA}, s3, v{J4}'); e('s_lshl_b32 s3, s2, 6'); e(f'v_add_u32 v{HOF}, s3, v{HOF}')
    e(f'v_add_u32 v{SOF}, {SECD}, v{HOF}')
    e(f'v_lshlrev_b32 v{PCA}, 2, v{PCA}')
    e(f'v_add_u32 v{J4}, 64, v{J4}')
    srd(68,14,15,2*SECD+256*HSTR)
    e(f'v_mov_b32 v{TWO}, 2')
    e('s_mov_b64 s[60:61], -1'); e('s_mov_b64 s[56:57], 0')
    e(f's_movk_i32 s66, {TIMEOUT}'); e('s_mov_b32 s67, 0')
    e(f's_mov_b32 s46, {M_:#x}'); e(f's_mov_b32 s47, {M0_:#x}')
    e('s_movk_i32 s44, 188'); e('s_movk_i32 s45, 252')
    def tags(w):
        e(f's_waitcnt vmcnt({w})')
        for i in range(4): e(f'v_readfirstlane_b32 s{50+i}, v{EPR+i}')
        e('s_bfe_u32 s42, s51, 0xa000e'); e('s_bfe_u32 s43, s52, 0xa000e'); e('s_bfe_u32 s3, s53, 0xa000e')
        e('s_lshl_b32 s43, s43, 10'); e('s_lshl_b32 s3, s3, 20'); e('s_or_b32 s42, s42, s43'); e('s_or_b32 s42, s42, s3')
        e('s_add_u32 s42, s42, 1')
        e(f's_and_b32 s50, s50, {M0_:#x}')
        for i,sh in ((1,0),(2,10),(3,20)):
            e(f's_and_b32 s{50+i}, s{50+i}, 0xc0000000')
            e(f's_bfe_u32 s43, s42, {0xa0000|sh:#x}'); e('s_lshl_b32 s43, s43, 14'); e(f's_or_b32 s{50+i}, s{50+i}, s43')
    if not EPL: tags(4)
    e('s_mov_b64 exec, s[62:63]')
    e(f's_waitcnt vmcnt({4 if EPL else 3})')
    stamp(2); tr(15)
    for i in range(4):
        e(f'v_lshlrev_b32_sdwa v{AD+i}, 2, v{DQ+i} dst_sel:DWORD dst_unused:UNUSED_PAD src0_sel:DWORD src1_sel:BYTE_0')
    for i in range(4):
        e(f'ds_add_rtn_u32 v{RK+i}, v{AD+i}, v{FOUR} offset:{PC}')
    e(f's_waitcnt vmcnt({3 if EPL else 2})')
    for i in range(4):
        e(f'v_perm_b32 v{SQ+i}, v{DQ+i}, v{SQ+i}, s48')
    for i in range(4):
        e(f's_waitcnt lgkmcnt(3)')
        e(f'v_min_u32 v{RK+i}, s44, v{RK+i}')
        e(f'v_mad_u32_u24 v{RK+i}, v{AD+i}, 48, v{RK+i}')
        e(f'ds_write_b32 v{RK+i}, v{SQ+i} offset:{IMG}')
    e('s_mov_b64 exec, -1')
    if EPL: tags(2)
    e('s_waitcnt lgkmcnt(0)')
    e('s_barrier')
    stamp(3); tr(43)
    C=AD
    e(f'ds_read_b32 v{C}, v{PCA} offset:{PC}')
    e(f'ds_read_b128 v[{DQ}:{DQ+3}], v{PIA} offset:{IMG}')
    e(f'ds_read_b128 v[{SQ}:{SQ+3}], v{PIA} offset:{IMG+64}')
    e('s_waitcnt lgkmcnt(2)')
    e(f'v_cmp_lt_u32 s[64:65], v{J4}, v{C}')
    e(f'v_cmp_lt_u32 vcc, 128, v{C}')
    e(f'v_min_u32 v{C+1}, s45, v{C}')
    e(f'v_lshl_or_b32 v{C+1}, v{C+1}, 16, s50')
    e('s_waitcnt lgkmcnt(1)')
    e(f'v_xor_b32 v{DQ}, v{C+1}, v{DQ}')
    for i in (1,2,3): e(f'v_xor_b32 v{DQ+i}, s{50+i}, v{DQ+i}')
    e(f'buffer_store_dwordx4 v[{DQ}:{DQ+3}], v{T16}, s[28:31], 0 offen sc1')
    e(f'v_cndmask_b32 v{C+2}, 4.0, v{T16}, s[64:65]')
    e('s_waitcnt lgkmcnt(0)')
    e(f'v_xor_b32 v{SQ}, v{C+1}, v{SQ}')
    for i in (1,2,3): e(f'v_xor_b32 v{SQ+i}, s{50+i}, v{SQ+i}')
    e(f'buffer_store_dwordx4 v[{SQ}:{SQ+3}], v{C+2}, s[28:31], s54 offen sc1')
    e('s_cbranch_vccnz L_third')
    lab('L_third_done')
    stamp(4); tr(12)
    srd(32,12,13,XB)
    if LIW: list_init(A1+16)
    tr(45)
    if TPOS==0: head_issue(); tr(46)
    for i in range(16): e(f'v_mov_b32 {r("O",i)}, 0')
    e('s_cmp_lg_u32 s59, 0'); e('s_cbranch_scc1 WB3')
    e(f's_waitcnt vmcnt({3 if TPOS==0 else 2})')
    lab('WB3')
    e(f's_waitcnt vmcnt({4 if TPOS==0 else 3})')
    tr(44)
    e('s_barrier')
    if SPIN and SPINAT==9: e('s_memrealtime s[100:101]')
    for ks in range(2):
        for jh in range(2):
            e(f'ds_read_b64_tr_b16 v[{WF+4*ks+2*jh}:{WF+4*ks+2*jh+1}], v{QAW} offset:{WQ+ks*4096+jh*512}')
    e(f'ds_read_b128 v[{XQ}:{XQ+3}], v{QAX} offset:{XR}'); e(f'ds_read_b128 v[{XQ+4}:{XQ+7}], v{QAX2} offset:{XR}')
    if TPOS==1: head_issue(); tr(46)
    e('s_waitcnt lgkmcnt(0)')
    e(f'v_mfma_f32_16x16x32_bf16 v[{QD}:{QD+3}], v[{WF}:{WF+3}], v[{XQ}:{XQ+3}], 0')
    e(f'v_mfma_f32_16x16x32_bf16 v[{QD}:{QD+3}], v[{WF+4}:{WF+7}], v[{XQ+4}:{XQ+7}], v[{QD}:{QD+3}]')
    for i in range(32): e(f'v_mov_b32 {r("Bq",i)}, 0')
    e(f'v_cvt_pk_bf16_f32 v{A1}, v{QD}, v{QD+1}'); e(f'v_cvt_pk_bf16_f32 v{A1+1}, v{QD+2}, v{QD+3}')
    e(f'ds_write_b64 v{QAT}, v[{A1}:{A1+1}] offset:{QT}')
    if TPOS==2: head_issue(); tr(46)
    e('s_waitcnt lgkmcnt(0)')
    tr(42)
    e('s_barrier')
    if TPOS==3: head_issue(); tr(46)
    for k in range(4):
        e(f's_lshl_b64 exec, s[6:7], {k}')
        e(f'ds_read_b128 {r("Bq",8*k,4)}, {r("qa")} offset:{QT}')
        e(f'ds_read_b128 {r("Bq",8*k+4,4)}, {r("qa")} offset:{QT+16}')
    e('s_mov_b64 exec, -1')
    e(f's_waitcnt vmcnt({1 if SPEC else 0})')
    tr(6)
    lab('L_hv')
    validate(GA[0], 's[60:61]')
    e('s_cbranch_scc1 L_hretry')
    lab('L_hok')
    e('s_mov_b64 exec, -1')
    stamp(5)
    tr(7)
    if TR: e('v_writelane_b32 v27, s66, 40')
    e(f'v_bfe_u32 v{CNV}, v{GA[0]}, 16, 8')
    e(f'v_cmp_lt_u32 vcc, s44, v{CNV}')
    e(f'v_cmp_lt_u32 s[62:63], v{J4}, v{CNV}')
    e('s_or_b64 s[56:57], s[56:57], vcc')
    e('s_andn2_b64 s[62:63], s[62:63], s[56:57]')
    e('s_mov_b64 s[74:75], s[62:63]')
    if not SPEC:
        e(f'v_cndmask_b32 v{PO2}, 4.0, v{SOF}, s[62:63]')
        e(f'buffer_load_dwordx4 v[{GA[1]}:{GA[1]+3}], v{PO2}, s[68:71], 0 offen sc1')
    e(f'v_and_b32 v{GA[0]}, 0x3f003fff, v{GA[0]}')
    if MSK:
        e(f'v_add_u32 v{PO2+1}, 64, v{CNV}'); e(f'v_sub_u32 v{PO2+1}, v{PO2+1}, v{J4}')
        ms=['s[42:43]','s[64:65]','s[72:73]','s[76:77]']
        e('s_andn2_b64 exec, -1, s[56:57]')
        for i in range(4): e(f'v_cmp_lt_i32 {ms[i]}, {4*i}, v{PO2+1}')
        for i in range(4):
            e(f's_mov_b64 exec, {ms[i]}')
            e(f'v_lshrrev_b32 v{A1+i}, 22, v{GA[0]+i}')
            e(f'ds_add_rtn_u32 v{A1+i}, v{A1+i}, v{TWO} offset:{CNT}')
        for i in range(4):
            e(f's_mov_b64 exec, {ms[i]}')
            e(f's_waitcnt lgkmcnt(3)')
            e(f'ds_write_b16 v{A1+i}, v{GA[0]+i}')
    else:
        e('s_andn2_b64 exec, -1, s[56:57]')
        for i in range(4):
            e(f'v_lshrrev_b32 v{A1+i}, 22, v{GA[0]+i}')
            e(f'ds_add_rtn_u32 v{A1+i}, v{A1+i}, v{TWO} offset:{CNT}')
        for i in range(4):
            e(f's_waitcnt lgkmcnt(3)')
            e(f'ds_write_b16 v{A1+i}, v{GA[0]+i}')
    e('s_mov_b32 s13, 0')
    if EARLY:
        e('s_mov_b64 exec, -1')
        e(f'v_lshrrev_b32 {r("Z")}, 3, {L}'); e(f'v_lshl_add_u32 {r("Z")}, {r("Z")}, 1, s41')
        e(f'v_add_u32 {r("ia")}, 32, {r("Z")}')
        e('s_cmp_lt_u32 s2, 212'); e('s_cselect_b32 s12, 0, 1'); e('s_or_b32 s12, s12, s36')
        e('s_mov_b32 s3, 0xffff')
        e('s_waitcnt lgkmcnt(0)')
        e('s_barrier')
        stamp(6); tr(10)
        e('s_setprio 3')
        idx_reads(4)
        e('s_cmp_eq_u32 s12, 0'); e('s_cbranch_scc1 L_e4')
        for nc in (3,4):
            if nc==4: lab('L_e4')
            e(f's_waitcnt lgkmcnt({2 if nc==3 else 0})')
            e(f'v_max3_u32 {r("T")}, {r("idx",0)}, {r("idx",1)}, {r("idx",2)}')
            e(f'v_max3_u32 {r("T")}, {r("T")}, {r("idx",3)}, {r("idx",4)}')
            if nc==3: e(f'v_max_u32 {r("T")}, {r("T")}, {r("idx",5)}')
            else:
                e(f'v_max3_u32 {r("T")}, {r("T")}, {r("idx",5)}, {r("idx",6)}'); e(f'v_max_u32 {r("T")}, {r("T")}, {r("idx",7)}')
            e(f'v_cmp_eq_u32 vcc, s3, {r("T")}')
            e('s_cbranch_vccnz L_sec')
            dma_issue(nc, False)
            tr(11)
            e('s_mov_b32 s13, 1')
            e('s_mov_b64 exec, s[62:63]')
            e('s_cbranch_execz L_secdone')
            e(f's_waitcnt vmcnt({2*nc})')
            e('s_branch L_sv')
    lab('L_sec')
    e('s_mov_b64 exec, s[62:63]')
    e('s_cbranch_execz L_secdone')
    e('s_waitcnt vmcnt(0)')
    lab('L_sv')
    validate(GA[1], 's[62:63]')
    e('s_cbranch_scc1 L_sretry')
    tr(9)
    e('s_mov_b64 exec, s[74:75]')
    e(f'v_and_b32 v{GA[1]}, 0x3f003fff, v{GA[1]}')
    for i in range(4):
        e(f'v_lshrrev_b32 v{A1+4+i}, 22, v{GA[1]+i}')
        e(f'ds_add_rtn_u32 v{A1+4+i}, v{A1+4+i}, v{TWO} offset:{CNT}')
    for i in range(4):
        e(f's_waitcnt lgkmcnt(3)')
        e(f'ds_write_b16 v{A1+4+i}, v{GA[1]+i}')
    e('s_mov_b64 exec, -1')
    e(f'v_add_u32 v{J4}, 64, v{J4}'); e(f'v_add_u32 v{SOF}, {SECD}, v{SOF}')
    e(f'v_cmp_lt_u32 s[62:63], v{J4}, v{CNV}')
    e('s_and_b64 s[62:63], s[62:63], s[74:75]')
    e('s_cbranch_scc1 L_more')
    lab('L_secdone')
    e('s_mov_b64 exec, -1')
    e('s_cmp_lg_u64 s[56:57], 0')
    e('s_cbranch_scc1 L_rescan')
    lab('L_rescan_done')
    e(f'v_lshrrev_b32 {r("Z")}, 3, {L}'); e(f'v_lshl_add_u32 {r("Z")}, {r("Z")}, 1, s41')
    e('s_waitcnt lgkmcnt(0)')
    e(f'v_lshlrev_b32 v{A1}, 2, {L}')
    e(f'v_lshlrev_b32 v{A1+1}, 8, {L}')
    e(f'v_subrev_u32 v{A1+1}, {15-LIST & 0xffffffff}, v{A1+1}')
    e(f'v_add_u32 {r("ia")}, {5*32}, {r("Z")}')
    for i in range(16): e(f'v_mov_b32 {r("XT01",i)}, 0')
    e('s_movk_i32 s3, 271')
    e('s_add_u32 s46, s36, 16'); e('s_add_u32 s47, s36, 32'); e('s_add_u32 s48, s36, 48')
    e('s_min_u32 s48, s48, 49')
    e('s_barrier')
    if not EARLY: stamp(6); tr(10)
    else: tr(48)
    lab('L_counts')
    e(f'ds_read_b32 {r("T")}, v{A1} offset:{CNT}')
    idx_reads(4)
    e('s_waitcnt lgkmcnt(8)')
    e(f'v_sub_u32 {r("T")}, {r("T")}, v{A1+1}')
    e(f'v_cmp_lt_u32 vcc, s3, {r("T")}')
    e(f'v_lshrrev_b32 {r("T")}, 4, {r("T")}')
    e('s_and_b32 vcc_hi, vcc_hi, 0xffffff')
    e(f'v_readlane_b32 s59, {r("T")}, 53')
    e('s_or_b32 s58, s58, s59')
    e('s_cmp_lg_u64 vcc, 0')
    e('s_cbranch_scc1 L_slow')
    e(f'v_readlane_b32 s8, {r("T")}, s36'); e(f'v_readlane_b32 s9, {r("T")}, s46'); e(f'v_readlane_b32 s10, {r("T")}, s47'); e(f'v_readlane_b32 s11, {r("T")}, s48')
    for k in range(4): e(f's_add_u32 s{45+k}, s{8+k}, 1'); e(f's_lshr_b32 s{45+k}, s{45+k}, 1')
    e('s_max_u32 s42, s45, s46'); e('s_max_u32 s42, s42, s47'); e('s_max_u32 s42, s42, s48')
    e('s_cmp_lg_u32 s42, 0')
    e('s_cbranch_scc0 L_r0')
    e('s_lshl_b32 s3, s42, 5')
    e('s_cmp_lg_u32 s48, 0'); e('s_cbranch_scc1 L_m4')
    main_loop(3)
    lab('L_m4')
    main_loop(4)
    lab('L_loop_done')
    e('s_cmp_lg_u32 s67, 0'); e('s_cbranch_scc1 L_slow_next')
    lab('L_epi')
    stamp(7); tr(13)
    e('s_cmp_lg_u32 s36, 0'); e('s_cbranch_scc1 L_nochk')
    e(f'v_mov_b32 {r("Z")}, 0')
    e(f'buffer_load_dword {r("T")}, {r("Z")}, s[96:99], 0 offen sc1')
    lab('L_nochk')
    WFE=V['Bq']
    e(f'v_and_b32 v{TMP+2}, 15, {L}'); e(f'v_lshlrev_b32 v{TMP+2}, 19, v{TMP+2}')
    e(f'v_lshrrev_b32 v{TMP+3}, 4, {L}'); e(f'v_lshl_add_u32 v{TMP+2}, v{TMP+3}, 5, v{TMP+2}')
    e('s_lshl_b32 s3, s36, 8'); e('s_add_u32 s3, s3, s2'); e('s_lshl_b32 s3, s3, 7')
    e(f'v_add_u32 v{TMP+2}, s3, v{TMP+2}')
    for f in range(4):
        e(f'v_cvt_pk_bf16_f32 v{A1+2*f}, {r("O",4*f)}, {r("O",4*f+1)}'); e(f'v_cvt_pk_bf16_f32 v{A1+2*f+1}, {r("O",4*f+2)}, {r("O",4*f+3)}')
    e('s_mov_b32 s64, 0x000f000f'); e('s_mov_b32 s65, 0x000f000f')
    for Mt in range(4):
        e(f's_waitcnt lgkmcnt({12-4*Mt})')
        e(f'v_mfma_f32_16x16x32_bf16 v[{X0+4*Mt}:{X0+4*Mt+3}], v[{WFE+8*Mt}:{WFE+8*Mt+3}], v[{A1}:{A1+3}], 0')
        e(f'v_mfma_f32_16x16x32_bf16 v[{X0+4*Mt}:{X0+4*Mt+3}], v[{WFE+8*Mt+4}:{WFE+8*Mt+7}], v[{A1+4}:{A1+7}], v[{X0+4*Mt}:{X0+4*Mt+3}]')
    e('s_mov_b64 exec, s[64:65]')
    e('s_nop 2')
    for Mt in range(4):
        if Mt==3: e('s_nop 3')
        e(f'v_cvt_pk_bf16_f32 v{A1+8+2*Mt}, v{X0+4*Mt}, v{X0+4*Mt+1}'); e(f'v_cvt_pk_bf16_f32 v{A1+9+2*Mt}, v{X0+4*Mt+2}, v{X0+4*Mt+3}')
        if Mt==1: e(f'buffer_store_dwordx4 v[{A1+8}:{A1+11}], v{TMP+2}, s[32:35], 0 offen{OSC}')
    e(f'buffer_store_dwordx4 v[{A1+12}:{A1+15}], v{TMP+2}, s[32:35], 0 offen offset:16{OSC}')
    e('s_mov_b64 exec, -1')
    e('s_or_b32 s3, s58, s36'); e('s_cbranch_scc1 L_noep')
    e(f's_cmp_eq_u32 s{SP}, 0'); e('s_cbranch_scc1 L_pub')
    e('s_waitcnt vmcnt(2)')
    e(f'v_readfirstlane_b32 s3, {r("T")}')
    e('s_cmp_eq_u32 s3, 0'); e('s_cbranch_scc1 L_noep')
    lab('L_pub')
    for i in range(4): e(f'v_mov_b32 v{X0+i}, s{50+i}')
    e(f'v_mov_b32 v{X0+4}, 0')
    e(f's_add_u32 s68, s14, {EPO}'); e('s_addc_u32 s69, s15, 0'); e('s_mov_b32 s70, 16'); e('s_mov_b32 s71, 0x20000')
    e('s_mov_b64 exec, 1')
    e(f'buffer_store_dwordx4 v[{X0}:{X0+3}], v{X0+4}, s[68:71], 0 offen sc1')
    e('s_mov_b64 exec, -1')
    lab('L_noep')
    stamp(8); tr(14); tr_store()
    if STAMP:
        e('s_waitcnt vmcnt(0)'); stamp(9); stamp_store(14)
    if SPIN:
        lab('L_spin')
        e('s_sleep 4'); e('s_memtime s[94:95]' if SPINCYC else 's_memrealtime s[94:95]'); e('s_waitcnt lgkmcnt(0)'); e('s_sub_u32 s94, s94, s100'); e(f's_cmp_lt_u32 s94, {SPIN}'); e('s_cbranch_scc1 L_spin')
    lab('L_end')
    e('s_endpgm')
    lab('L_r0')
    e('s_cmp_lg_u32 s67, 0'); e('s_cbranch_scc1 L_slow_next')
    lab('L_epi_ld')
    wv_reads()
    e('s_branch L_epi')
    if TW:
        lab('L_tw')
        e(f'v_mov_b32 v{DQ}, s8'); e(f'v_mov_b32 v{DQ+1}, s9')
        e(f'v_writelane_b32 v{DQ}, s10, 1'); e(f'v_writelane_b32 v{DQ+1}, s11, 1')
        e(f'v_writelane_b32 v{DQ}, s16, 2'); e(f'v_writelane_b32 v{DQ+1}, s17, 2')
        e(f'v_writelane_b32 v{DQ}, s12, 3'); e(f'v_writelane_b32 v{DQ+1}, s13, 3')
        e(f'global_load_dword v{SQ}, v[{DQ}:{DQ+1}], off')
        srd(92,14,15,2*SECD)
        e(f'v_and_b32 v{DQ+2}, 7, v0'); e(f's_mov_b32 s3, {64*HSTR}'); e(f'v_mul_u32_u24 v{DQ+2}, s3, v{DQ+2}'); e(f'v_add_u32 v{DQ+2}, {20*HSTR+16384}, v{DQ+2}')
        e(f'buffer_load_dword v{SQ+1}, v{DQ+2}, s[92:95], 0 offen')
        e('s_branch L_twb')
    lab('L_third')
    e(f'ds_read_b128 v[{A1}:{A1+3}], v{PIA} offset:{IMG+128}')
    e(f'v_add_u32 v{AD+3}, 64, v{J4}')
    e(f'v_cmp_lt_u32 s[64:65], v{AD+3}, v{AD}')
    e('s_waitcnt lgkmcnt(0)')
    e(f'v_xor_b32 v{A1}, v{AD+1}, v{A1}')
    e(f'v_cndmask_b32 v{AD+2}, 4.0, v{T16}, s[64:65]')
    for i in (1,2,3): e(f'v_xor_b32 v{A1+i}, s{50+i}, v{A1+i}')
    e(f'buffer_store_dwordx4 v[{A1}:{A1+3}], v{AD+2}, s[28:31], s55 offen sc1')
    e('s_mov_b32 s59, 1')
    e('s_branch L_third_done')
    lab('L_more')
    e('s_mov_b64 s[74:75], s[62:63]')
    e('s_waitcnt lgkmcnt(0)')
    e('s_mov_b64 exec, s[62:63]')
    e(f'buffer_load_dwordx4 v[{GA[1]}:{GA[1]+3}], v{SOF}, s[68:71], 0 offen sc1')
    e('s_branch L_sec')
    lab('L_hretry')
    e('s_sub_u32 s66, s66, 1')
    e('s_cbranch_scc1 L_hto')
    if SLEEP: e(f's_sleep {SLEEP}')
    e('s_mov_b64 exec, s[60:61]')
    e(f'buffer_load_dwordx4 v[{GA[0]}:{GA[0]+3}], v{HOF}, s[68:71], 0 offen sc1')
    e('s_waitcnt vmcnt(0)')
    e('s_branch L_hv')
    lab('L_hto')
    e('s_mov_b32 s66, 0')
    e('s_lshr_b64 s[64:65], s[60:61], 1'); e('s_or_b64 s[60:61], s[60:61], s[64:65]')
    e('s_lshr_b64 s[64:65], s[60:61], 2'); e('s_or_b64 s[60:61], s[60:61], s[64:65]')
    e('s_and_b32 s60, s60, 0x11111111'); e('s_and_b32 s61, s61, 0x11111111')
    e('s_mul_i32 s56, s60, 15'); e('s_mul_i32 s57, s61, 15')
    e('s_mov_b64 exec, -1')
    e(f'v_mov_b32 v{TT}, 212'); e(f'v_mov_b32 v{PO2}, 0')
    e('s_mov_b64 exec, 1')
    e(f'ds_add_u32 v{TT}, v{TWO} offset:{CNT}')
    e(f'buffer_store_dword v{TT}, v{PO2}, s[96:99], 0 offen sc1')
    e('s_branch L_hok')
    lab('L_sretry')
    e('s_sub_u32 s66, s66, 1')
    e('s_cbranch_scc1 L_force_slow')
    if SLEEP: e(f's_sleep {SLEEP}')
    e('s_mov_b64 exec, s[62:63]')
    e(f'buffer_load_dwordx4 v[{GA[1]}:{GA[1]+3}], v{SOF}, s[68:71], 0 offen sc1')
    e('s_waitcnt vmcnt(0)')
    e('s_branch L_sv')
    lab('L_force_slow')
    e('s_mov_b64 exec, -1')
    e('s_waitcnt vmcnt(0)')
    e(f'v_mov_b32 v{TT}, 0x10000'); e(f'v_mov_b32 v{X0}, 220')
    e('s_mov_b64 exec, 1')
    e(f'ds_add_u32 v{X0}, v{TT} offset:{CNT}')
    e('s_mov_b64 exec, -1')
    e('s_branch L_rescan_done')
    lab('L_rescan')
    e('s_lshl_b32 s72, s36, 4')
    lab('L_rs_next')
    e('s_cmp_eq_u64 s[56:57], 0'); e('s_cbranch_scc1 L_rescan_done')
    e('s_ff1_i32_b64 s73, s[56:57]')
    e('s_lshl_b64 s[64:65], 15, s73'); e('s_andn2_b64 s[56:57], s[56:57], s[64:65]')
    e('s_lshr_b32 s73, s73, 2'); e('s_add_u32 s73, s73, s72')
    e(f's_mul_i32 s73, s73, {CHB}')
    e('s_mov_b32 s74, 0')
    lab('L_rs_loop')
    e(f'v_add_u32 {r("Z")}, s74, {L}')
    e(f'v_lshl_add_u32 {r("T")}, {r("Z")}, 4, s73')
    e(f'v_cmp_gt_u32 vcc, {NQ}, {r("Z")}'); e('s_mov_b64 s[62:63], vcc')
    e(f'v_cmp_gt_u32 vcc, {EB}, {r("T")}'); e('s_and_b64 s[62:63], s[62:63], vcc')
    scan_quads(V['T'],'s[62:63]')
    e('s_add_u32 s74, s74, 64'); e(f's_cmp_lt_u32 s74, {NQ}'); e('s_cbranch_scc1 L_rs_loop')
    e('s_branch L_rs_next')
    lab('L_slow')
    e('s_mov_b32 s67, 1'); e('s_mov_b32 s75, 0'); e('s_mov_b32 s13, 0'); e('s_waitcnt vmcnt(0)')
    lab('L_slow_next')
    e(f's_cmp_ge_u32 s75, {EB}'); e('s_cbranch_scc1 L_epi_ld')
    e('s_barrier')
    list_init(A1)
    e('s_waitcnt lgkmcnt(0)')
    e('s_barrier')
    e(f'v_lshl_add_u32 {r("T")}, v0, 4, s75')
    e('v_cmp_gt_u32 vcc, 28, v0'); e('s_mov_b64 s[62:63], vcc')
    e(f'v_cmp_gt_u32 vcc, {EB}, {r("T")}'); e('s_and_b64 s[62:63], s[62:63], vcc')
    e('s_cbranch_scc0 L_slow_skip')
    scan_quads(V['T'],'s[62:63]')
    lab('L_slow_skip')
    e('s_add_u32 s75, s75, 448')
    e('s_branch L_rescan_done')

def kd(name, nv, ns):
    nva=(nv+3)//4*4
    return ['.p2align 6', f'.amdhsa_kernel {name}', f'  .amdhsa_next_free_vgpr {nv}', f'  .amdhsa_next_free_sgpr {ns}', f'  .amdhsa_accum_offset {nva}',
      '  .amdhsa_group_segment_fixed_size 0','  .amdhsa_kernarg_size 64','  .amdhsa_user_sgpr_count 2','  .amdhsa_user_sgpr_kernarg_segment_ptr 1','  .amdhsa_system_sgpr_workgroup_id_x 1','.end_amdhsa_kernel']
top = hdr + [f'; @launch grid=(256,1,1) block=(1024,1,1) lds={LDS}'] + DOC + [ '.amdgcn_target "amdgcn-amd-amdhsa--gfx950"','.text',f'.globl {K}']
kernel()
tail=['.section .rodata,"a"']+kd(K,NV,102)
open(OUT,'w').write('\n'.join(top+o+tail)+'\n')
print('vgprs',NV,'lds',LDS, file=sys.stderr)
```

```python
import sys, struct
args=sys.argv[1:]
STAMP = '--stamp' in args
def opt(name, dflt):
    for a in args:
        if a.startswith('--'+name+'='): return int(a.split('=')[1])
    return dflt
TIMEOUT=opt('timeout',4096); PF=opt('pf',0); PFPOS=opt('pfpos',3); SLEEP=opt('sleep',2); DELAY=opt('delay',0)
SPIN=opt('spin',0); SPINAT=opt('spinat',0); SPINCYC=opt('spincyc',0); TR=opt('trace',0); OSC=['',' sc1',' nt',' sc0 sc1'][opt('osc',2)]; MSK=opt('msk',1); EPL=opt('epl',1); TW=opt('tw',0); AUXE=opt('auxe',0); NOB=opt('nob',0); CPF=opt('cpf',64); CSTR=opt('cstr',7); EARLY=opt('early',0); HSK=opt('hsk',0); PM=opt('pm',0); SPEC=opt('spec',0); LIW=opt('liw',1); TPOS=opt('tpos',3); DEC=opt('dec',1); WIN=opt('win',1); ETAB=opt('etab',1); ACK=opt('ack',0); TLB=opt('tlb',0); PRIO=opt('prio',2); PASSW=opt('passw',8)
OUT = [a for a in args if not a.startswith('--')][0]
HDR = open('gather_scatter__kernel_systems_refs_featgraph__graph.s.ref').read().split('\n')
hdr = [l for l in HDR if l.startswith(';') and '@launch' not in l and 'Override' not in l and 'grid=ceil' not in l]
K='gather_scatter__kernel_systems_refs_featgraph__graph_kernel'
N=12500; E=800000; EB=E*4; CHB=12512; NQ=782
XB=N*128
HSTR=16384+128; SECD=0x420000
ESTR=16384+128
TABO=0x410000
EPO=opt('epo',0xd00000); WSB=opt('wsb',0)
TSTR=2176
DOC = """
; out[d] = (sum_{e: dst_e = d} sigmoid(x[src_e] . (x[d] Wq) / 8) * x[src_e]) Wv      (one fused launch, 256 WGs x 16 waves)
; Every WG is producer of edge chunk `wg` and consumer of bucket b (nodes n with (n & 255) == b, local id n >> 8).
;  1. producer: bin the chunk's edges by bucket in LDS (cells of 16+16+16 entries), publish them in d_ws with
;     write-through stores; every 16-byte piece carries a launch tag (epoch record in d_ws + 1) and the cell count.
;  2. consumer: read the heads (+ overflow pieces) of its bucket from all producers, validate tags (re-poll while
;     stale; after a bounded number of polls, or on cell overflow, re-derive the entries from src/dst directly),
;     build per-node source lists in LDS; lists that do not fit fall back to windows over the raw edge list.
;  3. per wave (3-4 nodes): LDS-DMA gather of 16-row tiles, logits and weighted sums by MFMA, final 64x64 GEMM.
; The epoch record is advanced by a WG that saw this launch's pieces of all 256 producers (WG 0, or any such WG
; when d_debug[0] says some WG gave up polling).
""".strip().split('\n')
o=[]
def e(s): o.append('    '+s)
def lab(s): o.append(s+':')
def f2u(f): return struct.unpack('<I',struct.pack('<f',f))[0]
def srd(d, lo, hi, nrec):
    e(f's_mov_b32 s{d}, s{lo}'); e(f's_mov_b32 s{d+1}, s{hi}'); e(f's_mov_b32 s{d+2}, {nrec}'); e(f's_mov_b32 s{d+3}, 0x20000')
NST=10
def stamp(i):
    if STAMP: e(f's_memrealtime s[{80+2*i}:{81+2*i}]')
    if SPIN and i==SPINAT: e('s_memtime s[100:101]' if SPINCYC else 's_memrealtime s[100:101]')
def tr(lane):
    if not TR: return
    e('s_memrealtime s[78:79]'); e('s_waitcnt lgkmcnt(0)')
    if isinstance(lane,str):
        e(f's_lshl_b64 exec, 1, {lane}'); e('v_mov_b32 v27, s78'); e('s_mov_b64 exec, -1')
    else:
        e(f'v_writelane_b32 v27, s78, {lane}')
def tr_store():
    if not TR: return
    e('s_add_u32 s76, s14, 0xa000000'); e('s_addc_u32 s77, s15, 0')
    e(f's_lshl_b32 s75, s{SP}, 12')
    e('v_lshl_add_u32 v1, v0, 2, s75')
    e('global_store_dword v1, v27, s[76:77]')
def stamp_store(wsreg):
    if not STAMP: return
    e('s_waitcnt lgkmcnt(0)')
    e('v_cmp_eq_u32 vcc, 0, v0')
    e('s_and_saveexec_b64 s[78:79], vcc')
    e(f's_cbranch_execz L_nostamp')
    e(f's_add_u32 s76, s{wsreg}, 0x8000000'); e(f's_addc_u32 s77, s{wsreg+1}, 0')
    e(f's_lshl_b32 s75, s{SP}, 7')
    e('v_mov_b32 v1, s75')
    for i in range(NST):
        e(f'v_mov_b32 v2, s{80+2*i}'); e(f'v_mov_b32 v3, s{81+2*i}')
        e(f'global_store_dwordx2 v1, v[2:3], s[76:77] offset:{8*i}')
        e('s_nop 1')
    lab('L_nostamp')
    e('s_mov_b64 exec, -1')

CNT=0; QS=144; QT=256; WV=QT+64*QS; PC=WV+8192; WQ=PC+1024; XR=WQ+8192; STG=XR+8192; IMG=STG; LIST=STG+100352; LDS=LIST+12544
assert STG%128==0 and QT%16==0 and WV%16==0 and IMG+128<=65536 and LDS<=163840
V={}
_n=[1]
def va(name,cnt=1,al=1):
    while _n[0]%al: _n[0]+=1
    V[name]=_n[0]; _n[0]+=cnt
    return V[name]
va('lane'); va('cA'); va('cB'); va('ia'); va('a10'); va('a11'); va('a2',4); va('m',4); va('cs'); va('idx',8); va('qa'); va('Z'); va('T'); V['Pk']=V['T']
va('O',16,4); va('D',4,4); va('Bq',32,4); va('A1',24,4); va('XT01',16,4); va('XT2',8,2)
NV=_n[0]
assert NV<=128, NV
def r(name,i=0,n=1):
    b=V[name]+i
    return f'v{b}' if n==1 else f'v[{b}:{b+n-1}]'
A1=V['A1']; XT3=A1; P01=A1+8; P2=A1+12; P3=A1+14
X0=V['XT01']; TMP=V['XT2']; OO=V['O']; ID=V['idx']
L=r('lane')
DQ=X0; SQ=X0+4; AD=X0+8; RK=X0+12
EPR=ID; T16=V['D']; L16=V['D']+1; FOUR=V['D']+2
SC=A1; TGS=A1+16
XQ=A1; WF=A1+8; QD=V['D']; QAW=ID+4; QAX=ID+5; QAX2=ID+6; QAT=ID+7
GA=[X0, X0+4]; CNV=X0+8; TT=X0+9; PO2=X0+10
HOF=TMP; SOF=TMP+1; J4=TMP+2; TWO=TMP+4; PIA=TMP+5; PSO=TMP+6; PCA=TMP+7
M0_=0xC003C000
SP=49
M_=0xC0FFC000

def wfrag_addr_q():
    e(f'v_lshrrev_b32 v{TMP}, 4, {L}'); e(f'v_lshlrev_b32 v{TMP}, 10, v{TMP}')
    e(f'v_bfe_u32 v{TMP+1}, {L}, 2, 2'); e(f'v_lshl_add_u32 v{TMP}, v{TMP+1}, 7, v{TMP}')
    e(f'v_and_b32 v{TMP+1}, 3, {L}'); e(f'v_lshl_add_u32 v{TMP}, v{TMP+1}, 3, v{TMP}')
    e('s_and_b32 s3, s36, 3'); e('s_lshl_b32 s3, s3, 5')
    e(f'v_add_u32 v{TMP}, s3, v{TMP}')

_u=[0]
def dma_issue(nc, check):
    _u[0]+=1; u=_u[0]
    if check and HSK: e('s_lshl_b32 s77, s43, 1'); e('s_add_u32 s77, s77, 1')
    for k in range(nc):
        if check: e(f's_cmp_lt_u32 s43, s{45+k}'); e(f's_cbranch_scc0 D{u}_{k}')
        e(f'v_lshl_add_u32 {r("idx",2*k)}, {r("idx",2*k)}, 7, {r("cA")}')
        e(f's_add_u32 m0, s37, {k*2048}')
        e(f'v_lshl_add_u32 {r("idx",2*k+1)}, {r("idx",2*k+1)}, 7, {r("cB")}')
        e(f'buffer_load_dwordx4 {r("idx",2*k)}, s[16:19], 0 offen lds')
        if check and HSK: e(f's_cmp_lt_u32 s77, s{8+k}'); e(f's_cbranch_scc0 D{u}_{k}')
        e(f's_add_u32 m0, s37, {k*2048+1024}')
        e('s_nop 0')
        e(f'buffer_load_dwordx4 {r("idx",2*k+1)}, s[16:19], 0 offen lds')
        if check: lab(f'D{u}_{k}')
def idx_reads(nc):
    for k in range(nc):
        e(f'ds_read_u16 {r("idx",2*k)}, {r("ia")} offset:{k*4096}')
        e(f'ds_read_u16 {r("idx",2*k+1)}, {r("ia")} offset:{k*4096+16}')

def wv_reads():
    WFE=V['Bq']; a=ID
    e(f'v_lshrrev_b32 v{a}, 2, {L}'); e(f'v_lshlrev_b32 v{a}, 7, v{a}')
    e(f'v_and_b32 v{a+1}, 3, {L}'); e(f'v_lshl_add_u32 v{a}, v{a+1}, 5, v{a}')
    e(f'v_lshlrev_b32 v{a+1}, 1, {L}'); e(f'v_and_b32 v{a+1}, 16, v{a+1}'); e(f'v_or_b32 v{a}, v{a}, v{a+1}'); e(f'v_xor_b32 v{a+1}, 16, v{a}')
    for Mt in range(4):
        for ks in range(2):
            for jh in range(2):
                d=WFE+8*Mt+4*ks+2*jh
                e(f'ds_read_b64_tr_b16 v[{d}:{d+1}], v{a+(Mt>>1)} offset:{WV+(2*ks+jh)*2048+8*(Mt&1)}')

def sigmoid(nc):
    e(f'v_mul_f32 {r("Z")}, {r("D",0)}, {r("cs")}')
    for i in (1,2,3):
        e(f'v_mul_f32_dpp {r("Z")}, {r("D",i)}, {r("cs")} row_shr:{4*i} row_mask:0xf bank_mask:{1<<i:#x}')
    e(f'v_exp_f32 {r("Z")}, {r("Z")}')
    e('s_nop 0')
    e(f'v_add_f32 {r("Z")}, 1.0, {r("Z")}')
    e(f'v_rcp_f32 {r("Z")}, {r("Z")}')
    e('s_nop 1')
    e(f'v_mov_b32_dpp {r("T")}, {r("Z")} row_shl:4 row_mask:0xf bank_mask:0xf bound_ctrl:0')
    e(f'v_cvt_pk_bf16_f32 {r("Pk")}, {r("Z")}, {r("T")}')
    dsts=[P01,P01+2,P2,P3]
    for k in range(nc):
        e(f'v_and_b32 v{dsts[k]}, {r("Pk")}, {r("m",k)}')
    for k in range(nc):
        e(f'v_and_b32_dpp v{dsts[k]+1}, {r("Pk")}, {r("m",k)} row_shl:8 row_mask:0xf bank_mask:0xf bound_ctrl:0')
    e('s_nop 1')
def xt(k,f):
    return V['XT01']+4*f+2*k if k<2 else (V['XT2']+2*f if k==2 else XT3+2*f)
def a1r(k):
    return 8*k if k<3 else 0
def mf1(k, first):
    c0 = '0' if first else r("D",0,4)
    e(f'v_mfma_f32_16x16x32_bf16 {r("D",0,4)}, {r("A1",a1r(k),4)}, {r("Bq",8*k,4)}, {c0}')
    e(f'v_mfma_f32_16x16x32_bf16 {r("D",0,4)}, {r("A1",a1r(k)+4,4)}, {r("Bq",8*k+4,4)}, {r("D",0,4)}')
def a1reads(k):
    e(f'ds_read_b128 {r("A1",a1r(k),4)}, {r("a10")} offset:{k*2048}')
    e(f'ds_read_b128 {r("A1",a1r(k)+4,4)}, {r("a11")} offset:{k*2048}')
def trreads(k):
    return [f'ds_read_b64_tr_b16 v[{xt(k,f)}:{xt(k,f)+1}], {r("a2",f)} offset:{k*2048}' for f in range(4)]
def mf2pair():
    for f in range(4):
        e(f'v_mfma_f32_16x16x32_bf16 {r("O",4*f,4)}, {r("XT01",4*f,4)}, v[{P01}:{P01+3}], {r("O",4*f,4)}')
def mf2single(k):
    P=P2 if k==2 else P3
    for f in range(4):
        e(f'v_mfma_f32_16x16x16_bf16 {r("O",4*f,4)}, v[{xt(k,f)}:{xt(k,f)+1}], v[{P}:{P+1}], {r("O",4*f,4)}')

def main_loop(nc):
    t=f'M{nc}'
    e('s_cmp_eq_u32 s42, 5'); e(f's_cbranch_scc1 {t}_spec')
    e(f'v_add_u32 {r("ia")}, s3, {r("Z")}')
    idx_reads(nc)
    lab(f'{t}_spec')
    if EARLY:
        for k in range(nc): e(f's_sub_u32 s{45+k}, s{45+k}, s13')
        e('s_sub_u32 s42, s42, s13')
    e('s_min_u32 s44, s45, s46'); e('s_min_u32 s44, s44, s47')
    if nc==4: e('s_min_u32 s44, s44, s48')
    e('s_sub_u32 s43, s42, 1')
    if EARLY: e('s_cmp_lg_u32 s13, 0'); e(f's_cbranch_scc1 {t}_early')
    e('s_waitcnt lgkmcnt(0)')
    dma_issue(nc, True)
    if not EARLY: tr(11)
    lab(f'{t}_loop')
    if PRIO==2:
        th=[(3,2,1),(4,2,1),(4,3,1),(4,3,2)][PM]
        e('s_setprio 3'); e(f's_cmp_gt_u32 s42, {th[0]}'); e(f's_cbranch_scc1 {t}_pd')
        e('s_setprio 2'); e(f's_cmp_gt_u32 s42, {th[1]}'); e(f's_cbranch_scc1 {t}_pd')
        e('s_setprio 1'); e(f's_cmp_gt_u32 s42, {th[2]}'); e(f's_cbranch_scc1 {t}_pd')
        e('s_setprio 0')
        lab(f'{t}_pd')
    e(f'v_subrev_u32 {r("ia")}, 32, {r("ia")}')
    e('s_sub_u32 s42, s42, 1'); e('s_sub_u32 s43, s42, 1')
    idx_reads(nc)
    e('s_cmp_ge_u32 s42, s44'); e(f's_cbranch_scc1 {t}_ramp')
    e('s_waitcnt vmcnt(0)')
    tr('s42')
    for k in range(3): a1reads(k)
    trl=trreads(0)+trreads(1)+trreads(2)
    for x in trl[:6]: e(x)
    e('s_waitcnt lgkmcnt(10)')
    mf1(0,True)
    for x in trl[6:]: e(x)
    if nc==4:
        a1reads(3)
        e('s_waitcnt lgkmcnt(14)')
    else:
        e('s_waitcnt lgkmcnt(12)')
    mf1(1,False); mf1(2,False)
    if nc==4:
        e('s_waitcnt lgkmcnt(0)')
        mf1(3,False)
        for x in trreads(3): e(x)
    e('s_waitcnt lgkmcnt(0)')
    e('s_cmp_eq_u32 s42, 0')
    e(f's_cbranch_scc1 {t}_last')
    dma_issue(nc, False)
    lab(f'{t}_nodma')
    if TR: e('s_add_u32 s75, s42, 16'); tr('s75')
    sigmoid(nc)
    mf2pair(); mf2single(2)
    if nc==4: mf2single(3)
    e('s_cmp_lg_u32 s42, 0')
    e(f's_cbranch_scc1 {t}_loop')
    e('s_branch L_loop_done')
    lab(f'{t}_last')
    e('s_nop 4')
    e('s_cmp_lg_u32 s67, 0'); e(f's_cbranch_scc1 {t}_nodma')
    wv_reads()
    e(f's_branch {t}_nodma')
    if EARLY:
        lab(f'{t}_early')
        e('s_waitcnt vmcnt(0)')
        tr(5)
        for k in range(3): a1reads(k)
        trl=trreads(0)+trreads(1)+trreads(2)
        for x in trl[:6]: e(x)
        e('s_waitcnt lgkmcnt(10)')
        mf1(0,True)
        for x in trl[6:]: e(x)
        if nc==4:
            a1reads(3)
            e('s_waitcnt lgkmcnt(14)')
        else:
            e('s_waitcnt lgkmcnt(12)')
        mf1(1,False); mf1(2,False)
        if nc==4:
            e('s_waitcnt lgkmcnt(0)')
            mf1(3,False)
            for x in trreads(3): e(x)
        e('s_waitcnt lgkmcnt(0)')
        e('s_cmp_eq_u32 s42, 0')
        e(f's_cbranch_scc1 {t}_elast')
        dma_issue(nc, True)
        lab(f'{t}_enodma')
        tr(21)
        e('s_nop 7')
        sigmoid(nc)
        mf2pair()
        for i in range(16): e(f'v_mov_b32 {r("XT01",i)}, 0')
        mf2single(2)
        if nc==4: mf2single(3)
        e('s_cmp_lg_u32 s42, 0')
        e(f's_cbranch_scc1 {t}_loop')
        e('s_branch L_loop_done')
        lab(f'{t}_elast')
        wv_reads()
        e(f's_branch {t}_enodma')
    lab(f'{t}_ramp')
    for i in range(4): e(f'v_mov_b32 {r("D",i)}, 0')
    e('s_waitcnt vmcnt(0)')
    tr('s42')
    for k in range(3):
        e(f's_cmp_lt_u32 s42, s{45+k}'); e(f's_cbranch_scc0 {t}_r1{k}')
        a1reads(k)
        for x in trreads(k): e(x)
        lab(f'{t}_r1{k}')
    e('s_waitcnt lgkmcnt(0)')
    for k in range(3):
        e(f's_cmp_lt_u32 s42, s{45+k}'); e(f's_cbranch_scc0 {t}_r2{k}')
        mf1(k,False)
        lab(f'{t}_r2{k}')
    if nc==4:
        e(f's_cmp_lt_u32 s42, s48'); e(f's_cbranch_scc0 {t}_r23')
        a1reads(3)
        e('s_waitcnt lgkmcnt(0)')
        mf1(3,False)
        for x in trreads(3): e(x)
        e('s_waitcnt lgkmcnt(0)')
        lab(f'{t}_r23')
    e('s_cmp_eq_u32 s42, 0')
    e(f's_cbranch_scc1 {t}_rlast')
    dma_issue(nc, True)
    lab(f'{t}_rnodma')
    if TR: e('s_add_u32 s75, s42, 16'); tr('s75')
    e('s_nop 7')
    sigmoid(nc)
    mf2pair()
    e(f's_cmp_lt_u32 s42, s47'); e(f's_cbranch_scc0 {t}_r32')
    mf2single(2)
    lab(f'{t}_r32')
    if nc==4:
        e(f's_cmp_lt_u32 s42, s48'); e(f's_cbranch_scc0 {t}_r33')
        mf2single(3)
        lab(f'{t}_r33')
    e('s_cmp_lg_u32 s42, 0')
    e(f's_cbranch_scc1 {t}_loop')
    e('s_branch L_loop_done')
    lab(f'{t}_rlast')
    e('s_cmp_lg_u32 s67, 0'); e(f's_cbranch_scc1 {t}_rnodma')
    wv_reads()
    e(f's_branch {t}_rnodma')

def list_init(t):
    for i in range(4): e(f'v_mov_b32 v{t+i}, -1')
    e(f'v_lshlrev_b32 v{t+4}, 4, v0')
    e(f'v_add_u32 v{t+4}, {LIST}, v{t+4}')
    e('v_cmp_gt_u32 vcc, 784, v0')
    e('s_mov_b64 exec, vcc')
    e(f'ds_write_b128 v{t+4}, v[{t}:{t+3}]')
    e('s_mov_b64 exec, -1')
    _u[0]+=1; u=_u[0]
    e('s_cmp_lg_u32 s36, 13'); e(f's_cbranch_scc1 I{u}')
    e(f'v_lshlrev_b32 v{t+5}, 2, {L}')
    e(f'v_lshlrev_b32 v{t+6}, 8, {L}'); e(f'v_add_u32 v{t+6}, {LIST}, v{t+6}')
    e(f'v_mov_b32 v{t+4}, s40')
    e(f'v_cmp_le_u32 vcc, 56, {L}')
    e('s_nop 1')
    e(f'v_cndmask_b32 v{t+6}, v{t+6}, v{t+4}, vcc')
    e(f'ds_write_b32 v{t+5}, v{t+6} offset:{CNT}')
    lab(f'I{u}')
def stg_zero(t):
    for i in range(4): e(f'v_mov_b32 v{t+i}, 0')
    e(f'v_lshl_add_u32 v{t+4}, {L}, 4, s37')
    for i in range(6): e(f'ds_write_b128 v{t+4}, v[{t}:{t+3}] offset:{1024*i}')
    _u[0]+=1; u=_u[0]
    e('s_cmp_lg_u32 s36, 0'); e(f's_cbranch_scc1 Z{u}')
    for i in (6,7): e(f'ds_write_b128 v{t+4}, v[{t}:{t+3}] offset:{1024*i}')
    lab(f'Z{u}')

def insert_entries(groups, tr_, two):
    n=sum(len(g[1]) for g in groups)
    i=0
    for m,regs in groups:
        e(f's_mov_b64 exec, {m}')
        for x in regs:
            e(f'v_lshrrev_b32 v{tr_+i}, 22, v{x}')
            e(f'ds_add_rtn_u32 v{tr_+i}, v{tr_+i}, v{two} offset:{CNT}')
            i+=1
    i=0
    for m,regs in groups:
        e(f's_mov_b64 exec, {m}')
        for x in regs:
            e(f's_waitcnt lgkmcnt({n-1})')
            e(f'ds_write_b16 v{tr_+i}, v{x}')
            i+=1
    e('s_mov_b64 exec, -1')

def scan_quads(off, vmask):
    e(f's_mov_b64 exec, {vmask}')
    e(f'buffer_load_dwordx4 v[{DQ}:{DQ+3}], v{off}, s[20:23], 0 offen')
    e(f'buffer_load_dwordx4 v[{SQ}:{SQ+3}], v{off}, s[24:27], 0 offen')
    e(f'v_mov_b32 v{RK}, 2')
    e('s_mov_b32 s3, 0x050c0100')
    e('s_waitcnt vmcnt(0)')
    ms=['s[42:43]','s[44:45]','s[46:47]','s[64:65]']
    for i in range(4):
        e(f'v_and_b32 v{AD+i}, 0xff, v{DQ+i}')
        e(f'v_cmp_eq_u32 {ms[i]}, s2, v{AD+i}')
        e(f'v_perm_b32 v{SQ+i}, v{DQ+i}, v{SQ+i}, s3')
    insert_entries([(ms[i],[SQ+i]) for i in range(4)], AD, RK)

def pf_loads():
    if not PF: return
    e(f's_lshr_b32 s3, s{SP}, 3'); e('s_mul_i32 s3, s3, 50000')
    e('s_add_u32 s96, s4, s3'); e('s_addc_u32 s97, s5, 0'); e('s_mov_b32 s98, 50000'); e('s_mov_b32 s99, 0x20000')
    e(f'v_lshlrev_b32 v{TMP+6}, 6, v0')
    e(f'buffer_load_dword v{TMP+5}, v{TMP+6}, s[96:99], 0 offen')

def expand_bytes(p):
    e(f's_lshr_b64 s[64:65], s[{p}:{p+1}], 1'); e(f's_or_b64 s[{p}:{p+1}], s[{p}:{p+1}], s[64:65]')
    e(f's_lshr_b64 s[64:65], s[{p}:{p+1}], 2'); e(f's_or_b64 s[{p}:{p+1}], s[{p}:{p+1}], s[64:65]')
    e(f's_lshr_b64 s[64:65], s[{p}:{p+1}], 4'); e(f's_or_b64 s[{p}:{p+1}], s[{p}:{p+1}], s[64:65]')
    e(f's_and_b32 s{p}, s{p}, 0x01010101'); e(f's_and_b32 s{p+1}, s{p+1}, 0x01010101')
    e(f's_mul_i32 s{p}, s{p}, 0xff'); e(f's_mul_i32 s{p+1}, s{p+1}, 0xff')

def head_issue():
    if DELAY: e(f's_sleep {DELAY}')
    e(f'buffer_load_dwordx4 v[{GA[0]}:{GA[0]+3}], v{HOF}, s[68:71], 0 offen sc1')
    if SPEC: e(f'buffer_load_dwordx4 v[{GA[1]}:{GA[1]+3}], v{SOF}, s[68:71], 0 offen sc1')

def validate(G, p):
    for i in range(4): e(f'v_xor_b32 v{G+i}, s{50+i}, v{G+i}')
    e(f'v_or3_b32 v{TT}, v{G+1}, v{G+2}, v{G+3}')
    e(f'v_and_b32 v{TT}, s46, v{TT}')
    e(f'v_and_or_b32 v{TT}, v{G}, s47, v{TT}')
    e(f'v_cmp_ne_u32 {p}, 0, v{TT}')
    e(f's_cmp_lg_u64 {p}, 0')

def kernel():
    o.append('.p2align 8'); o.append(f'.type {K},@function'); lab(K)
    e('s_cmp_ge_u32 s2, 256'); e('s_cbranch_scc1 L_end')
    stamp(0)
    if TR: e('v_mov_b32 v27, 0'); tr(8)
    e('s_load_dwordx8 s[16:23], s[0:1], 0')
    e('s_load_dwordx8 s[8:15], s[0:1], 32')
    t0,t1,t2,t3=A1+8,A1+9,A1+10,A1+11
    if CPF:
        e('s_getpc_b64 s[92:93]')
        e(f'v_lshlrev_b32 v{t0}, {CSTR}, v0')
        e(f'v_mov_b32 v{t0+1}, s93'); e(f'v_add_co_u32 v{t0}, vcc, s92, v{t0}'); e('s_nop 1'); e(f'v_addc_co_u32 v{t0+1}, vcc, 0, v{t0+1}, vcc')
        e(f'v_cmp_gt_u32 vcc, {CPF}, v0')
        e('s_and_saveexec_b64 s[92:93], vcc')
        e('s_cbranch_execz L_nocpf')
        e(f'global_load_dword v{TMP+3}, v[{t0}:{t0+1}], off offset:128')
        lab('L_nocpf')
        e('s_mov_b64 exec, -1')
    e(f'v_lshrrev_b32 v{t0}, 6, v0')
    e(f'v_lshlrev_b32 v{T16}, 4, v0')
    e(f'v_readfirstlane_b32 s36, v{t0}')
    e('s_and_b32 s3, s2, 7'); e('s_add_u32 s3, s3, 56'); e('s_lshl_b32 s3, s3, 24')
    for i in range(4): e(f'v_mov_b32 v{A1+i}, s3')
    e(f'v_lshrrev_b32 v{PCA}, 2, v0'); e(f'v_lshl_add_u32 v{PIA}, v{PCA}, 7, v{T16}')
    e(f'v_and_b32 {L}, 63, v0')
    e(f's_mul_i32 s42, s2, {CHB}')
    e(f'v_add_u32 v{t1}, s42, v{T16}')
    e(f'v_mov_b32 v{t2}, 0')
    e(f's_mov_b32 s26, {EB}'); e('s_mov_b32 s27, 0x20000')
    e(f's_mov_b32 s70, 16'); e('s_mov_b32 s71, 0x20000'); e('s_mov_b32 s98, 256'); e('s_mov_b32 s99, 0x20000'); e('s_mov_b32 s58, 0'); e('s_mov_b32 s59, 0')
    e(f'v_cmp_gt_u32 vcc, {NQ}, v0'); e('s_mov_b64 s[62:63], vcc')
    e(f'v_cmp_gt_u32 vcc, {EB}, v{t1}'); e('s_and_b64 s[62:63], s[62:63], vcc')
    e(f'v_lshlrev_b32 v{A1+4}, 2, v0')
    e(f'v_cndmask_b32 v{t1}, 4.0, v{t1}, s[62:63]')
    e(f's_mov_b32 s{SP}, s2')
    if not NOB: e('s_and_b32 s3, s2, 7'); e('s_lshl_b32 s3, s3, 5'); e('s_lshr_b32 s2, s2, 3'); e('s_or_b32 s2, s2, s3')
    e('s_waitcnt lgkmcnt(0)')
    stamp(1)
    e('s_mov_b64 s[24:25], s[18:19]'); e('s_mov_b64 s[96:97], s[12:13]'); e('s_mov_b64 s[12:13], s[10:11]'); e('s_mov_b64 s[10:11], s[8:9]'); e('s_mov_b64 s[8:9], s[22:23]')
    e(f's_mov_b32 s22, {EB}'); e('s_mov_b32 s23, 0x20000')
    if WSB: e(f's_add_u32 s14, s14, {WSB}'); e('s_addc_u32 s15, s15, 0')
    e(f's_add_u32 s68, s14, {EPO-WSB}'); e('s_addc_u32 s69, s15, 0')
    if not EPL:
        e(f'buffer_load_dwordx4 v[{EPR}:{EPR+3}], v{t2}, s[68:71], 0 offen sc1')
    if TW:
        e('s_cmp_eq_u32 s36, 13'); e('s_cbranch_scc1 L_tw')
    e(f'buffer_load_dwordx4 v[{DQ}:{DQ+3}], v{t1}, s[20:23], 0 offen')
    e(f'buffer_load_dwordx4 v[{SQ}:{SQ+3}], v{t1}, s[24:27], 0 offen')
    lab('L_twb')
    if EPL:
        e(f'buffer_load_dwordx4 v[{EPR}:{EPR+3}], v{t2}, s[68:71], 0 offen sc1')
    for i in range(3): e(f'ds_write_b128 v{PIA}, v[{A1}:{A1+3}] offset:{IMG+64*i}')
    e('s_cmp_lt_u32 s36, 4'); e('s_cbranch_scc0 L_nopc')
    e(f'ds_write_b32 v{A1+4}, v{t2} offset:{PC}')
    lab('L_nopc')
    e('s_waitcnt lgkmcnt(0)')
    e('s_barrier')
    e(f'v_lshlrev_b32 v{L16}, 4, {L}')
    e(f'v_and_b32 v{t0}, 16, {L}'); e(f'v_xor_b32 v{t0}, v{t0}, v{L16}')
    e('s_and_b32 s39, s36, 7'); e('s_lshl_b32 s39, s39, 10')
    e('s_cmp_lt_u32 s36, 8')
    e('s_cselect_b32 s28, s8, s10'); e('s_cselect_b32 s29, s9, s11'); e('s_mov_b32 s30, 8192'); e('s_mov_b32 s31, 0x20000')
    e(f's_cselect_b32 s3, {WQ-WV}, 0')
    e(f's_add_u32 s3, s3, {WV}')
    e('s_add_u32 m0, s3, s39')
    e(f's_mov_b32 s18, {XB}'); e('s_mov_b32 s19, 0x20000')
    e(f'buffer_load_dwordx4 v{t0}, s[28:31], s39 offen lds')
    e(f'v_bfe_u32 v{t0}, v0, 3, 6')
    e(f'v_lshlrev_b32 v{t0}, 15, v{t0}')
    e(f'v_lshrrev_b32 v{t3}, 3, {L}'); e(f'v_xor_b32 v{t3}, v{t3}, {L}'); e(f'v_and_b32 v{t3}, 7, v{t3}')
    e(f'v_lshl_add_u32 v{t0}, v{t3}, 4, v{t0}')
    e('s_lshl_b32 s38, s2, 7')
    e(f's_add_u32 m0, s39, {XR}')
    e(f'v_mov_b32 v{FOUR}, 4')
    e(f'buffer_load_dwordx4 v{t0}, s[16:19], s38 offen lds')
    e('s_mov_b32 s48, 0x050c0100'); e('s_mov_b32 s40, 0x30000')
    e('s_add_u32 s3, s36, 15'); e('s_and_b32 s3, s3, 15'); e('s_mul_i32 s37, s3, 6144'); e(f's_add_u32 s37, s37, {STG}')
    if not LIW: list_init(A1)
    e(f's_mul_i32 s3, s{SP}, {HSTR}'); e('s_add_u32 s28, s14, s3'); e('s_addc_u32 s29, s15, 0'); e(f's_mov_b32 s30, {2*SECD+16384}'); e('s_mov_b32 s31, 0x20000')
    e(f's_mov_b32 s54, {SECD}'); e(f's_mov_b32 s55, {2*SECD}')
    e('s_lshl_b32 s41, s36, 8'); e(f's_add_u32 s41, s41, {LIST-32}')
    e('s_mov_b32 s6, 0x00010001'); e('s_mov_b32 s7, 0x00010001')
    e(f'v_lshrrev_b32 v{t1}, 4, {L}')
    e(f'v_lshrrev_b32 v{t0}, 3, {L}'); e(f'v_and_b32 v{t0}, 6, v{t0}'); e(f'v_and_b32 v{t2}, 7, {L}')
    e(f'v_xor_b32 v{t0}, v{t0}, v{t2}'); e(f'v_lshlrev_b32 {r("cA")}, 4, v{t0}'); e(f'v_xor_b32 {r("cB")}, 16, {r("cA")}')
    e(f'v_and_b32 v{t0}, 6, {L}'); e(f'v_bfe_u32 v{t2}, {L}, 3, 1'); e(f'v_or_b32 v{t0}, v{t0}, v{t2}')
    e(f'v_lshlrev_b32 v{t2}, 1, v{t1}'); e(f'v_xor_b32 v{t0}, v{t0}, v{t2}'); e(f'v_lshlrev_b32 v{t0}, 4, v{t0}')
    e(f'v_and_b32 v{t2}, 15, {L}'); e(f'v_lshl_add_u32 v{t0}, v{t2}, 7, v{t0}')
    e(f'v_add_u32 {r("a10")}, s37, v{t0}'); e(f'v_xor_b32 {r("a11")}, 16, {r("a10")}')
    for k in range(4):
        e(f'v_cmp_eq_u32 s[64:65], {k}, v{t2}'); e('s_nop 1'); e(f'v_cndmask_b32 {r("m",k)}, 0, -1, s[64:65]')
    e(f'v_lshlrev_b32 v{t0}, 4, v{t2}'); e(f'v_add_u32 v{t0}, s36, v{t0}'); e(f's_movk_i32 s3, {QS}'); e(f'v_mul_u32_u24 v{t0}, s3, v{t0}')
    e(f'v_lshl_add_u32 {r("qa")}, v{t1}, 5, v{t0}')
    e('s_lshr_b32 s3, s36, 2'); e('s_lshl_b32 s3, s3, 4'); e(f'v_add_u32 v{t2}, s3, v{t2}')
    e(f'v_and_b32 v{t0}, 7, {L}'); e(f'v_xor_b32 v{t0}, v{t0}, v{t1}'); e(f'v_lshlrev_b32 v{t0}, 4, v{t0}')
    e(f'v_lshl_add_u32 v{QAX}, v{t2}, 7, v{t0}'); e(f'v_xor_b32 v{QAX2}, 64, v{QAX}')
    e(f's_movk_i32 s3, {QS}'); e(f'v_mul_u32_u24 v{t2}, s3, v{t2}')
    e(f'v_lshl_add_u32 v{t2}, v{t1}, 3, v{t2}')
    e('s_and_b32 s3, s36, 3'); e('s_lshl_b32 s3, s3, 5'); e(f'v_add_u32 v{QAT}, s3, v{t2}')
    e(f'v_lshlrev_b32 v{t0}, 10, v{t1}'); e(f'v_bfe_u32 v{t2}, {L}, 2, 2'); e(f'v_lshl_add_u32 v{t0}, v{t2}, 7, v{t0}')
    e(f'v_and_b32 v{t2}, 3, {L}'); e(f'v_lshl_add_u32 v{t0}, v{t2}, 3, v{t0}'); e(f'v_add_u32 v{t0}, s3, v{t0}')
    e(f'v_lshlrev_b32 v{J4}, 4, v{t2}')
    e(f'v_lshlrev_b32 v{t2}, 1, {L}'); e(f'v_and_b32 v{t2}, 16, v{t2}'); e(f'v_xor_b32 v{QAW}, v{t0}, v{t2}')
    e(f'v_lshrrev_b32 v{t0}, 2, {L}')
    e(f'v_and_b32 v{t2}, 6, v{t0}'); e(f'v_lshrrev_b32 v{t3}, 3, v{t0}'); e(f'v_or_b32 v{t2}, v{t2}, v{t3}')
    e(f'v_bfe_u32 v{t3}, {L}, 1, 1'); e(f'v_xor_b32 v{t2}, v{t2}, v{t3}'); e(f'v_lshlrev_b32 v{t2}, 4, v{t2}')
    e(f'v_lshl_add_u32 v{t2}, v{t0}, 7, v{t2}')
    e(f'v_and_b32 v{t3}, 1, {L}'); e(f'v_lshl_add_u32 v{t2}, v{t3}, 3, v{t2}')
    e(f'v_add_u32 {r("a2",0)}, s37, v{t2}')
    for f in (1,2,3): e(f'v_xor_b32 {r("a2",f)}, {32*f}, {r("a2",0)}')
    e(f'v_mov_b32 {r("cs")}, {f2u(-0.125*1.4426950408889634):#x}')
    e(f's_movk_i32 s3, {HSTR}'); e(f'v_mad_u32_u24 v{HOF}, v{PCA}, s3, v{J4}'); e('s_lshl_b32 s3, s2, 6'); e(f'v_add_u32 v{HOF}, s3, v{HOF}')
    e(f'v_add_u32 v{SOF}, {SECD}, v{HOF}')
    e(f'v_lshlrev_b32 v{PCA}, 2, v{PCA}')
    e(f'v_add_u32 v{J4}, 64, v{J4}')
    srd(68,14,15,2*SECD+256*HSTR)
    e(f'v_mov_b32 v{TWO}, 2')
    e('s_mov_b64 s[60:61], -1'); e('s_mov_b64 s[56:57], 0')
    e(f's_movk_i32 s66, {TIMEOUT}'); e('s_mov_b32 s67, 0')
    e(f's_mov_b32 s46, {M_:#x}'); e(f's_mov_b32 s47, {M0_:#x}')
    e('s_movk_i32 s44, 188'); e('s_movk_i32 s45, 252')
    def tags(w):
        e(f's_waitcnt vmcnt({w})')
        for i in range(4): e(f'v_readfirstlane_b32 s{50+i}, v{EPR+i}')
        e('s_bfe_u32 s42, s51, 0xa000e'); e('s_bfe_u32 s43, s52, 0xa000e'); e('s_bfe_u32 s3, s53, 0xa000e')
        e('s_lshl_b32 s43, s43, 10'); e('s_lshl_b32 s3, s3, 20'); e('s_or_b32 s42, s42, s43'); e('s_or_b32 s42, s42, s3')
        e('s_add_u32 s42, s42, 1')
        e(f's_and_b32 s50, s50, {M0_:#x}')
        for i,sh in ((1,0),(2,10),(3,20)):
            e(f's_and_b32 s{50+i}, s{50+i}, 0xc0000000')
            e(f's_bfe_u32 s43, s42, {0xa0000|sh:#x}'); e('s_lshl_b32 s43, s43, 14'); e(f's_or_b32 s{50+i}, s{50+i}, s43')
    if not EPL: tags(4)
    e('s_mov_b64 exec, s[62:63]')
    e(f's_waitcnt vmcnt({4 if EPL else 3})')
    stamp(2); tr(15)
    for i in range(4):
        e(f'v_lshlrev_b32_sdwa v{AD+i}, 2, v{DQ+i} dst_sel:DWORD dst_unused:UNUSED_PAD src0_sel:DWORD src1_sel:BYTE_0')
    for i in range(4):
        e(f'ds_add_rtn_u32 v{RK+i}, v{AD+i}, v{FOUR} offset:{PC}')
    e(f's_waitcnt vmcnt({3 if EPL else 2})')
    for i in range(4):
        e(f'v_perm_b32 v{SQ+i}, v{DQ+i}, v{SQ+i}, s48')
    for i in range(4):
        e(f's_waitcnt lgkmcnt(3)')
        e(f'v_min_u32 v{RK+i}, s44, v{RK+i}')
        e(f'v_mad_u32_u24 v{RK+i}, v{AD+i}, 48, v{RK+i}')
        e(f'ds_write_b32 v{RK+i}, v{SQ+i} offset:{IMG}')
    e('s_mov_b64 exec, -1')
    if EPL: tags(2)
    e('s_waitcnt lgkmcnt(0)')
    e('s_barrier')
    stamp(3); tr(43)
    C=AD
    e(f'ds_read_b32 v{C}, v{PCA} offset:{PC}')
    e(f'ds_read_b128 v[{DQ}:{DQ+3}], v{PIA} offset:{IMG}')
    e(f'ds_read_b128 v[{SQ}:{SQ+3}], v{PIA} offset:{IMG+64}')
    e('s_waitcnt lgkmcnt(2)')
    e(f'v_cmp_lt_u32 s[64:65], v{J4}, v{C}')
    e(f'v_cmp_lt_u32 vcc, 128, v{C}')
    e(f'v_min_u32 v{C+1}, s45, v{C}')
    e(f'v_lshl_or_b32 v{C+1}, v{C+1}, 16, s50')
    e('s_waitcnt lgkmcnt(1)')
    e(f'v_xor_b32 v{DQ}, v{C+1}, v{DQ}')
    for i in (1,2,3): e(f'v_xor_b32 v{DQ+i}, s{50+i}, v{DQ+i}')
    e(f'buffer_store_dwordx4 v[{DQ}:{DQ+3}], v{T16}, s[28:31], 0 offen sc1')
    e(f'v_cndmask_b32 v{C+2}, 4.0, v{T16}, s[64:65]')
    e('s_waitcnt lgkmcnt(0)')
    e(f'v_xor_b32 v{SQ}, v{C+1}, v{SQ}')
    for i in (1,2,3): e(f'v_xor_b32 v{SQ+i}, s{50+i}, v{SQ+i}')
    e(f'buffer_store_dwordx4 v[{SQ}:{SQ+3}], v{C+2}, s[28:31], s54 offen sc1')
    e('s_cbranch_vccnz L_third')
    lab('L_third_done')
    stamp(4); tr(12)
    srd(32,12,13,XB)
    if LIW: list_init(A1+16)
    tr(45)
    if TPOS==0: head_issue(); tr(46)
    for i in range(16): e(f'v_mov_b32 {r("O",i)}, 0')
    e('s_cmp_lg_u32 s59, 0'); e('s_cbranch_scc1 WB3')
    e(f's_waitcnt vmcnt({3 if TPOS==0 else 2})')
    lab('WB3')
    e(f's_waitcnt vmcnt({4 if TPOS==0 else 3})')
    tr(44)
    e('s_barrier')
    if SPIN and SPINAT==9: e('s_memrealtime s[100:101]')
    for ks in range(2):
        for jh in range(2):
            e(f'ds_read_b64_tr_b16 v[{WF+4*ks+2*jh}:{WF+4*ks+2*jh+1}], v{QAW} offset:{WQ+ks*4096+jh*512}')
    e(f'ds_read_b128 v[{XQ}:{XQ+3}], v{QAX} offset:{XR}'); e(f'ds_read_b128 v[{XQ+4}:{XQ+7}], v{QAX2} offset:{XR}')
    if TPOS==1: head_issue(); tr(46)
    e('s_waitcnt lgkmcnt(0)')
    e(f'v_mfma_f32_16x16x32_bf16 v[{QD}:{QD+3}], v[{WF}:{WF+3}], v[{XQ}:{XQ+3}], 0')
    e(f'v_mfma_f32_16x16x32_bf16 v[{QD}:{QD+3}], v[{WF+4}:{WF+7}], v[{XQ+4}:{XQ+7}], v[{QD}:{QD+3}]')
    for i in range(32): e(f'v_mov_b32 {r("Bq",i)}, 0')
    e(f'v_cvt_pk_bf16_f32 v{A1}, v{QD}, v{QD+1}'); e(f'v_cvt_pk_bf16_f32 v{A1+1}, v{QD+2}, v{QD+3}')
    e(f'ds_write_b64 v{QAT}, v[{A1}:{A1+1}] offset:{QT}')
    if TPOS==2: head_issue(); tr(46)
    e('s_waitcnt lgkmcnt(0)')
    tr(42)
    e('s_barrier')
    if TPOS==3: head_issue(); tr(46)
    for k in range(4):
        e(f's_lshl_b64 exec, s[6:7], {k}')
        e(f'ds_read_b128 {r("Bq",8*k,4)}, {r("qa")} offset:{QT}')
        e(f'ds_read_b128 {r("Bq",8*k+4,4)}, {r("qa")} offset:{QT+16}')
    e('s_mov_b64 exec, -1')
    e(f's_waitcnt vmcnt({1 if SPEC else 0})')
    tr(6)
    lab('L_hv')
    validate(GA[0], 's[60:61]')
    e('s_cbranch_scc1 L_hretry')
    lab('L_hok')
    e('s_mov_b64 exec, -1')
    stamp(5)
    tr(7)
    if TR: e('v_writelane_b32 v27, s66, 40')
    e(f'v_bfe_u32 v{CNV}, v{GA[0]}, 16, 8')
    e(f'v_cmp_lt_u32 vcc, s44, v{CNV}')
    e(f'v_cmp_lt_u32 s[62:63], v{J4}, v{CNV}')
    e('s_or_b64 s[56:57], s[56:57], vcc')
    e('s_andn2_b64 s[62:63], s[62:63], s[56:57]')
    e('s_mov_b64 s[74:75], s[62:63]')
    if not SPEC:
        e(f'v_cndmask_b32 v{PO2}, 4.0, v{SOF}, s[62:63]')
        e(f'buffer_load_dwordx4 v[{GA[1]}:{GA[1]+3}], v{PO2}, s[68:71], 0 offen sc1')
    e(f'v_and_b32 v{GA[0]}, 0x3f003fff, v{GA[0]}')
    if MSK:
        e(f'v_add_u32 v{PO2+1}, 64, v{CNV}'); e(f'v_sub_u32 v{PO2+1}, v{PO2+1}, v{J4}')
        ms=['s[42:43]','s[64:65]','s[72:73]','s[76:77]']
        e('s_andn2_b64 exec, -1, s[56:57]')
        for i in range(4): e(f'v_cmp_lt_i32 {ms[i]}, {4*i}, v{PO2+1}')
        for i in range(4):
            e(f's_mov_b64 exec, {ms[i]}')
            e(f'v_lshrrev_b32 v{A1+i}, 22, v{GA[0]+i}')
            e(f'ds_add_rtn_u32 v{A1+i}, v{A1+i}, v{TWO} offset:{CNT}')
        for i in range(4):
            e(f's_mov_b64 exec, {ms[i]}')
            e(f's_waitcnt lgkmcnt(3)')
            e(f'ds_write_b16 v{A1+i}, v{GA[0]+i}')
    else:
        e('s_andn2_b64 exec, -1, s[56:57]')
        for i in range(4):
            e(f'v_lshrrev_b32 v{A1+i}, 22, v{GA[0]+i}')
            e(f'ds_add_rtn_u32 v{A1+i}, v{A1+i}, v{TWO} offset:{CNT}')
        for i in range(4):
            e(f's_waitcnt lgkmcnt(3)')
            e(f'ds_write_b16 v{A1+i}, v{GA[0]+i}')
    e('s_mov_b32 s13, 0')
    if EARLY:
        e('s_mov_b64 exec, -1')
        e(f'v_lshrrev_b32 {r("Z")}, 3, {L}'); e(f'v_lshl_add_u32 {r("Z")}, {r("Z")}, 1, s41')
        e(f'v_add_u32 {r("ia")}, 32, {r("Z")}')
        e('s_cmp_lt_u32 s2, 212'); e('s_cselect_b32 s12, 0, 1'); e('s_or_b32 s12, s12, s36')
        e('s_mov_b32 s3, 0xffff')
        e('s_waitcnt lgkmcnt(0)')
        e('s_barrier')
        stamp(6); tr(10)
        e('s_setprio 3')
        idx_reads(4)
        e('s_cmp_eq_u32 s12, 0'); e('s_cbranch_scc1 L_e4')
        for nc in (3,4):
            if nc==4: lab('L_e4')
            e(f's_waitcnt lgkmcnt({2 if nc==3 else 0})')
            e(f'v_max3_u32 {r("T")}, {r("idx",0)}, {r("idx",1)}, {r("idx",2)}')
            e(f'v_max3_u32 {r("T")}, {r("T")}, {r("idx",3)}, {r("idx",4)}')
            if nc==3: e(f'v_max_u32 {r("T")}, {r("T")}, {r("idx",5)}')
            else:
                e(f'v_max3_u32 {r("T")}, {r("T")}, {r("idx",5)}, {r("idx",6)}'); e(f'v_max_u32 {r("T")}, {r("T")}, {r("idx",7)}')
            e(f'v_cmp_eq_u32 vcc, s3, {r("T")}')
            e('s_cbranch_vccnz L_sec')
            dma_issue(nc, False)
            tr(11)
            e('s_mov_b32 s13, 1')
            e('s_mov_b64 exec, s[62:63]')
            e('s_cbranch_execz L_secdone')
            e(f's_waitcnt vmcnt({2*nc})')
            e('s_branch L_sv')
    lab('L_sec')
    e('s_mov_b64 exec, s[62:63]')
    e('s_cbranch_execz L_secdone')
    e('s_waitcnt vmcnt(0)')
    lab('L_sv')
    validate(GA[1], 's[62:63]')
    e('s_cbranch_scc1 L_sretry')
    tr(9)
    e('s_mov_b64 exec, s[74:75]')
    e(f'v_and_b32 v{GA[1]}, 0x3f003fff, v{GA[1]}')
    for i in range(4):
        e(f'v_lshrrev_b32 v{A1+4+i}, 22, v{GA[1]+i}')
        e(f'ds_add_rtn_u32 v{A1+4+i}, v{A1+4+i}, v{TWO} offset:{CNT}')
    for i in range(4):
        e(f's_waitcnt lgkmcnt(3)')
        e(f'ds_write_b16 v{A1+4+i}, v{GA[1]+i}')
    e('s_mov_b64 exec, -1')
    e(f'v_add_u32 v{J4}, 64, v{J4}'); e(f'v_add_u32 v{SOF}, {SECD}, v{SOF}')
    e(f'v_cmp_lt_u32 s[62:63], v{J4}, v{CNV}')
    e('s_and_b64 s[62:63], s[62:63], s[74:75]')
    e('s_cbranch_scc1 L_more')
    lab('L_secdone')
    e('s_mov_b64 exec, -1')
    e('s_cmp_lg_u64 s[56:57], 0')
    e('s_cbranch_scc1 L_rescan')
    lab('L_rescan_done')
    e(f'v_lshrrev_b32 {r("Z")}, 3, {L}'); e(f'v_lshl_add_u32 {r("Z")}, {r("Z")}, 1, s41')
    e('s_waitcnt lgkmcnt(0)')
    e(f'v_lshlrev_b32 v{A1}, 2, {L}')
    e(f'v_lshlrev_b32 v{A1+1}, 8, {L}')
    e(f'v_subrev_u32 v{A1+1}, {15-LIST & 0xffffffff}, v{A1+1}')
    e(f'v_add_u32 {r("ia")}, {5*32}, {r("Z")}')
    for i in range(16): e(f'v_mov_b32 {r("XT01",i)}, 0')
    e('s_movk_i32 s3, 271')
    e('s_add_u32 s46, s36, 16'); e('s_add_u32 s47, s36, 32'); e('s_add_u32 s48, s36, 48')
    e('s_min_u32 s48, s48, 49')
    e('s_barrier')
    if not EARLY: stamp(6); tr(10)
    else: tr(48)
    lab('L_counts')
    e(f'ds_read_b32 {r("T")}, v{A1} offset:{CNT}')
    idx_reads(4)
    e('s_waitcnt lgkmcnt(8)')
    e(f'v_sub_u32 {r("T")}, {r("T")}, v{A1+1}')
    e(f'v_cmp_lt_u32 vcc, s3, {r("T")}')
    e(f'v_lshrrev_b32 {r("T")}, 4, {r("T")}')
    e('s_and_b32 vcc_hi, vcc_hi, 0xffffff')
    e(f'v_readlane_b32 s59, {r("T")}, 53')
    e('s_or_b32 s58, s58, s59')
    e('s_cmp_lg_u64 vcc, 0')
    e('s_cbranch_scc1 L_slow')
    e(f'v_readlane_b32 s8, {r("T")}, s36'); e(f'v_readlane_b32 s9, {r("T")}, s46'); e(f'v_readlane_b32 s10, {r("T")}, s47'); e(f'v_readlane_b32 s11, {r("T")}, s48')
    for k in range(4): e(f's_add_u32 s{45+k}, s{8+k}, 1'); e(f's_lshr_b32 s{45+k}, s{45+k}, 1')
    e('s_max_u32 s42, s45, s46'); e('s_max_u32 s42, s42, s47'); e('s_max_u32 s42, s42, s48')
    e('s_cmp_lg_u32 s42, 0')
    e('s_cbranch_scc0 L_r0')
    e('s_lshl_b32 s3, s42, 5')
    e('s_cmp_lg_u32 s48, 0'); e('s_cbranch_scc1 L_m4')
    main_loop(3)
    lab('L_m4')
    main_loop(4)
    lab('L_loop_done')
    e('s_cmp_lg_u32 s67, 0'); e('s_cbranch_scc1 L_slow_next')
    lab('L_epi')
    stamp(7); tr(13)
    e('s_cmp_lg_u32 s36, 0'); e('s_cbranch_scc1 L_nochk')
    e(f'v_mov_b32 {r("Z")}, 0')
    e(f'buffer_load_dword {r("T")}, {r("Z")}, s[96:99], 0 offen sc1')
    lab('L_nochk')
    WFE=V['Bq']
    e(f'v_and_b32 v{TMP+2}, 15, {L}'); e(f'v_lshlrev_b32 v{TMP+2}, 19, v{TMP+2}')
    e(f'v_lshrrev_b32 v{TMP+3}, 4, {L}'); e(f'v_lshl_add_u32 v{TMP+2}, v{TMP+3}, 5, v{TMP+2}')
    e('s_lshl_b32 s3, s36, 8'); e('s_add_u32 s3, s3, s2'); e('s_lshl_b32 s3, s3, 7')
    e(f'v_add_u32 v{TMP+2}, s3, v{TMP+2}')
    for f in range(4):
        e(f'v_cvt_pk_bf16_f32 v{A1+2*f}, {r("O",4*f)}, {r("O",4*f+1)}'); e(f'v_cvt_pk_bf16_f32 v{A1+2*f+1}, {r("O",4*f+2)}, {r("O",4*f+3)}')
    e('s_mov_b32 s64, 0x000f000f'); e('s_mov_b32 s65, 0x000f000f')
    for Mt in range(4):
        e(f's_waitcnt lgkmcnt({12-4*Mt})')
        e(f'v_mfma_f32_16x16x32_bf16 v[{X0+4*Mt}:{X0+4*Mt+3}], v[{WFE+8*Mt}:{WFE+8*Mt+3}], v[{A1}:{A1+3}], 0')
        e(f'v_mfma_f32_16x16x32_bf16 v[{X0+4*Mt}:{X0+4*Mt+3}], v[{WFE+8*Mt+4}:{WFE+8*Mt+7}], v[{A1+4}:{A1+7}], v[{X0+4*Mt}:{X0+4*Mt+3}]')
    e('s_mov_b64 exec, s[64:65]')
    e('s_nop 2')
    for Mt in range(4):
        if Mt==3: e('s_nop 3')
        e(f'v_cvt_pk_bf16_f32 v{A1+8+2*Mt}, v{X0+4*Mt}, v{X0+4*Mt+1}'); e(f'v_cvt_pk_bf16_f32 v{A1+9+2*Mt}, v{X0+4*Mt+2}, v{X0+4*Mt+3}')
        if Mt==1: e(f'buffer_store_dwordx4 v[{A1+8}:{A1+11}], v{TMP+2}, s[32:35], 0 offen{OSC}')
    e(f'buffer_store_dwordx4 v[{A1+12}:{A1+15}], v{TMP+2}, s[32:35], 0 offen offset:16{OSC}')
    e('s_mov_b64 exec, -1')
    e('s_or_b32 s3, s58, s36'); e('s_cbranch_scc1 L_noep')
    e(f's_cmp_eq_u32 s{SP}, 0'); e('s_cbranch_scc1 L_pub')
    e('s_waitcnt vmcnt(2)')
    e(f'v_readfirstlane_b32 s3, {r("T")}')
    e('s_cmp_eq_u32 s3, 0'); e('s_cbranch_scc1 L_noep')
    lab('L_pub')
    for i in range(4): e(f'v_mov_b32 v{X0+i}, s{50+i}')
    e(f'v_mov_b32 v{X0+4}, 0')
    e(f's_add_u32 s68, s14, {EPO-WSB}'); e('s_addc_u32 s69, s15, 0'); e('s_mov_b32 s70, 16'); e('s_mov_b32 s71, 0x20000')
    e('s_mov_b64 exec, 1')
    e(f'buffer_store_dwordx4 v[{X0}:{X0+3}], v{X0+4}, s[68:71], 0 offen sc1')
    e('s_mov_b64 exec, -1')
    lab('L_noep')
    stamp(8); tr(14); tr_store()
    if STAMP:
        e('s_waitcnt vmcnt(0)'); stamp(9); stamp_store(14)
    if SPIN:
        lab('L_spin')
        e('s_sleep 4'); e('s_memtime s[94:95]' if SPINCYC else 's_memrealtime s[94:95]'); e('s_waitcnt lgkmcnt(0)'); e('s_sub_u32 s94, s94, s100'); e(f's_cmp_lt_u32 s94, {SPIN}'); e('s_cbranch_scc1 L_spin')
    lab('L_end')
    e('s_endpgm')
    lab('L_r0')
    e('s_cmp_lg_u32 s67, 0'); e('s_cbranch_scc1 L_slow_next')
    lab('L_epi_ld')
    wv_reads()
    e('s_branch L_epi')
    if TW:
        lab('L_tw')
        e(f'v_mov_b32 v{DQ}, s8'); e(f'v_mov_b32 v{DQ+1}, s9')
        e(f'v_writelane_b32 v{DQ}, s10, 1'); e(f'v_writelane_b32 v{DQ+1}, s11, 1')
        e(f'v_writelane_b32 v{DQ}, s16, 2'); e(f'v_writelane_b32 v{DQ+1}, s17, 2')
        e(f'v_writelane_b32 v{DQ}, s12, 3'); e(f'v_writelane_b32 v{DQ+1}, s13, 3')
        e(f'global_load_dword v{SQ}, v[{DQ}:{DQ+1}], off')
        srd(92,14,15,2*SECD)
        e(f'v_and_b32 v{DQ+2}, 7, v0'); e(f's_mov_b32 s3, {64*HSTR}'); e(f'v_mul_u32_u24 v{DQ+2}, s3, v{DQ+2}'); e(f'v_add_u32 v{DQ+2}, {20*HSTR+16384}, v{DQ+2}')
        e(f'buffer_load_dword v{SQ+1}, v{DQ+2}, s[92:95], 0 offen')
        e('s_branch L_twb')
    lab('L_third')
    e(f'ds_read_b128 v[{A1}:{A1+3}], v{PIA} offset:{IMG+128}')
    e(f'v_add_u32 v{AD+3}, 64, v{J4}')
    e(f'v_cmp_lt_u32 s[64:65], v{AD+3}, v{AD}')
    e('s_waitcnt lgkmcnt(0)')
    e(f'v_xor_b32 v{A1}, v{AD+1}, v{A1}')
    e(f'v_cndmask_b32 v{AD+2}, 4.0, v{T16}, s[64:65]')
    for i in (1,2,3): e(f'v_xor_b32 v{A1+i}, s{50+i}, v{A1+i}')
    e(f'buffer_store_dwordx4 v[{A1}:{A1+3}], v{AD+2}, s[28:31], s55 offen sc1')
    e('s_mov_b32 s59, 1')
    e('s_branch L_third_done')
    lab('L_more')
    e('s_mov_b64 s[74:75], s[62:63]')
    e('s_waitcnt lgkmcnt(0)')
    e('s_mov_b64 exec, s[62:63]')
    e(f'buffer_load_dwordx4 v[{GA[1]}:{GA[1]+3}], v{SOF}, s[68:71], 0 offen sc1')
    e('s_branch L_sec')
    lab('L_hretry')
    e('s_sub_u32 s66, s66, 1')
    e('s_cbranch_scc1 L_hto')
    if SLEEP: e(f's_sleep {SLEEP}')
    e('s_mov_b64 exec, s[60:61]')
    e(f'buffer_load_dwordx4 v[{GA[0]}:{GA[0]+3}], v{HOF}, s[68:71], 0 offen sc1')
    e('s_waitcnt vmcnt(0)')
    e('s_branch L_hv')
    lab('L_hto')
    e('s_mov_b32 s66, 0')
    e('s_lshr_b64 s[64:65], s[60:61], 1'); e('s_or_b64 s[60:61], s[60:61], s[64:65]')
    e('s_lshr_b64 s[64:65], s[60:61], 2'); e('s_or_b64 s[60:61], s[60:61], s[64:65]')
    e('s_and_b32 s60, s60, 0x11111111'); e('s_and_b32 s61, s61, 0x11111111')
    e('s_mul_i32 s56, s60, 15'); e('s_mul_i32 s57, s61, 15')
    e('s_mov_b64 exec, -1')
    e(f'v_mov_b32 v{TT}, 212'); e(f'v_mov_b32 v{PO2}, 0')
    e('s_mov_b64 exec, 1')
    e(f'ds_add_u32 v{TT}, v{TWO} offset:{CNT}')
    e(f'buffer_store_dword v{TT}, v{PO2}, s[96:99], 0 offen sc1')
    e('s_branch L_hok')
    lab('L_sretry')
    e('s_sub_u32 s66, s66, 1')
    e('s_cbranch_scc1 L_force_slow')
    if SLEEP: e(f's_sleep {SLEEP}')
    e('s_mov_b64 exec, s[62:63]')
    e(f'buffer_load_dwordx4 v[{GA[1]}:{GA[1]+3}], v{SOF}, s[68:71], 0 offen sc1')
    e('s_waitcnt vmcnt(0)')
    e('s_branch L_sv')
    lab('L_force_slow')
    e('s_mov_b64 exec, -1')
    e('s_waitcnt vmcnt(0)')
    e(f'v_mov_b32 v{TT}, 0x10000'); e(f'v_mov_b32 v{X0}, 220')
    e('s_mov_b64 exec, 1')
    e(f'ds_add_u32 v{X0}, v{TT} offset:{CNT}')
    e('s_mov_b64 exec, -1')
    e('s_branch L_rescan_done')
    lab('L_rescan')
    e('s_lshl_b32 s72, s36, 4')
    lab('L_rs_next')
    e('s_cmp_eq_u64 s[56:57], 0'); e('s_cbranch_scc1 L_rescan_done')
    e('s_ff1_i32_b64 s73, s[56:57]')
    e('s_lshl_b64 s[64:65], 15, s73'); e('s_andn2_b64 s[56:57], s[56:57], s[64:65]')
    e('s_lshr_b32 s73, s73, 2'); e('s_add_u32 s73, s73, s72')
    e(f's_mul_i32 s73, s73, {CHB}')
    e('s_mov_b32 s74, 0')
    lab('L_rs_loop')
    e(f'v_add_u32 {r("Z")}, s74, {L}')
    e(f'v_lshl_add_u32 {r("T")}, {r("Z")}, 4, s73')
    e(f'v_cmp_gt_u32 vcc, {NQ}, {r("Z")}'); e('s_mov_b64 s[62:63], vcc')
    e(f'v_cmp_gt_u32 vcc, {EB}, {r("T")}'); e('s_and_b64 s[62:63], s[62:63], vcc')
    scan_quads(V['T'],'s[62:63]')
    e('s_add_u32 s74, s74, 64'); e(f's_cmp_lt_u32 s74, {NQ}'); e('s_cbranch_scc1 L_rs_loop')
    e('s_branch L_rs_next')
    lab('L_slow')
    e('s_mov_b32 s67, 1'); e('s_mov_b32 s75, 0'); e('s_mov_b32 s13, 0'); e('s_waitcnt vmcnt(0)')
    lab('L_slow_next')
    e(f's_cmp_ge_u32 s75, {EB}'); e('s_cbranch_scc1 L_epi_ld')
    e('s_barrier')
    list_init(A1)
    e('s_waitcnt lgkmcnt(0)')
    e('s_barrier')
    e(f'v_lshl_add_u32 {r("T")}, v0, 4, s75')
    e('v_cmp_gt_u32 vcc, 28, v0'); e('s_mov_b64 s[62:63], vcc')
    e(f'v_cmp_gt_u32 vcc, {EB}, {r("T")}'); e('s_and_b64 s[62:63], s[62:63], vcc')
    e('s_cbranch_scc0 L_slow_skip')
    scan_quads(V['T'],'s[62:63]')
    lab('L_slow_skip')
    e('s_add_u32 s75, s75, 448')
    e('s_branch L_rescan_done')

def kd(name, nv, ns):
    nva=(nv+3)//4*4
    return ['.p2align 6', f'.amdhsa_kernel {name}', f'  .amdhsa_next_free_vgpr {nv}', f'  .amdhsa_next_free_sgpr {ns}', f'  .amdhsa_accum_offset {nva}',
      '  .amdhsa_group_segment_fixed_size 0','  .amdhsa_kernarg_size 64','  .amdhsa_user_sgpr_count 2','  .amdhsa_user_sgpr_kernarg_segment_ptr 1','  .amdhsa_system_sgpr_workgroup_id_x 1','.end_amdhsa_kernel']
top = hdr + [f'; @launch grid=(256,1,1) block=(1024,1,1) lds={LDS}'] + DOC + [ '.amdgcn_target "amdgcn-amd-amdhsa--gfx950"','.text',f'.globl {K}']
kernel()
tail=['.section .rodata,"a"']+kd(K,NV,102)
open(OUT,'w').write('\n'.join(top+o+tail)+'\n')
print('vgprs',NV,'lds',LDS, file=sys.stderr)
```
